```python
import torch

def _softmax(x, axis=-1):
    return torch.softmax(x, dim=axis)
def _gelu(x):
    return torch.nn.functional.gelu(x, approximate="tanh")
def _silu(x):
    return torch.nn.functional.silu(x)
def _sigmoid(x):
    return torch.sigmoid(x)
def _layernorm(x, axis=-1, eps=1e-5):
    m = x.mean(dim=axis, keepdim=True)
    v = x.var(dim=axis, keepdim=True, unbiased=False)
    return (x - m) / torch.sqrt(v + eps)
def _scatter_add(tgt, idx, src, axis=0):
    return tgt.clone().index_add_(axis, idx, src)
def _segment_sum(src, seg, n):
    out = torch.zeros((n,) + src.shape[1:], dtype=src.dtype)
    return out.index_add_(0, seg, src)
def _pad(x, pw):
    flat = tuple(v for pair in reversed(pw) for v in pair)
    return torch.nn.functional.pad(x, flat)

kernel_name = 'sequential_preLN__mha_block_cached__glu_gated_reglu__decode'

def setup_inputs():

    _w = (lambda a: (lambda t: t.to(torch.bfloat16) if t.is_floating_point() else t)(torch.as_tensor(a)))
    def _A_setup():
        B, Sq, D = 8, 1, 512
        H, Sk, Dh = 32, 4096, 128
        return {
            "x": _w((lambda *s: torch.randn(*s, dtype=torch.bfloat16) * 0.05)(B, Sq, D)),
            "k_cache": _w((lambda *s: torch.randn(*s, dtype=torch.bfloat16) * 1.6)(B, H, Sk, Dh)),
            "v_cache": _w((lambda *s: torch.randn(*s, dtype=torch.bfloat16) * 0.8)(B, H, Sk, Dh)),
            "wq": _w((lambda *s: torch.randn(*s, dtype=torch.bfloat16) * 1.6)(D, H * Dh) * (D ** -0.5)),
            "wo": _w((lambda *s: torch.randn(*s, dtype=torch.bfloat16) * 0.8)(H * Dh, D) * ((H * Dh) ** -0.5)),
        }
    _A_in = _A_setup()

    def _B_setup():
        B, S, D, F = 8, 1, 512, 1792
        return {
            "x": _w((lambda *s: torch.randn(*s, dtype=torch.bfloat16) * 0.05)(B, S, D)),
            "W_gate": _w((lambda *s: torch.randn(*s, dtype=torch.bfloat16) * 0.4)(D, F) * (2.0 / D) ** 0.5),
            "W_up": _w((lambda *s: torch.randn(*s, dtype=torch.bfloat16) * 0.4)(D, F) * (2.0 / D) ** 0.5),
            "W_down": _w((lambda *s: torch.randn(*s, dtype=torch.bfloat16) * 0.4)(F, D) * (1.0 / F) ** 0.5),
        }
    _B_in = _B_setup()

    return {
        "A_x": _A_in["x"],
        "A_k_cache": _A_in["k_cache"],
        "A_v_cache": _A_in["v_cache"],
        "A_wq": _A_in["wq"],
        "A_wo": _A_in["wo"],
        "B_x": _B_in["x"],
        "B_W_gate": _B_in["W_gate"],
        "B_W_up": _B_in["W_up"],
        "B_W_down": _B_in["W_down"],
    }

def reference(A_x, A_k_cache, A_v_cache, A_wq, A_wo, B_x, B_W_gate, B_W_up, B_W_down):
    def _A_ref(x, k_cache, v_cache, wq, wo):
        B, Sq, D = x.shape
        H, Dh = 32, 128
        q = (lambda x, *d: x.permute(*d))((x @ wq).reshape(B, Sq, H, Dh), 0, 2, 1, 3)
        scores = torch.einsum("bhqd,bhkd->bhqk", q, k_cache) * (Dh ** -0.5)
        p = _softmax(scores, axis=-1)
        o = torch.einsum("bhqk,bhkd->bhqd", p, v_cache)
        return (lambda x, *d: x.permute(*d))(o, 0, 2, 1, 3).reshape(B, Sq, H * Dh) @ wo

    def _B_ref(x, W_gate, W_up, W_down):
        gate = torch.einsum("bsd,df->bsf", x, W_gate)
        up = torch.einsum("bsd,df->bsf", x, W_up)
        gate = gate * (lambda x, dt: x.to(dt))(gate > 0, gate.dtype)
        h = gate * up
        return torch.einsum("bsf,fd->bsd", h, W_down)

    x = A_x
    h = x + _A_ref(_layernorm(x, axis=-1), A_k_cache, A_v_cache, A_wq, A_wo)
    h2 = h + _B_ref(_layernorm(h, axis=-1), B_W_gate, B_W_up, B_W_down)
    return h2
```

```python
import re

def regs_of(tok):
    tok = tok.strip()
    neg = tok.startswith('-')
    if neg: tok = tok[1:]
    m = re.fullmatch(r'abs\((.*)\)', tok)
    if m: tok = m.group(1)
    m = re.fullmatch(r'\|(.*)\|', tok)
    if m: tok = m.group(1)
    m = re.fullmatch(r'([vas])(\d+)', tok)
    if m: return [(m.group(1), int(m.group(2)))]
    m = re.fullmatch(r'([vas])\[(\d+):(\d+)\]', tok)
    if m: return [(m.group(1), i) for i in range(int(m.group(2)), int(m.group(3)) + 1)]
    if tok == 'vcc': return [('s', 106), ('s', 107)]
    if tok == 'exec': return [('s', 126), ('s', 127)]
    if tok == 'm0': return [('s', 124)]
    return []

TRANS = ('v_exp_f32', 'v_log_f32', 'v_rcp_f32', 'v_rsq_f32', 'v_sqrt_f32', 'v_sin_f32', 'v_cos_f32')

class Ins:
    def __init__(self, text):
        self.text = text
        t = text.split(';')[0].strip()
        self.label = t.endswith(':')
        self.reads = []; self.writes = []
        self.kind = 'other'
        self.op = ''
        self.dpp = False
        self.srcC = []; self.srcAB = []
        self.passes = 0
        self.states = 1
        if self.label or not t or t.startswith('.'):
            self.kind = 'meta'; self.states = 0
            return
        parts = t.split(None, 1)
        op = parts[0]; self.op = op
        rest = parts[1] if len(parts) > 1 else ''
        ops = []; depth = 0; cur = ''
        for ch in rest:
            if ch == '[': depth += 1
            if ch == ']': depth -= 1
            if ch == ',' and depth == 0:
                ops.append(cur.strip()); cur = ''
            else: cur += ch
        if cur.strip(): ops.append(cur.strip())
        mods = ''
        if ops:
            sp = ops[-1].split(None, 1)
            ops[-1] = sp[0]
            mods = sp[1] if len(sp) > 1 else ''
        self.ops = ops; self.mods = mods
        R = lambda i: regs_of(ops[i]) if i < len(ops) else []
        if op == 's_nop':
            self.kind = 'salu'; self.states = int(ops[0], 0) + 1
        elif op.startswith('s_'):
            self.kind = 'salu'
            if op.startswith(('s_cmp', 's_cbranch', 's_branch', 's_waitcnt', 's_barrier', 's_sleep', 's_endpgm', 's_setprio')):
                for i in range(len(ops)): self.reads += R(i)
            else:
                self.writes = R(0)
                for i in range(1, len(ops)): self.reads += R(i)
                if 'saveexec' in op: self.writes += regs_of('exec')
        elif op.startswith('v_mfma'):
            self.kind = 'mfma'
            self.writes = R(0); self.srcAB = R(1) + R(2); self.srcC = R(3)
            self.reads = self.srcAB + self.srcC
            self.passes = 2 if '4x4x4' in op else (4 if '16x16' in op else 8)
        elif op.startswith('v_'):
            self.kind = 'valu'
            self.dpp = '_dpp' in op
            if op.startswith('v_cmp'):
                self.writes = R(0)
                if op.startswith('v_cmpx'): self.writes += regs_of('exec')
                for i in range(1, len(ops)): self.reads += R(i)
            elif op.startswith('v_permlane') :
                self.writes = R(0) + R(1); self.reads = R(0) + R(1)
            elif op.startswith(('v_add_co', 'v_sub_co', 'v_addc_co', 'v_subb_co')):
                self.writes = R(0) + R(1)
                for i in range(2, len(ops)): self.reads += R(i)
            else:
                self.writes = R(0)
                for i in range(1, len(ops)): self.reads += R(i)
                if op.startswith(('v_fmac', 'v_dot2c', 'v_writelane')): self.reads += R(0)
            self.isdot = op.startswith('v_dot')
            self.istrans = op.replace('_e32', '').replace('_e64', '') in TRANS
        elif op.startswith(('buffer_', 'global_')):
            self.kind = 'vmem'
            if 'load' in op:
                self.writes = R(0)
                for i in range(1, len(ops)): self.reads += R(i)
            elif 'atomic' in op or 'store' in op:
                for i in range(len(ops)): self.reads += R(i)
                di = 0 if op.startswith('buffer_') else 1
                self.sdata = R(di)
                if 'atomic' in op and 'sc0' in mods.split(): self.writes = R(di)
            else:
                pass
        elif op.startswith('ds_'):
            self.kind = 'ds'
            if 'read' in op or 'bpermute' in op or 'swizzle' in op:
                self.writes = R(0)
                for i in range(1, len(ops)): self.reads += R(i)
            else:
                for i in range(len(ops)): self.reads += R(i)
        else:
            raise ValueError("unknown instr: " + text)

def need(prod, cons):
    n = 0
    pw = set(prod.writes); cr = set(cons.reads); cw = set(cons.writes)
    vw = {r for r in pw if r[0] in 'va'}; sw = {r for r in pw if r[0] == 's'}
    if prod.kind == 'valu':
        if vw & cr:
            if cons.kind == 'valu':
                if cons.dpp: n = max(n, 2)
                if cons.op.startswith('v_permlane'): n = max(n, 2)
                if cons.op.startswith(('v_readlane', 'v_readfirstlane')): n = max(n, 1)
                if prod.istrans and not cons.istrans: n = max(n, 1)
                if prod.istrans and cons.istrans: n = max(n, 1)
            if cons.kind == 'mfma': n = max(n, 2)
        if prod.isdot and (vw & (cr | cw)):
            if cons.kind == 'valu' and cons.op == prod.op:
                ab = set(regs_of(cons.ops[1]) + regs_of(cons.ops[2]))
                if vw & ab: n = max(n, 3)
            else:
                n = max(n, 3)
        if sw & cr:
            ex = set(regs_of('exec'))
            if cons.kind == 'valu': n = max(n, 4 if cons.op.startswith(('v_readlane', 'v_writelane')) else 2)
            if cons.kind == 'vmem': n = max(n, 5)
            if cons.kind == 'salu': n = max(n, 1)
        if set(regs_of('exec')) & pw:
            if cons.kind == 'valu' and cons.dpp: n = max(n, 5)
            if cons.kind == 'valu' and cons.op.startswith(('v_permlane', 'v_readlane', 'v_readfirstlane', 'v_writelane')): n = max(n, 4)
            if cons.kind == 'mfma': n = max(n, 4)
    if prod.kind == 'mfma':
        idx = {2: 0, 4: 1, 8: 2}[prod.passes]
        if cons.kind == 'mfma':
            if vw & set(cons.srcC):
                if set(cons.srcC) == vw and cons.passes == prod.passes: n = max(n, [2, 0, 0][idx])
                else: n = max(n, [4, 6, 10][idx])
            if vw & set(cons.srcAB): n = max(n, [5, 8, 12][idx])
            if (vw & cw) and not (vw & set(cons.srcC)): n = max(n, [5, 8, 12][idx])
        elif cons.kind in ('valu', 'vmem', 'ds'):
            if vw & (cr | cw): n = max(n, [5, 8, 12][idx])
        if cons.kind == 'valu' and (set(prod.srcC) & cw): n = max(n, [1, 3, 7][idx])
    if prod.kind == 'vmem' and hasattr(prod, 'sdata') and len(prod.sdata) >= 3:
        if set(prod.sdata) & cw: n = max(n, 2)
    if prod.kind == 'salu' and ('s', 124) in pw and cons.kind == 'vmem' and 'lds' in cons.mods.split(): n = max(n, 1)
    return n

class Asm:
    def __init__(self):
        self.L = []
        self.vm = 0
        self.vm_done = 0
    def I(self, text):
        ins = Ins(text)
        self.L.append(ins)
        if ins.kind == 'vmem':
            self.vm += 1
            return self.vm - 1
        return None
    def C(self, text):
        self.L.append(Ins('; ' + text) if False else _Comment(text))
    def wait_vm(self, idx):
        if idx < self.vm_done: return
        n = self.vm - 1 - idx
        assert n <= 63, n
        self.I(f"s_waitcnt vmcnt({n})")
        self.vm_done = idx + 1
    def wait_vm_all(self):
        self.I("s_waitcnt vmcnt(0)")
        self.vm_done = self.vm
    def finish(self):
        out = []
        hist = []
        nn = 0
        for ins in self.L:
            if ins.kind == 'meta':
                out.append(ins.text)
                continue
            req = 0
            dist = 0
            for p in reversed(hist):
                r = need(p, ins)
                if r > dist: req = max(req, r - dist)
                dist += p.states
                if dist >= 14: break
            if req > 0:
                nop = Ins(f"s_nop {req-1}")
                hist.append(nop); out.append("  " + nop.text); nn += 1
            hist.append(ins); out.append("  " + ins.text)
        self.nops = nn
        return "\n".join(out) + "\n"

class _Comment:
    def __init__(self, text):
        self.text = "  ; " + text; self.kind = 'meta'; self.states = 0
```

```python
import sys
sys.path.insert(0, "gen")
from asmlib import Asm
import struct

KNAME = "sequential_preLN__mha_block_cached__glu_gated_reglu__decode_kernel"
HEADER = open("sequential_preLN__mha_block_cached__glu_gated_reglu__decode.s.ref").read().split("; Override launch")[0]

def f32(x):
    return "0x%08x" % struct.unpack("<I", struct.pack("<f", x))[0]

vLANE, vKV, vWQ, vWO, vWD = 1, 2, 3, 4, 5
vGU = 6
vPUB, vGAT, vROW, vLW, vM0, vM1, vXRES, vMAX = 8, 9, 10, 11, 12, 13, 14, 15
vQ, vP, vG, vS, vA, vACC, vT = 16, 20, 24, 28, 44, 60, 68
vLO, vLGU, vLQ, vHST, vCNT, vH = 88, 89, 90, 91, 92, 93
RING0 = 96
vWDF = 192
sW, sB, sH, sJF = 3, 4, 5, 6
sK, sV, sWQ, sWO, sWD, sWS, sX, sOUT, sDBG = 8, 12, 16, 20, 24, 28, 32, 36, 40
sISS, sWOFF, sTMP, sTMP2 = 48, 49, 50, 51
sODD, sBIT1, sEX = 52, 54, 56
sCNT, sL2E = 58, 59
sSCALE, sFFFF, sP2, sHST = 44, 45, 46, 47
sGOFF = 86
sROT = 94
sGUSTEP = 98
sOUTO = 100
LQ, LML, LO, LGU = 0, 2048, 4096, 6144
P2OFF, HOFF, STAMPOFF = 0x80000, 0x100000, 0x200000
SPIN = 200000

def srd(b): return f"s[{b}:{b+3}]"

def gen(N=6, I0=22, T=20, R=24, wpol="", kvpol="nt", stamps=False, sleep=4, wstart=0, wper=5):
    a = Asm(); I = a.I
    wp = (" " + wpol) if wpol else ""
    kp = (" " + kvpol) if kvpol else ""
    stamp_n = [0]
    def stamp():
        if stamps:
            k = stamp_n[0]; stamp_n[0] += 1
            r = 84 if k == 0 else 60 + 2 * (k - 1)
            I(f"s_memrealtime s[{r}:{r+1}]")
    def slot(g): return RING0 + 4 * (g % R)

    def wave_reduce(x, t, op):
        for r in (8, 4, 2, 1):
            I(f"{op}_dpp v{x}, v{x}, v{x} row_ror:{r} row_mask:0xf bank_mask:0xf")
        I(f"v_mov_b32 v{t}, v{x}")
        I(f"v_permlane16_swap_b32 v{x}, v{t}")
        I(f"{op} v{x}, v{x}, v{t}")
        I(f"v_mov_b32 v{t}, v{x}")
        I(f"v_permlane32_swap_b32 v{x}, v{t}")
        I(f"{op} v{x}, v{x}, v{t}")

    def ln(D, X0, X1, F):
        f = [F + i for i in range(8)]
        c = [F + 8 + i for i in range(4)]
        s, t = F + 12, F + 13
        for i in range(4):
            I(f"v_lshlrev_b32 v{f[2*i]}, 16, v{D+i}")
            I(f"v_and_b32 v{f[2*i+1]}, 0xffff0000, v{D+i}")
        for i in range(4):
            I(f"v_add_f32 v{c[i]}, v{f[2*i]}, v{f[2*i+1]}")
        I(f"v_add_f32 v{c[0]}, v{c[0]}, v{c[2]}")
        I(f"v_add_f32 v{c[1]}, v{c[1]}, v{c[3]}")
        I(f"v_add_f32 v{s}, v{c[0]}, v{c[1]}")
        wave_reduce(s, t, "v_add_f32")
        I(f"v_mul_f32 v{s}, {f32(1/512)}, v{s}")
        for i in range(4):
            I(f"v_sub_f32 v{D+i}, v{f[2*i]}, v{s}")
            I(f"v_sub_f32 v{c[i]}, v{f[2*i+1]}, v{s}")
        for i in range(4):
            I(f"v_mul_f32 v{D+i}, v{D+i}, v{D+i}")
        for i in range(4):
            I(f"v_fmac_f32 v{D+i}, v{c[i]}, v{c[i]}")
        I(f"v_add_f32 v{D}, v{D}, v{D+2}")
        I(f"v_add_f32 v{D+1}, v{D+1}, v{D+3}")
        I(f"v_add_f32 v{D}, v{D}, v{D+1}")
        wave_reduce(D, t, "v_add_f32")
        I(f"v_mul_f32 v{D}, {f32(1/512)}, v{D}")
        I(f"v_cvt_pk_bf16_f32 v{t}, v{s}, v{D}")
        I(f"v_lshlrev_b32 v{s}, 16, v{t}")
        I(f"v_and_b32 v{t}, 0xffff0000, v{t}")
        I(f"v_add_f32 v{t}, {f32(1e-5)}, v{t}")
        I(f"v_sub_f32 v{f[0]}, v{f[0]}, v{s}")
        I(f"v_cvt_pk_bf16_f32 v{t}, v{t}, v{t}")
        I(f"v_sub_f32 v{f[1]}, v{f[1]}, v{s}")
        I(f"v_and_b32 v{t}, 0xffff0000, v{t}")
        I(f"v_cvt_pk_bf16_f32 v{f[0]}, v{f[0]}, v{f[1]}")
        I(f"v_sqrt_f32 v{t}, v{t}")
        I(f"v_and_b32 v{f[1]}, 0xffff0000, v{f[0]}")
        I(f"v_lshlrev_b32 v{f[0]}, 16, v{f[0]}")
        I(f"v_cvt_pk_bf16_f32 v{t}, v{t}, v{t}")
        I(f"v_and_b32 v{t}, 0xffff0000, v{t}")
        I(f"v_rcp_f32 v{s}, v{t}")
        I(f"v_mul_f32 v{f[2]}, v{f[0]}, v{s}")
        I(f"v_mul_f32 v{f[3]}, v{f[1]}, v{s}")
        I(f"v_fma_f32 v{f[4]}, -v{f[2]}, v{t}, v{f[0]}")
        I(f"v_fma_f32 v{f[5]}, -v{f[3]}, v{t}, v{f[1]}")
        I(f"v_fmac_f32 v{f[2]}, v{f[4]}, v{s}")
        I(f"v_fmac_f32 v{f[3]}, v{f[5]}, v{s}")
        I(f"v_cvt_pk_bf16_f32 v{X0}, v{f[2]}, v{f[2]}")
        I(f"v_cvt_pk_bf16_f32 v{X1}, v{f[3]}, v{f[3]}")

    def afrag(dst, src, u):
        I(f"v_and_b32_dpp v{dst}, v{src}, v{vM0} quad_perm:[{u},{u},{u},{u}] row_mask:0xf bank_mask:0xf")
        I(f"v_and_b32_dpp v{dst+1}, v{src}, v{vM1} quad_perm:[{u},{u},{u},{u}] row_mask:0xf bank_mask:0xf")

    def mfma2(A, bfile, b, abid, first):
        lo, hi = vACC, vACC + 4
        c0 = "0" if first else f"v[{lo}:{lo+3}]"
        c1 = "0" if first else f"v[{hi}:{hi+3}]"
        I(f"v_mfma_f32_4x4x4_16b_bf16 v[{lo}:{lo+3}], v[{A}:{A+1}], {bfile}[{b}:{b+1}], {c0} cbsz:2 abid:{abid}")
        I(f"v_mfma_f32_4x4x4_16b_bf16 v[{hi}:{hi+3}], v[{A}:{A+1}], {bfile}[{b+2}:{b+3}], {c1} cbsz:2 abid:{abid}")

    def swap_reduce(dst):
        lo, hi = vACC, vACC + 4
        for i in range(4): I(f"v_permlane32_swap_b32 v{lo+i}, v{hi+i}")
        for i in range(4): I(f"v_add_f32 v{lo+i}, v{lo+i}, v{hi+i}")
        I(f"v_permlane16_swap_b32 v{lo}, v{lo+2}")
        I(f"v_permlane16_swap_b32 v{lo+1}, v{lo+3}")
        I(f"v_add_f32 v{dst}, v{lo}, v{lo+2}")
        I(f"v_add_f32 v{dst+1}, v{lo+1}, v{lo+3}")

    def gemv32(X0, X1, bfile, b0, waits=None):
        for r, X in ((0, X0), (1, X1)):
            pass
        for u in range(4):
            for r, X in ((0, X0), (1, X1)):
                afrag(vA + 4 * u + 2 * r, X, u)
        for f in range(32):
            aa, u, r = f >> 3, (f >> 1) & 3, f & 1
            if waits: a.wait_vm(waits[f])
            mfma2(vA + 4 * u + 2 * r, bfile, b0 + 4 * f, aa, f == 0)

    I(f"s_cmp_ge_u32 s2, 256")
    I("s_cbranch_scc1 L_end")
    stamp()
    I("s_load_dwordx16 s[60:75], s[0:1], 0")
    I("s_load_dwordx8 s[76:83], s[0:1], 64")
    I(f"v_lshrrev_b32 v{vT}, 6, v0")
    I(f"v_and_b32 v{vLANE}, 63, v0")
    I(f"v_readfirstlane_b32 s{sW}, v{vT}")
    I(f"s_lshr_b32 s{sB}, s2, 5")
    I(f"s_and_b32 s{sH}, s2, 31")
    I(f"s_min_u32 s{sJF}, s{sH}, 27")
    J16, SS = vT + 1, vT + 2
    I(f"v_and_b32 v{J16}, 15, v{vLANE}")
    I(f"v_lshrrev_b32 v{SS}, 4, v{vLANE}")
    I(f"v_lshlrev_b32 v{vROW}, 2, v{vLANE}")
    I(f"v_lshlrev_b32 v{vKV}, 4, v{vLANE}")
    I(f"s_lshl_b32 s{sTMP}, s{sW}, 12")
    I(f"v_add_u32 v{vKV}, s{sTMP}, v{vKV}")
    for i in range(4):
        I(f"s_add_u32 s{sROT+i}, s{sW}, {i}")
        I(f"s_and_b32 s{sROT+i}, s{sROT+i}, 3")
        I(f"s_lshl_b32 s{sROT+i}, s{sROT+i}, 8")
    I(f"v_lshlrev_b32 v{vT+3}, 4, v{J16}")
    I(f"s_lshl_b32 s{sTMP}, s{sW}, 20")
    I(f"s_lshl_b32 s{sTMP2}, s{sH}, 8")
    I(f"s_add_u32 s{sTMP}, s{sTMP}, s{sTMP2}")
    I(f"v_lshlrev_b32 v{vWQ}, 18, v{SS}")
    I(f"v_add3_u32 v{vWQ}, v{vWQ}, v{vT+3}, s{sTMP}")
    I("s_waitcnt lgkmcnt(0)")
    def mk(b, plo, offlo, size, offhi=None):
        if offlo is None:
            I(f"s_mov_b32 s{b}, s{plo}"); I(f"s_mov_b32 s{b+1}, s{plo+1}")
        else:
            I(f"s_add_u32 s{b}, s{plo}, {offlo}"); I(f"s_addc_u32 s{b+1}, s{plo+1}, 0")
        I(f"s_mov_b32 s{b+2}, {size}"); I(f"s_mov_b32 s{b+3}, 0x20000")
    I(f"s_lshl_b32 s{sTMP}, s{sB}, 10")
    mk(sX, 60, f"s{sTMP}", 1024)
    I(f"s_lshl_b32 s{sTMP}, s2, 20")
    mk(sK, 62, f"s{sTMP}", 1 << 20)
    xl = [I(f"buffer_load_dword v{vT+8+i}, v{vROW}, {srd(sX)}, s{sROT+i} offen") for i in range(4)]
    I(f"s_mov_b32 s{sISS}, 0")
    issued = [0]
    kvid = {}
    def issue_kv():
        g = issued[0]; issued[0] += 1
        s = sK if g < 256 else sV
        if g == 256: I(f"s_mov_b32 s{sISS}, 0")
        kvid[g] = I(f"buffer_load_dwordx4 v[{slot(g)}:{slot(g)+3}], v{vKV}, {srd(s)}, s{sISS} offen offset:{(g&3)*1024}{kp}")
        if (g & 3) == 3 and g != 255 and g != 511: I(f"s_add_u32 s{sISS}, s{sISS}, 16384")
    for _ in range(6): issue_kv()
    mk(sWQ, 66, None, 4 << 20)
    wqid = []
    for f in range(32):
        I(f"s_mov_b32 s{sWOFF}, {f*8192}")
        wqid.append(I(f"buffer_load_dwordx4 a[{4*f}:{4*f+3}], v{vWQ}, {srd(sWQ)}, s{sWOFF} offen{wp}"))
        if f % 2 == 1 and issued[0] < I0: issue_kv()
    while issued[0] < I0: issue_kv()
    mk(sV, 64, f"s{sTMP}", 1 << 20)
    I(f"s_lshl_b32 s{sTMP}, s{sH}, 17")
    mk(sWO, 68, f"s{sTMP}", 1 << 17)
    I(f"s_lshl_b32 s{sTMP}, s{sJF}, 16")
    mk(sWD, 76, f"s{sTMP}", 1 << 16)
    mk(sOUT, 78, None, 8192)
    mk(sDBG, 80, None, 256)
    mk(sWS, 82, None, 0x300000 if stamps else HOFF + 8192)
    I(f"s_lshl_b32 s{sTMP}, s{sW}, 8")
    I(f"v_lshlrev_b32 v{vWO}, 15, v{SS}")
    I(f"v_add3_u32 v{vWO}, v{vWO}, v{vT+3}, s{sTMP}")
    I(f"v_lshlrev_b32 v{vWD}, 14, v{SS}")
    I(f"v_add3_u32 v{vWD}, v{vWD}, v{vT+3}, s{sTMP}")
    I(f"v_cmp_gt_u32 vcc, 8, v{J16}")
    I(f"v_mov_b32 v{vT+4}, s74")
    I(f"v_mov_b32 v{vT+5}, s72")
    I(f"v_cndmask_b32 v{vGU}, v{vT+4}, v{vT+5}, vcc")
    I(f"v_mov_b32 v{vT+4}, s75")
    I(f"v_mov_b32 v{vT+5}, s73")
    I(f"v_cndmask_b32 v{vGU+1}, v{vT+4}, v{vT+5}, vcc")
    I(f"s_mul_i32 s{sTMP}, s{sW}, {128*3584}")
    I(f"s_lshl_b32 s{sTMP2}, s{sJF}, 7")
    I(f"s_add_u32 s{sTMP}, s{sTMP}, s{sTMP2}")
    I(f"v_mul_u32_u24 v{vT+4}, {32*3584}, v{SS}")
    I(f"v_and_b32 v{vT+5}, 0x70, v{vT+3}")
    I(f"v_add3_u32 v{vT+4}, v{vT+4}, v{vT+5}, s{sTMP}")
    I(f"v_mov_b32 v{vT+5}, 0")
    I(f"v_lshl_add_u64 v[{vGU}:{vGU+1}], v[{vT+4}:{vT+5}], 0, v[{vGU}:{vGU+1}]")
    I(f"s_mov_b32 s{sGUSTEP}, 7168")
    I(f"s_mov_b32 s{sGUSTEP+1}, 0")
    I(f"s_lshl_b32 s{sTMP}, s{sW}, 9")
    I(f"v_lshlrev_b32 v{vLW}, 5, v{J16}")
    I(f"v_lshlrev_b32 v{vT+4}, 3, v{SS}")
    I(f"v_add3_u32 v{vLW}, v{vLW}, v{vT+4}, s{sTMP}")
    I(f"s_lshl_b32 s{sTMP}, s2, 11")
    I(f"v_add_u32 v{vPUB}, s{sTMP}, v{vLW}")
    I(f"s_lshl_b32 s{sTMP}, s{sB}, 16")
    I(f"s_lshl_b32 s{sTMP2}, s{sH}, 6")
    I(f"s_add_u32 s{sTMP}, s{sTMP}, s{sTMP2}")
    I(f"v_lshlrev_b32 v{vGAT}, 11, v{SS}")
    I(f"v_lshlrev_b32 v{vT+4}, 2, v{J16}")
    I(f"v_add3_u32 v{vGAT}, v{vGAT}, v{vT+4}, s{sTMP}")
    for i in range(8): I(f"s_mov_b32 s{sGOFF+i}, {i*8192}")
    I(f"v_lshlrev_b32 v{vLO}, 3, v{vLANE}")
    I(f"v_add_u32 v{vLO}, {LO}, v{vLO}")
    I(f"v_add_u32 v{vLGU}, {LGU}, v{vROW}")
    I(f"v_lshlrev_b32 v{vLQ}, 5, v{J16}")
    I(f"v_lshlrev_b32 v{vHST}, 1, v{vLANE}")
    I(f"v_and_b32 v{vT+4}, 3, v{vLANE}")
    I(f"v_mov_b32 v{vT+5}, 0xffff")
    I(f"v_mov_b32 v{vT+6}, 0xffff0000")
    I(f"v_mov_b32 v{vM0}, 0")
    I(f"v_mov_b32 v{vM1}, 0")
    for val, dst, src in ((0, vM0, vT+5), (1, vM0, vT+6), (2, vM1, vT+5), (3, vM1, vT+6)):
        I(f"v_cmp_eq_u32 vcc, {val}, v{vT+4}")
        I(f"v_cndmask_b32 v{dst}, v{dst}, v{src}, vcc")
    I(f"s_mov_b32 s{sODD}, 0xaaaaaaaa"); I(f"s_mov_b32 s{sODD+1}, 0xaaaaaaaa")
    I(f"s_mov_b32 s{sBIT1}, 0xcccccccc"); I(f"s_mov_b32 s{sBIT1+1}, 0xcccccccc")
    I(f"s_mov_b32 s{sL2E}, {f32(1.4426950408889634)}")
    I(f"s_mov_b32 s{sSCALE}, {f32(128 ** -0.5)}")
    I(f"s_mov_b32 s{sFFFF}, 0xffff")
    I(f"s_mov_b32 s{sP2}, {P2OFF}")
    I(f"s_lshl_b32 s{sTMP}, s{sB}, 10")
    I(f"s_lshl_b32 s{sTMP2}, s{sH}, 5")
    I(f"s_add_u32 s{sOUTO}, s{sTMP}, s{sTMP2}")
    I(f"s_add_u32 s{sHST}, s{sOUTO}, {HOFF}")
    I(f"s_add_u32 s{sTMP}, s{sTMP}, {HOFF}")
    for i in range(4): I(f"s_add_u32 s{sROT+i}, s{sROT+i}, s{sTMP}")
    I(f"v_mov_b32 v{vMAX}, 0xff800000")
    a.wait_vm(xl[3])
    X0, X1 = vT, vT + 1
    ln(vT + 8, vP, vP + 1, vS)
    gemv32(vP, vP + 1, "a", 0, wqid)
    swap_reduce(vT)
    I(f"ds_write_b64 v{vLW}, v[{vT}:{vT+1}] offset:{LQ}")
    I("s_waitcnt lgkmcnt(0)")
    I("s_barrier")
    for w in range(4):
        I(f"ds_read_b128 v[{vS+8*(w&1)}:{vS+8*(w&1)+3}], v{vLQ} offset:{LQ+w*512}" if w < 2 else f"ds_read_b128 v[{vA+8*(w&1)}:{vA+8*(w&1)+3}], v{vLQ} offset:{LQ+w*512}")
        I(f"ds_read_b128 v[{vS+8*(w&1)+4}:{vS+8*(w&1)+7}], v{vLQ} offset:{LQ+w*512+16}" if w < 2 else f"ds_read_b128 v[{vA+8*(w&1)+4}:{vA+8*(w&1)+7}], v{vLQ} offset:{LQ+w*512+16}")
    I("s_waitcnt lgkmcnt(0)")
    for i in range(8): I(f"v_add_f32 v{vS+i}, v{vS+i}, v{vS+8+i}")
    for i in range(8): I(f"v_add_f32 v{vA+i}, v{vA+i}, v{vA+8+i}")
    for i in range(8): I(f"v_add_f32 v{vS+i}, v{vS+i}, v{vA+i}")
    for i in range(4): I(f"v_cvt_pk_bf16_f32 v{vQ+i}, v{vS+2*i}, v{vS+2*i+1}")
    stamp()

    side = []
    def mkside():
        def clr():
            I(f"v_mov_b32 v{vT}, -1"); I(f"v_mov_b32 v{vT+1}, -1")
            I(f"buffer_store_dwordx2 v[{vT}:{vT+1}], v{vPUB}, {srd(sWS)}, 0 offen sc1")
            I(f"buffer_store_dwordx2 v[{vT}:{vT+1}], v{vPUB}, {srd(sWS)}, s{sP2} offen sc1")
            I(f"s_mov_b64 exec, 0x5555")
            I(f"buffer_store_dword v{vT}, v{vHST}, {srd(sWS)}, s{sHST} offen sc1")
            I(f"s_mov_b64 exec, -1")
            I(f"s_lshl_b32 s{sTMP}, s{sH}, 5")
            I(f"v_and_b32 v{vT+2}, 30, v{vHST}")
            I(f"buffer_load_ushort v{vXRES}, v{vT+2}, {srd(sX)}, s{sTMP} offen")
        side.append(clr)
        def wo(f):
            def g():
                I(f"s_mov_b32 s{sWOFF}, {(f>>2)*4096}")
                I(f"buffer_load_dwordx4 a[{128+4*f}:{128+4*f+3}], v{vWO}, {srd(sWO)}, s{sWOFF} offen offset:{(f&3)*1024}{wp}")
            return g
        def gu(f):
            def g():
                I(f"global_load_dwordx4 a[{4*f}:{4*f+3}], v[{vGU}:{vGU+1}], off offset:{(f&1)*3584}{wp}")
                if f & 1: I(f"v_lshl_add_u64 v[{vGU}:{vGU+1}], v[{vGU}:{vGU+1}], 0, s[{sGUSTEP}:{sGUSTEP+1}]")
            return g
        def wd(f):
            def g():
                I(f"s_mov_b32 s{sWOFF}, {(f>>2)*4096}")
                I(f"buffer_load_dwordx4 v[{vWDF+4*f}:{vWDF+4*f+3}], v{vWD}, {srd(sWD)}, s{sWOFF} offen offset:{(f&3)*1024}{wp}")
            return g
        for f in range(32): side.append(wo(f))
        for f in range(32): side.append(gu(f))
        for f in range(16): side.append(wd(f))
    mkside()
    side_steps = {}
    period = 16.0 / wper
    pos = wstart
    for k in range(len(side)):
        side_steps.setdefault(int(pos), []).append(side[k]); pos += period
    assert max(side_steps) < 500, max(side_steps)

    for i in range(256):
        B, t = i >> 4, i & 15
        a.wait_vm(kvid[i])
        tgt = min(i + 1 + N, i + R - 3, 512)
        while issued[0] < tgt: issue_kv()
        for fn in side_steps.get(i, []): fn()
        if (i & 3) == 3:
            aa = t >> 2
            for e in range(4):
                for c in range(4):
                    src = slot(i - 3 + c) + e
                    I(f"v_dot2_f32_bf16 v{vP+c}, v{src}, v{vQ+e}, " + ("0" if e == 0 else f"v{vP+c}"))
            if i == 255:
                while issued[0] < 256 + T: issue_kv()
            I(f"v_add_f32_dpp v{vP}, v{vP}, v{vP} row_ror:8 row_mask:0xf bank_mask:0x3")
            I(f"v_add_f32_dpp v{vP+1}, v{vP+1}, v{vP+1} row_ror:8 row_mask:0xf bank_mask:0x3")
            I(f"v_add_f32_dpp v{vP}, v{vP+2}, v{vP+2} row_ror:8 row_mask:0xf bank_mask:0xc")
            I(f"v_add_f32_dpp v{vP+1}, v{vP+3}, v{vP+3} row_ror:8 row_mask:0xf bank_mask:0xc")
            I(f"v_add_f32_dpp v{vG+aa}, v{vP}, v{vP} row_half_mirror row_mask:0xf bank_mask:0x5")
            I(f"v_add_f32_dpp v{vG+aa}, v{vP+1}, v{vP+1} row_half_mirror row_mask:0xf bank_mask:0xa")
            if t == 15:
                for q in range(4):
                    I(f"v_add_f32_dpp v{vG+q}, v{vG+q}, v{vG+q} quad_perm:[1,0,3,2] row_mask:0xf bank_mask:0xf")
                I(f"v_cndmask_b32 v{vG}, v{vG}, v{vG+1}, s[{sODD}:{sODD+1}]")
                I(f"v_cndmask_b32 v{vG+2}, v{vG+2}, v{vG+3}, s[{sODD}:{sODD+1}]")
                I(f"v_add_f32_dpp v{vG}, v{vG}, v{vG} quad_perm:[2,3,0,1] row_mask:0xf bank_mask:0xf")
                I(f"v_add_f32_dpp v{vG+2}, v{vG+2}, v{vG+2} quad_perm:[2,3,0,1] row_mask:0xf bank_mask:0xf")
                I(f"v_cndmask_b32 v{vG}, v{vG}, v{vG+2}, s[{sBIT1}:{sBIT1+1}]")
                I(f"v_cvt_pk_bf16_f32 v{vG}, v{vG}, v{vG}")
                I(f"v_and_b32 v{vG}, 0xffff0000, v{vG}")
                I(f"v_mul_f32 v{vG}, s{sSCALE}, v{vG}")
                I(f"v_cvt_pk_bf16_f32 v{vG}, v{vG}, v{vG}")
                I(f"v_and_b32 v{vS+B}, 0xffff0000, v{vG}")
                I(f"v_max_f32 v{vMAX}, v{vMAX}, v{vS+B}")
    stamp()
    wave_reduce(vMAX, vT, "v_max_f32")
    I(f"v_mul_f32 v{vT}, s{sL2E}, v{vMAX}")
    for B in range(16): I(f"v_fma_f32 v{vS+B}, v{vS+B}, s{sL2E}, -v{vT}")
    for B in range(16): I(f"v_exp_f32 v{vS+B}, v{vS+B}")
    for k in range(8): I(f"v_add_f32 v{vA+k}, v{vS+2*k}, v{vS+2*k+1}")
    for k in range(4): I(f"v_add_f32 v{vA+k}, v{vA+k}, v{vA+4+k}")
    for k in range(2): I(f"v_add_f32 v{vA+k}, v{vA+k}, v{vA+2+k}")
    I(f"v_add_f32 v{vT+3}, v{vA}, v{vA+1}")
    wave_reduce(vT + 3, vT + 1, "v_add_f32")
    I(f"v_mov_b32 v{vT+2}, v{vT}")
    I(f"s_lshl_b32 s{sTMP}, s{sW}, 3")
    I(f"v_mov_b32 v{vT+1}, s{sTMP}")
    I("s_mov_b64 exec, 1")
    I(f"ds_write_b64 v{vT+1}, v[{vT+2}:{vT+3}] offset:{LML}")
    I("s_mov_b64 exec, -1")
    I(f"v_mov_b32 v{vT+1}, 0")
    I("s_waitcnt lgkmcnt(0)")
    I("s_barrier")
    I(f"ds_read_b128 v[{vA}:{vA+3}], v{vT+1} offset:{LML}")
    I(f"ds_read_b128 v[{vA+4}:{vA+7}], v{vT+1} offset:{LML+16}")
    I(f"s_lshl_b32 s{sTMP}, s{sB}, 5")
    I(f"v_mov_b32 v{vT+4}, 1")
    I("s_mov_b64 exec, 1")
    I(f"buffer_atomic_add v{vT+4}, v{vT+1}, {srd(sDBG)}, s{sTMP} offen sc1")
    I("s_mov_b64 exec, -1")
    I("s_waitcnt lgkmcnt(0)")
    I(f"v_max3_f32 v{vT+5}, v{vA}, v{vA+2}, v{vA+4}")
    I(f"v_max_f32 v{vT+5}, v{vT+5}, v{vA+6}")
    for k in range(4): I(f"v_sub_f32 v{vA+2*k}, v{vA+2*k}, v{vT+5}")
    I(f"v_sub_f32 v{vT}, v{vT}, v{vT+5}")
    for k in range(4): I(f"v_exp_f32 v{vA+2*k}, v{vA+2*k}")
    I(f"v_exp_f32 v{vT}, v{vT}")
    I(f"v_mul_f32 v{vA}, v{vA}, v{vA+1}")
    I(f"v_mul_f32 v{vA+4}, v{vA+4}, v{vA+5}")
    I(f"v_fmac_f32 v{vA}, v{vA+2}, v{vA+3}")
    I(f"v_fmac_f32 v{vA+4}, v{vA+6}, v{vA+7}")
    I(f"v_add_f32 v{vA}, v{vA}, v{vA+4}")
    I(f"v_rcp_f32 v{vA}, v{vA}")
    I(f"v_mul_f32 v{vT}, v{vT}, v{vA}")
    for B in range(16): I(f"v_mul_f32 v{vS+B}, v{vS+B}, v{vT}")
    for B in range(16): I(f"v_cvt_pk_bf16_f32 v{vS+B}, v{vS+B}, v{vS+B}")
    stamp()
    cnt_id = None
    for i in range(256, 512):
        B, t = (i - 256) >> 4, i & 15
        u, c = t >> 2, t & 3
        A = vA + 2 * ((i >> 2) & 1)
        if i == 256: afrag(A, vS, 0)
        a.wait_vm(kvid[i])
        tgt = min(i + 1 + N, i + R, 512)
        while issued[0] < tgt: issue_kv()
        for fn in side_steps.get(i, []): fn()
        if i == 496:
            I(f"s_lshl_b32 s{sTMP}, s{sB}, 5")
            I(f"v_mov_b32 v{vCNT}, 0")
            cnt_id = I(f"buffer_load_dword v{vCNT}, v{vCNT}, {srd(sDBG)}, s{sTMP} offen sc1")
        mfma2(A, "v", slot(i), c, i == 256)
        if c == 0 and i + 4 < 512:
            j = i + 4
            afrag(vA + 2 * ((j >> 2) & 1), vS + ((j - 256) >> 4), (j & 15) >> 2)
    stamp()
    swap_reduce(vT)
    I(f"ds_write_b64 v{vLW}, v[{vT}:{vT+1}] offset:{LO}")
    I("s_waitcnt lgkmcnt(0)")
    I("s_barrier")
    I(f"ds_read2_b64 v[{vT}:{vT+3}], v{vLO} offset0:0 offset1:64")
    I(f"ds_read2_b64 v[{vT+4}:{vT+7}], v{vLO} offset0:128 offset1:192")
    I("s_waitcnt lgkmcnt(0)")
    I(f"v_add_f32 v{vT}, v{vT}, v{vT+2}")
    I(f"v_add_f32 v{vT+1}, v{vT+1}, v{vT+3}")
    I(f"v_add_f32 v{vT+4}, v{vT+4}, v{vT+6}")
    I(f"v_add_f32 v{vT+5}, v{vT+5}, v{vT+7}")
    I(f"v_add_f32 v{vT}, v{vT}, v{vT+4}")
    I(f"v_add_f32 v{vT+1}, v{vT+1}, v{vT+5}")
    I(f"v_cvt_pk_bf16_f32 v{vP}, v{vT}, v{vT}")
    I(f"v_cvt_pk_bf16_f32 v{vP+1}, v{vT+1}, v{vT+1}")
    a.wait_vm_all()
    gemv32(vP, vP + 1, "a", 128)
    swap_reduce(vT)
    I(f"v_min_u32 v{vT}, 0xfffffffe, v{vT}")
    I(f"v_min_u32 v{vT+1}, 0xfffffffe, v{vT+1}")
    I(f"buffer_store_dwordx2 v[{vT}:{vT+1}], v{vPUB}, {srd(sWS)}, 0 offen sc1")
    stamp()
    I(f"s_cmp_lg_u32 s{sW}, 0")
    I("s_cbranch_scc1 L_notw0")
    I(f"s_mov_b32 s{sCNT}, {SPIN}")
    I(f"s_lshl_b32 s{sTMP}, s{sB}, 5")
    I(f"v_mov_b32 v{vT+2}, 0")
    I("L_cnt:")
    I(f"v_readfirstlane_b32 s{sTMP2}, v{vCNT}")
    I(f"s_cmp_eq_u32 s{sTMP2}, 128")
    I("s_cbranch_scc1 L_cnt_ok")
    I(f"s_sleep 8")
    I(f"buffer_load_dword v{vCNT}, v{vT+2}, {srd(sDBG)}, s{sTMP} offen sc1")
    I("s_waitcnt vmcnt(0)")
    I(f"s_sub_u32 s{sCNT}, s{sCNT}, 1")
    I(f"s_cmp_lg_u32 s{sCNT}, 0")
    I("s_cbranch_scc1 L_cnt")
    I("L_cnt_ok:")

    def poll(label, loads, regs):
        I(f"s_mov_b32 s{sCNT}, {SPIN}")
        I(f"{label}:")
        for l in loads: I(l)
        I("s_waitcnt vmcnt(0)")
        m = vT + 12
        rs = list(regs)
        I(f"v_max3_u32 v{m}, v{rs[0]}, v{rs[1]}, v{rs[2]}")
        rs = rs[3:]
        while len(rs) >= 2:
            I(f"v_max3_u32 v{m}, v{m}, v{rs[0]}, v{rs[1]}"); rs = rs[2:]
        if rs: I(f"v_max_u32 v{m}, v{m}, v{rs[0]}")
        I(f"v_cmp_eq_u32 vcc, -1, v{m}")
        I("s_nop 0")
        I(f"s_cbranch_vccz {label}_ok")
        if sleep: I(f"s_sleep {sleep}")
        I(f"s_sub_u32 s{sCNT}, s{sCNT}, 1")
        I(f"s_cmp_lg_u32 s{sCNT}, 0")
        I(f"s_cbranch_scc1 {label}")
        I(f"{label}_ok:")

    def colsum(n):
        g = [vT + i for i in range(n)]
        while len(g) > 1:
            ng = []
            for k in range(0, len(g) - 1, 2):
                I(f"v_add_f32 v{g[k]}, v{g[k]}, v{g[k+1]}"); ng.append(g[k])
            if len(g) & 1: ng.append(g[-1])
            g = ng
        x, t = vT, vT + 1
        I(f"v_mov_b32 v{t}, v{x}")
        I(f"v_permlane16_swap_b32 v{x}, v{t}")
        I(f"v_add_f32 v{x}, v{x}, v{t}")
        I(f"v_mov_b32 v{t}, v{x}")
        I(f"v_permlane32_swap_b32 v{x}, v{t}")
        I(f"v_add_f32 v{x}, v{x}, v{t}")
        I(f"v_cvt_pk_bf16_f32 v{x}, v{x}, v{x}")
        I(f"v_and_b32 v{x}, 0xffff0000, v{x}")
    def packpair(x, d):
        I(f"v_mov_b32_dpp v{d}, v{x} quad_perm:[1,0,3,2] row_mask:0xf bank_mask:0xf")
        I(f"v_bfi_b32 v{d}, s{sFFFF}, v{x}, v{d}")

    poll("L_p1", [f"buffer_load_dword v{vT+i}, v{vGAT}, {srd(sWS)}, s{sGOFF+i} offen sc1" for i in range(8)], range(vT, vT + 8))
    colsum(8)
    I(f"v_lshlrev_b32 v{vXRES}, 16, v{vXRES}")
    I(f"v_add_f32 v{vT}, v{vT}, v{vXRES}")
    I(f"v_cvt_pk_bf16_f32 v{vT}, v{vT}, v{vT}")
    packpair(vT, vT + 1)
    I(f"v_and_b32 v{vH}, 0xffff0000, v{vT}")
    I(f"v_min_u32 v{vT+1}, 0xfffffffe, v{vT+1}")
    I("s_mov_b64 exec, 0x5555")
    I(f"buffer_store_dword v{vT+1}, v{vHST}, {srd(sWS)}, s{sHST} offen sc1")
    I("s_mov_b64 exec, -1")
    stamp()
    I(f"s_cmp_ge_u32 s{sH}, 28")
    I("s_cbranch_scc1 L_final")
    I("s_branch L_ffn")
    I("L_notw0:")
    I(f"s_cmp_ge_u32 s{sH}, 28")
    I("s_cbranch_scc1 L_end")
    I("L_ffn:")
    I("s_barrier")
    poll("L_h", [f"buffer_load_dword v{vT+8+i}, v{vROW}, {srd(sWS)}, s{sROT+i} offen sc1" for i in range(4)], range(vT + 8, vT + 12))
    stamp()
    ln(vT + 8, vP, vP + 1, vS)
    gemv32(vP, vP + 1, "a", 0)
    swap_reduce(vT)
    I(f"ds_write_b64 v{vLW}, v[{vT}:{vT+1}] offset:{LGU}")
    I("s_waitcnt lgkmcnt(0)")
    I("s_barrier")
    for w in range(4):
        I(f"ds_read2st64_b32 v[{vT+2*w}:{vT+2*w+1}], v{vLGU} offset0:{2*w} offset1:{2*w+1}")
    I("s_waitcnt lgkmcnt(0)")
    I(f"v_add_f32 v{vT}, v{vT}, v{vT+2}")
    I(f"v_add_f32 v{vT+1}, v{vT+1}, v{vT+3}")
    I(f"v_add_f32 v{vT+4}, v{vT+4}, v{vT+6}")
    I(f"v_add_f32 v{vT+5}, v{vT+5}, v{vT+7}")
    I(f"v_add_f32 v{vT}, v{vT}, v{vT+4}")
    I(f"v_add_f32 v{vT+1}, v{vT+1}, v{vT+5}")
    I(f"v_cvt_pk_bf16_f32 v{vT}, v{vT}, v{vT+1}")
    I(f"v_and_b32 v{vT+1}, 0xffff0000, v{vT}")
    I(f"v_lshlrev_b32 v{vT}, 16, v{vT}")
    I(f"v_max_f32 v{vT}, 0, v{vT}")
    I(f"v_mul_f32 v{vT}, v{vT}, v{vT+1}")
    I(f"v_cvt_pk_bf16_f32 v{vP}, v{vT}, v{vT}")
    for u in range(4): afrag(vA + 2 * u, vP, u)
    for f in range(16):
        mfma2(vA + 2 * (f & 3), "v", vWDF + 4 * f, f >> 2, f == 0)
    swap_reduce(vT)
    I(f"v_min_u32 v{vT}, 0xfffffffe, v{vT}")
    I(f"v_min_u32 v{vT+1}, 0xfffffffe, v{vT+1}")
    I(f"buffer_store_dwordx2 v[{vT}:{vT+1}], v{vPUB}, {srd(sWS)}, s{sP2} offen sc1")
    stamp()
    I(f"s_cmp_lg_u32 s{sW}, 0")
    I("s_cbranch_scc1 L_end")
    I("L_final:")
    I(f"v_add_u32 v{vGAT}, s{sP2}, v{vGAT}")
    poll("L_p2", [f"buffer_load_dword v{vT+i}, v{vGAT}, {srd(sWS)}, s{sGOFF+i} offen sc1" for i in range(7)], range(vT, vT + 7))
    colsum(7)
    I(f"v_add_f32 v{vT}, v{vT}, v{vH}")
    I(f"v_cvt_pk_bf16_f32 v{vT}, v{vT}, v{vT}")
    packpair(vT, vT + 1)
    I("s_mov_b64 exec, 0x5555")
    I(f"buffer_store_dword v{vT+1}, v{vHST}, {srd(sOUT)}, s{sOUTO} offen")
    I("s_mov_b64 exec, -1")
    if stamps:
        stamp()
        I("s_waitcnt lgkmcnt(0)")
        I(f"s_lshl_b32 s{sTMP}, s2, 6")
        I(f"s_add_u32 s{sTMP}, s{sTMP}, {STAMPOFF}")
        I(f"v_mov_b32 v{vT+2}, 0")
        I("s_mov_b64 exec, 1")
        for k in range(stamp_n[0]):
            r = 84 if k == 0 else 60 + 2 * (k - 1)
            I(f"v_mov_b32 v{vT+3}, s{r}")
            I(f"buffer_store_dword v{vT+3}, v{vT+2}, {srd(sWS)}, s{sTMP} offen offset:{4*k}")
        I("s_getreg_b32 s60, hwreg(HW_REG_XCC_ID)")
        I(f"v_mov_b32 v{vT+3}, s60")
        I(f"buffer_store_dword v{vT+3}, v{vT+2}, {srd(sWS)}, s{sTMP} offen offset:60")
    I("L_end:")
    I("s_endpgm")
    body = a.finish()
    out = HEADER + "; @launch grid=(256,1,1) block=(256,1,1) lds=8192\n"
    out += '.amdgcn_target "amdgcn-amd-amdhsa--gfx950"\n.text\n'
    out += f".globl {KNAME}\n.p2align 8\n.type {KNAME},@function\n{KNAME}:\n"
    out += body
    out += f'''.section .rodata,"a"
.p2align 6
.amdhsa_kernel {KNAME}
  .amdhsa_next_free_vgpr 512
  .amdhsa_next_free_sgpr 102
  .amdhsa_accum_offset 256
  .amdhsa_group_segment_fixed_size 0
  .amdhsa_kernarg_size 96
  .amdhsa_user_sgpr_count 2
  .amdhsa_user_sgpr_kernarg_segment_ptr 1
  .amdhsa_system_sgpr_workgroup_id_x 1
.end_amdhsa_kernel
'''
    return out

if __name__ == "__main__":
    import json
    cfg = json.loads(sys.argv[2]) if len(sys.argv) > 2 else {}
    open(sys.argv[1], "w").write(gen(**cfg))
```

```python
import re

def regs_of(tok):
    tok = tok.strip()
    neg = tok.startswith('-')
    if neg: tok = tok[1:]
    m = re.fullmatch(r'abs\((.*)\)', tok)
    if m: tok = m.group(1)
    m = re.fullmatch(r'\|(.*)\|', tok)
    if m: tok = m.group(1)
    m = re.fullmatch(r'([vas])(\d+)', tok)
    if m: return [(m.group(1), int(m.group(2)))]
    m = re.fullmatch(r'([vas])\[(\d+):(\d+)\]', tok)
    if m: return [(m.group(1), i) for i in range(int(m.group(2)), int(m.group(3)) + 1)]
    if tok == 'vcc': return [('s', 106), ('s', 107)]
    if tok == 'exec': return [('s', 126), ('s', 127)]
    if tok == 'm0': return [('s', 124)]
    if tok == 'exec_hi': return [('s', 127)]
    if tok == 'exec_lo': return [('s', 126)]
    return []

TRANS = ('v_exp_f32', 'v_log_f32', 'v_rcp_f32', 'v_rsq_f32', 'v_sqrt_f32', 'v_sin_f32', 'v_cos_f32')

class Ins:
    def __init__(self, text):
        self.text = text
        t = text.split(';')[0].strip()
        self.label = t.endswith(':')
        self.reads = []; self.writes = []
        self.kind = 'other'
        self.op = ''
        self.dpp = False
        self.srcC = []; self.srcAB = []
        self.passes = 0
        self.states = 1
        if self.label or not t or t.startswith('.'):
            self.kind = 'meta'; self.states = 0
            return
        parts = t.split(None, 1)
        op = parts[0]; self.op = op
        rest = parts[1] if len(parts) > 1 else ''
        ops = []; depth = 0; cur = ''
        for ch in rest:
            if ch == '[': depth += 1
            if ch == ']': depth -= 1
            if ch == ',' and depth == 0:
                ops.append(cur.strip()); cur = ''
            else: cur += ch
        if cur.strip(): ops.append(cur.strip())
        mods = ''
        if ops:
            sp = ops[-1].split(None, 1)
            ops[-1] = sp[0]
            mods = sp[1] if len(sp) > 1 else ''
        self.ops = ops; self.mods = mods
        R = lambda i: regs_of(ops[i]) if i < len(ops) else []
        if op == 's_nop':
            self.kind = 'salu'; self.states = int(ops[0], 0) + 1
        elif op.startswith('s_'):
            self.kind = 'salu'
            if op.startswith(('s_cmp', 's_cbranch', 's_branch', 's_waitcnt', 's_barrier', 's_sleep', 's_endpgm', 's_setprio')):
                for i in range(len(ops)): self.reads += R(i)
            else:
                self.writes = R(0)
                for i in range(1, len(ops)): self.reads += R(i)
                if 'saveexec' in op: self.writes += regs_of('exec')
        elif op.startswith('v_mfma'):
            self.kind = 'mfma'
            self.writes = R(0); self.srcAB = R(1) + R(2); self.srcC = R(3)
            self.reads = self.srcAB + self.srcC
            self.passes = 2 if '4x4x4' in op else (4 if '16x16' in op else 8)
        elif op.startswith('v_'):
            self.kind = 'valu'
            self.dpp = '_dpp' in op
            if op.startswith('v_cmp'):
                self.writes = R(0)
                if op.startswith('v_cmpx'): self.writes += regs_of('exec')
                for i in range(1, len(ops)): self.reads += R(i)
            elif op.startswith('v_permlane') :
                self.writes = R(0) + R(1); self.reads = R(0) + R(1)
            elif op.startswith(('v_add_co', 'v_sub_co', 'v_addc_co', 'v_subb_co')):
                self.writes = R(0) + R(1)
                for i in range(2, len(ops)): self.reads += R(i)
            else:
                self.writes = R(0)
                for i in range(1, len(ops)): self.reads += R(i)
                if op.startswith(('v_fmac', 'v_dot2c', 'v_writelane')): self.reads += R(0)
            self.isdot = op.startswith('v_dot')
            self.istrans = op.replace('_e32', '').replace('_e64', '') in TRANS
        elif op.startswith(('buffer_', 'global_')):
            self.kind = 'vmem'
            if 'load' in op:
                self.writes = R(0)
                for i in range(1, len(ops)): self.reads += R(i)
            elif 'atomic' in op or 'store' in op:
                for i in range(len(ops)): self.reads += R(i)
                di = 0 if op.startswith('buffer_') else 1
                self.sdata = R(di)
                if 'atomic' in op and 'sc0' in mods.split(): self.writes = R(di)
            else:
                pass
        elif op.startswith('ds_'):
            self.kind = 'ds'
            if 'read' in op or 'bpermute' in op or 'swizzle' in op:
                self.writes = R(0)
                for i in range(1, len(ops)): self.reads += R(i)
            else:
                for i in range(len(ops)): self.reads += R(i)
        else:
            raise ValueError("unknown instr: " + text)

def need(prod, cons):
    n = 0
    pw = set(prod.writes); cr = set(cons.reads); cw = set(cons.writes)
    vw = {r for r in pw if r[0] in 'va'}; sw = {r for r in pw if r[0] == 's'}
    if prod.kind == 'valu':
        if vw & cr:
            if cons.kind == 'valu':
                if cons.dpp: n = max(n, 2)
                if cons.op.startswith('v_permlane'): n = max(n, 2)
                if cons.op.startswith(('v_readlane', 'v_readfirstlane')): n = max(n, 1)
                if prod.istrans and not cons.istrans: n = max(n, 1)
                if prod.istrans and cons.istrans: n = max(n, 1)
            if cons.kind == 'mfma': n = max(n, 2)
        if prod.isdot and (vw & (cr | cw)):
            if cons.kind == 'valu' and cons.op == prod.op:
                ab = set(regs_of(cons.ops[1]) + regs_of(cons.ops[2]))
                if vw & ab: n = max(n, 3)
            else:
                n = max(n, 3)
        if sw & cr:
            ex = set(regs_of('exec'))
            if cons.kind == 'valu': n = max(n, 4 if cons.op.startswith(('v_readlane', 'v_writelane')) else 2)
            if cons.kind == 'vmem': n = max(n, 5)
            if cons.kind == 'salu': n = max(n, 1)
        if set(regs_of('exec')) & pw:
            if cons.kind == 'valu' and cons.dpp: n = max(n, 5)
            if cons.kind == 'valu' and cons.op.startswith(('v_permlane', 'v_readlane', 'v_readfirstlane', 'v_writelane')): n = max(n, 4)
            if cons.kind == 'mfma': n = max(n, 4)
    if prod.kind == 'mfma':
        idx = {2: 0, 4: 1, 8: 2}[prod.passes]
        if cons.kind == 'mfma':
            if vw & set(cons.srcC):
                if set(cons.srcC) == vw and cons.passes == prod.passes: n = max(n, [2, 0, 0][idx])
                else: n = max(n, [4, 6, 10][idx])
            if vw & set(cons.srcAB): n = max(n, [5, 8, 12][idx])
            if (vw & cw) and not (vw & set(cons.srcC)): n = max(n, [5, 8, 12][idx])
        elif cons.kind in ('valu', 'vmem', 'ds'):
            if vw & (cr | cw): n = max(n, [5, 8, 12][idx])
        if cons.kind == 'valu' and (set(prod.srcC) & cw): n = max(n, [1, 3, 7][idx])
    if prod.kind == 'vmem' and hasattr(prod, 'sdata') and len(prod.sdata) >= 3:
        if set(prod.sdata) & cw: n = max(n, 2)
    if prod.kind == 'salu' and ('s', 124) in pw and cons.kind == 'vmem' and 'lds' in cons.mods.split(): n = max(n, 1)
    return n

class Asm:
    def __init__(self):
        self.L = []
        self.vm = 0
        self.vm_done = 0
    def I(self, text):
        ins = Ins(text)
        self.L.append(ins)
        if ins.kind == 'vmem':
            self.vm += 1
            return self.vm - 1
        return None
    def X(self, text):
        self.L.append(Ins(text))
    def C(self, text):
        self.L.append(Ins('; ' + text) if False else _Comment(text))
    def wait_vm(self, idx):
        if idx < self.vm_done: return
        n = self.vm - 1 - idx
        assert n <= 63, n
        self.I(f"s_waitcnt vmcnt({n})")
        self.vm_done = idx + 1
    def wait_vm_all(self):
        self.I("s_waitcnt vmcnt(0)")
        self.vm_done = self.vm
    def finish(self):
        out = []
        hists = [[]]
        snaps = {}
        nn = 0
        def trim(h):
            return h[-24:]
        for ins in self.L:
            if ins.kind == 'meta':
                out.append(ins.text)
                t = ins.text.strip()
                if t.endswith(':') and t[:-1] in snaps:
                    hists = hists + snaps.pop(t[:-1])
                continue
            req = 0
            for hist in hists:
                dist = 0
                for p in reversed(hist):
                    r = need(p, ins)
                    if r > dist: req = max(req, r - dist)
                    dist += p.states
                    if dist >= 14: break
            new = []
            if req > 0:
                nop = Ins(f"s_nop {req-1}")
                new.append(nop); out.append("  " + nop.text); nn += 1
            new.append(ins); out.append("  " + ins.text)
            hists = [trim(h + new) for h in hists]
            uniq = []
            for h in hists:
                if not any(len(h) == len(u) and all(x is y for x, y in zip(h, u)) for u in uniq): uniq.append(h)
            hists = uniq
            if ins.op.startswith(('s_cbranch', 's_branch')):
                snaps.setdefault(ins.ops[0], []).extend([list(h) for h in hists])
                if ins.op == 's_branch': hists = [[]]
            if ins.op == 's_endpgm': hists = [[]]
        self.nops = nn
        return "\n".join(out) + "\n"

class _Comment:
    def __init__(self, text):
        self.text = "  ; " + text; self.kind = 'meta'; self.states = 0
```

```python
import sys
sys.path.insert(0, "gen")
from asmlib import Asm
import struct

KNAME = "sequential_preLN__mha_block_cached__glu_gated_reglu__decode_kernel"
HEADER = open("sequential_preLN__mha_block_cached__glu_gated_reglu__decode.s.ref").read().split("; Override launch")[0]

def f32(x):
    return "0x%08x" % struct.unpack("<I", struct.pack("<f", x))[0]

vLANE, vKV, vWQ, vWO, vWD = 1, 2, 3, 4, 5
vGU = 6
vPUB, vGAT, vROW, vLW, vM0, vM1, vXRES, vMAX = 8, 9, 10, 11, 12, 13, 14, 15
vQ, vP, vG, vS, vA, vACC, vT = 16, 20, 24, 28, 44, 60, 68
vLO, vLGU, vLQ, vHST, vHROW, vH = 84, 85, 86, 87, 88, 89
vPB = 92
RING0 = 96
vWDF = 192
sW, sB, sH, sJF = 3, 4, 5, 6
sK, sV, sWQ, sWO, sWD, sWS, sX, sOUT, sDBG = 8, 12, 16, 20, 24, 28, 32, 36, 40
sISS, sWOFF, sTMP, sTMP2 = 48, 49, 50, 51
sODD, sBIT1 = 52, 54
sCNT, sL2E = 58, 59
sSCALE, sFFFF, sP2, sHST = 44, 45, 46, 47
sGOFF = 86
sROT = 94
sGUSTEP = 98
sOUTO = 100
sTAG = 56
LQ, LML, LO, LGU = 0, 2048, 4096, 6144
P1OFF, P2OFF, HOFF, STAMPOFF = 0x10000, 0x110000, 0x210000, 0x300000
SPIN = 200000

def srd(b): return f"s[{b}:{b+3}]"

def gen(N=5, NV=None, R=24, wpol="nt", kvpol="nt", stamps=False, pstamps=False, sleep=4, wstart=40, wend=250, M=11, kfirst=1, ratio=(5, 6), qextra=3, cu=5, Tx=5, noside=False, vpol=None):
    a = Asm(); I = a.I
    wp = (" " + wpol) if wpol else ""
    kp = (" " + kvpol) if kvpol else ""
    vp = kp if vpol is None else ((" " + vpol) if vpol else "")
    stamp_n = [0]
    def stamp():
        if stamps:
            k = stamp_n[0]; stamp_n[0] += 1
            r = 84 if k == 0 else 60 + 2 * (k - 1)
            I(f"s_memrealtime s[{r}:{r+1}]")
    def pstamp(k):
        if pstamps:
            I(f"s_memrealtime s[90:91]")
            I("s_waitcnt lgkmcnt(0)")
            I(f"v_writelane_b32 v91, s90, {k}")
    free = [RING0 + 4 * k for k in range(R)]
    extra = [vWDF + 4 * k for k in range(16)]
    slot_of = {}
    def slot(g): return slot_of[g]
    def alloc(g):
        if free: r = free.pop(0)
        else:
            assert g < 64 and extra, f"out of slots at {g}"
            r = extra.pop(0)
        slot_of[g] = r
    def release(g):
        r = slot_of[g]
        if r < vWDF: free.append(r)

    def wave_reduce(x, t, op):
        for r in (8, 4, 2, 1):
            I(f"{op}_dpp v{x}, v{x}, v{x} row_ror:{r} row_mask:0xf bank_mask:0xf")
        I(f"v_mov_b32 v{t}, v{x}")
        I(f"v_permlane16_swap_b32 v{x}, v{t}")
        I(f"{op} v{x}, v{x}, v{t}")
        I(f"v_mov_b32 v{t}, v{x}")
        I(f"v_permlane32_swap_b32 v{x}, v{t}")
        I(f"{op} v{x}, v{x}, v{t}")

    def ln(Dl, X0, X1, F):
        f = [F + i for i in range(8)]
        c = [F + 8 + i for i in range(4)]
        s, t = F + 12, F + 13
        for i in range(4):
            I(f"v_lshlrev_b32 v{f[2*i]}, 16, v{Dl[i]}")
            I(f"v_and_b32 v{f[2*i+1]}, 0xffff0000, v{Dl[i]}")
        for i in range(4):
            I(f"v_add_f32 v{c[i]}, v{f[2*i]}, v{f[2*i+1]}")
        I(f"v_add_f32 v{c[0]}, v{c[0]}, v{c[2]}")
        I(f"v_add_f32 v{c[1]}, v{c[1]}, v{c[3]}")
        I(f"v_add_f32 v{s}, v{c[0]}, v{c[1]}")
        wave_reduce(s, t, "v_add_f32")
        I(f"v_mul_f32 v{s}, {f32(1/512)}, v{s}")
        for i in range(4):
            I(f"v_sub_f32 v{Dl[i]}, v{f[2*i]}, v{s}")
            I(f"v_sub_f32 v{c[i]}, v{f[2*i+1]}, v{s}")
        for i in range(4):
            I(f"v_mul_f32 v{Dl[i]}, v{Dl[i]}, v{Dl[i]}")
        for i in range(4):
            I(f"v_fmac_f32 v{Dl[i]}, v{c[i]}, v{c[i]}")
        I(f"v_add_f32 v{Dl[0]}, v{Dl[0]}, v{Dl[2]}")
        I(f"v_add_f32 v{Dl[1]}, v{Dl[1]}, v{Dl[3]}")
        I(f"v_add_f32 v{Dl[0]}, v{Dl[0]}, v{Dl[1]}")
        wave_reduce(Dl[0], t, "v_add_f32")
        I(f"v_mul_f32 v{Dl[0]}, {f32(1/512)}, v{Dl[0]}")
        I(f"v_cvt_pk_bf16_f32 v{t}, v{s}, v{Dl[0]}")
        I(f"v_lshlrev_b32 v{s}, 16, v{t}")
        I(f"v_and_b32 v{t}, 0xffff0000, v{t}")
        I(f"v_add_f32 v{t}, {f32(1e-5)}, v{t}")
        I(f"v_sub_f32 v{f[0]}, v{f[0]}, v{s}")
        I(f"v_cvt_pk_bf16_f32 v{t}, v{t}, v{t}")
        I(f"v_sub_f32 v{f[1]}, v{f[1]}, v{s}")
        I(f"v_and_b32 v{t}, 0xffff0000, v{t}")
        I(f"v_cvt_pk_bf16_f32 v{f[0]}, v{f[0]}, v{f[1]}")
        I(f"v_sqrt_f32 v{t}, v{t}")
        I(f"v_and_b32 v{f[1]}, 0xffff0000, v{f[0]}")
        I(f"v_lshlrev_b32 v{f[0]}, 16, v{f[0]}")
        I(f"v_cvt_pk_bf16_f32 v{t}, v{t}, v{t}")
        I(f"v_and_b32 v{t}, 0xffff0000, v{t}")
        I(f"v_rcp_f32 v{s}, v{t}")
        I(f"v_mul_f32 v{f[2]}, v{f[0]}, v{s}")
        I(f"v_mul_f32 v{f[3]}, v{f[1]}, v{s}")
        I(f"v_fma_f32 v{f[4]}, -v{f[2]}, v{t}, v{f[0]}")
        I(f"v_fma_f32 v{f[5]}, -v{f[3]}, v{t}, v{f[1]}")
        I(f"v_fmac_f32 v{f[2]}, v{f[4]}, v{s}")
        I(f"v_fmac_f32 v{f[3]}, v{f[5]}, v{s}")
        I(f"v_cvt_pk_bf16_f32 v{X0}, v{f[2]}, v{f[2]}")
        I(f"v_cvt_pk_bf16_f32 v{X1}, v{f[3]}, v{f[3]}")

    def afrag(dst, src, u):
        I(f"v_and_b32_dpp v{dst}, v{src}, v{vM0} quad_perm:[{u},{u},{u},{u}] row_mask:0xf bank_mask:0xf")
        I(f"v_and_b32_dpp v{dst+1}, v{src}, v{vM1} quad_perm:[{u},{u},{u},{u}] row_mask:0xf bank_mask:0xf")

    def mfma2(A, bfile, b, abid, first):
        lo, hi = vACC, vACC + 4
        c0 = "0" if first else f"v[{lo}:{lo+3}]"
        c1 = "0" if first else f"v[{hi}:{hi+3}]"
        I(f"v_mfma_f32_4x4x4_16b_bf16 v[{lo}:{lo+3}], v[{A}:{A+1}], {bfile}[{b}:{b+1}], {c0} cbsz:2 abid:{abid}")
        I(f"v_mfma_f32_4x4x4_16b_bf16 v[{hi}:{hi+3}], v[{A}:{A+1}], {bfile}[{b+2}:{b+3}], {c1} cbsz:2 abid:{abid}")

    def swap_reduce(dst):
        lo, hi = vACC, vACC + 4
        for i in range(4): I(f"v_permlane32_swap_b32 v{lo+i}, v{hi+i}")
        for i in range(4): I(f"v_add_f32 v{lo+i}, v{lo+i}, v{hi+i}")
        I(f"v_permlane16_swap_b32 v{lo}, v{lo+2}")
        I(f"v_permlane16_swap_b32 v{lo+1}, v{lo+3}")
        I(f"v_add_f32 v{dst}, v{lo}, v{lo+2}")
        I(f"v_add_f32 v{dst+1}, v{lo+1}, v{lo+3}")

    def gemv32(X0, X1, bfile, b0, waits=None):
        for r, X in ((0, X0), (1, X1)):
            pass
        for u in range(4):
            for r, X in ((0, X0), (1, X1)):
                afrag(vA + 4 * u + 2 * r, X, u)
        for f in range(32):
            aa, u, r = f >> 3, (f >> 1) & 3, f & 1
            if waits: a.wait_vm(waits[f])
            mfma2(vA + 4 * u + 2 * r, bfile, b0 + 4 * f, aa, f == 0)

    I(f"s_cmp_ge_u32 s2, 256")
    I("s_cbranch_scc1 L_end")
    stamp()
    I("s_load_dwordx16 s[60:75], s[0:1], 0")
    I("s_load_dwordx8 s[76:83], s[0:1], 64")
    I(f"v_lshrrev_b32 v{vT}, 6, v0")
    I(f"v_and_b32 v{vLANE}, 63, v0")
    I(f"v_readfirstlane_b32 s{sW}, v{vT}")
    I(f"s_lshr_b32 s{sB}, s2, 5")
    I(f"s_and_b32 s{sH}, s2, 31")
    I(f"s_min_u32 s{sJF}, s{sH}, 27")
    J16, SS = vT + 1, vT + 2
    I(f"v_and_b32 v{J16}, 15, v{vLANE}")
    I(f"v_lshrrev_b32 v{SS}, 4, v{vLANE}")
    I(f"v_lshlrev_b32 v{vROW}, 2, v{vLANE}")
    I(f"v_lshlrev_b32 v{vKV}, 4, v{vLANE}")
    I(f"s_lshl_b32 s{sTMP}, s{sW}, 12")
    I(f"v_add_u32 v{vKV}, s{sTMP}, v{vKV}")
    for i in range(4):
        I(f"s_add_u32 s{sROT+i}, s{sW}, {i}")
        I(f"s_and_b32 s{sROT+i}, s{sROT+i}, 3")
        I(f"s_lshl_b32 s{sROT+i}, s{sROT+i}, 8")
    I(f"v_lshlrev_b32 v{vT+3}, 4, v{J16}")
    I(f"s_lshl_b32 s{sTMP}, s{sW}, 20")
    I(f"s_lshl_b32 s{sTMP2}, s{sH}, 8")
    I(f"s_add_u32 s{sTMP}, s{sTMP}, s{sTMP2}")
    I(f"v_lshlrev_b32 v{vWQ}, 18, v{SS}")
    I(f"v_add3_u32 v{vWQ}, v{vWQ}, v{vT+3}, s{sTMP}")
    I("s_waitcnt lgkmcnt(0)")
    pstamp(0)
    def mk(b, plo, offlo, size, offhi=None):
        if offlo is None:
            I(f"s_mov_b32 s{b}, s{plo}"); I(f"s_mov_b32 s{b+1}, s{plo+1}")
        else:
            I(f"s_add_u32 s{b}, s{plo}, {offlo}"); I(f"s_addc_u32 s{b+1}, s{plo+1}, 0")
        I(f"s_mov_b32 s{b+2}, {size}"); I(f"s_mov_b32 s{b+3}, 0x20000")
    I(f"s_lshl_b32 s{sTMP}, s{sB}, 10")
    mk(sX, 60, f"s{sTMP}", 1024)
    I(f"s_lshl_b32 s{sTMP}, s2, 20")
    mk(sK, 62, f"s{sTMP}", 1 << 20)
    xl = [I(f"buffer_load_dword v{vT+8+i}, v{vROW}, {srd(sX)}, s{sROT+i} offen") for i in range(4)]
    I(f"s_mov_b32 s{sISS}, 0")
    issued = [0]
    kvid = {}
    def issue_kv():
        g = issued[0]; issued[0] += 1
        alloc(g)
        s = sK if g < 256 else sV
        if g == 256: I(f"s_mov_b32 s{sISS}, 0")
        kvid[g] = I(f"buffer_load_dwordx4 v[{slot(g)}:{slot(g)+3}], v{vKV}, {srd(s)}, s{sISS} offen offset:{(g&3)*1024}{kp if g < 256 else vp}")
        if (g & 3) == 3 and g != 255 and g != 511: I(f"s_add_u32 s{sISS}, s{sISS}, 16384")
    wqid = []
    def issue_wq():
        f = len(wqid)
        I(f"s_mov_b32 s{sWOFF}, {f*8192}")
        wqid.append(I(f"buffer_load_dwordx4 a[{4*f}:{4*f+3}], v{vWQ}, {srd(sWQ)}, s{sWOFF} offen{wp}"))
    mk(sWQ, 66, None, 4 << 20)
    seq = ['K'] * kfirst
    acc = 0
    nwq = 0
    while nwq < 32:
        seq.append('W'); nwq += 1
        acc += ratio[0]
        while acc >= ratio[1] and nwq < 32:
            seq.append('K'); acc -= ratio[1]
    seqid = []
    def issue_seq(n):
        if seq[n] == 'K': issue_kv()
        else: issue_wq()
        seqid.append(a.vm - 1)
    seqpos = 0
    while seqpos < min(M, len(seq)):
        issue_seq(seqpos); seqpos += 1
    I(f"s_lshl_b32 s{sTMP2}, s{sB}, 7")
    I(f"s_load_dwordx2 s[{sTAG}:{sTAG+1}], s[82:83], s{sTMP2}")
    mk(sV, 64, f"s{sTMP}", 1 << 20)
    I(f"s_lshl_b32 s{sTMP}, s{sH}, 17")
    mk(sWO, 68, f"s{sTMP}", 1 << 17)
    I(f"s_lshl_b32 s{sTMP}, s{sJF}, 16")
    mk(sWD, 76, f"s{sTMP}", 1 << 16)
    I(f"s_cmp_ge_u32 s{sH}, 28")
    I(f"s_cselect_b32 s{sWD+2}, 0, s{sWD+2}")
    mk(sOUT, 78, None, 8192)
    mk(sWS, 82, None, 0x400000 if stamps else HOFF + 0x8000)
    I(f"s_lshl_b32 s{sTMP}, s{sW}, 8")
    I(f"v_lshlrev_b32 v{vWO}, 15, v{SS}")
    I(f"v_add3_u32 v{vWO}, v{vWO}, v{vT+3}, s{sTMP}")
    I(f"v_lshlrev_b32 v{vWD}, 14, v{SS}")
    I(f"v_add3_u32 v{vWD}, v{vWD}, v{vT+3}, s{sTMP}")
    I(f"v_cmp_gt_u32 vcc, 8, v{J16}")
    I(f"v_mov_b32 v{vT+4}, s74")
    I(f"v_mov_b32 v{vT+5}, s72")
    I(f"v_cndmask_b32 v{vGU}, v{vT+4}, v{vT+5}, vcc")
    I(f"v_mov_b32 v{vT+4}, s75")
    I(f"v_mov_b32 v{vT+5}, s73")
    I(f"v_cndmask_b32 v{vGU+1}, v{vT+4}, v{vT+5}, vcc")
    I(f"s_mul_i32 s{sTMP}, s{sW}, {128*3584}")
    I(f"s_lshl_b32 s{sTMP2}, s{sJF}, 7")
    I(f"s_add_u32 s{sTMP}, s{sTMP}, s{sTMP2}")
    I(f"v_mul_u32_u24 v{vT+4}, {32*3584}, v{SS}")
    I(f"v_and_b32 v{vT+5}, 0x70, v{vT+3}")
    I(f"v_add3_u32 v{vT+4}, v{vT+4}, v{vT+5}, s{sTMP}")
    I(f"s_cmp_ge_u32 s{sH}, 28")
    I(f"s_cselect_b32 s{sTMP}, 0, -1")
    I(f"s_cselect_b32 s{sGUSTEP}, 0, 7168")
    I(f"v_and_b32 v{vT+4}, s{sTMP}, v{vT+4}")
    I(f"v_mov_b32 v{vT+5}, 0")
    I(f"v_lshl_add_u64 v[{vGU}:{vGU+1}], v[{vT+4}:{vT+5}], 0, v[{vGU}:{vGU+1}]")
    I(f"s_mov_b32 s{sGUSTEP+1}, 0")
    I(f"s_lshl_b32 s{sTMP}, s{sW}, 9")
    I(f"v_lshlrev_b32 v{vLW}, 5, v{J16}")
    I(f"v_lshlrev_b32 v{vT+4}, 3, v{SS}")
    I(f"v_add3_u32 v{vLW}, v{vLW}, v{vT+4}, s{sTMP}")
    I(f"s_lshl_b32 s{sTMP}, s2, 12")
    I(f"v_lshl_add_u32 v{vPUB}, v{vLW}, 1, s{sTMP}")
    I(f"s_lshl_b32 s{sTMP}, s{sB}, 17")
    I(f"s_lshl_b32 s{sTMP2}, s{sH}, 7")
    I(f"s_add_u32 s{sTMP}, s{sTMP}, s{sTMP2}")
    I(f"v_lshrrev_b32 v{vGAT}, 3, v{vLANE}")
    I(f"v_lshlrev_b32 v{vGAT}, 12, v{vGAT}")
    I(f"v_and_b32 v{vT+4}, 0x70, v{vT+3}")
    I(f"v_add3_u32 v{vGAT}, v{vGAT}, v{vT+4}, s{sTMP}")
    for i in range(4): I(f"s_mov_b32 s{sGOFF+i}, {P1OFF + i*32768}")
    I(f"v_lshlrev_b32 v{vHROW}, 4, v{vLANE}")
    I(f"v_lshlrev_b32 v{vLO}, 3, v{vLANE}")
    I(f"v_add_u32 v{vLO}, {LO}, v{vLO}")
    I(f"v_add_u32 v{vLGU}, {LGU}, v{vROW}")
    I(f"v_lshlrev_b32 v{vLQ}, 5, v{J16}")
    I(f"v_and_b32 v{vHST}, 28, v{vROW}")
    I(f"v_and_b32 v{vT+4}, 3, v{vLANE}")
    I(f"v_mov_b32 v{vT+5}, 0xffff")
    I(f"v_mov_b32 v{vT+6}, 0xffff0000")
    I(f"v_mov_b32 v{vM0}, 0")
    I(f"v_mov_b32 v{vM1}, 0")
    for val, dst, src in ((0, vM0, vT+5), (1, vM0, vT+6), (2, vM1, vT+5), (3, vM1, vT+6)):
        I(f"v_cmp_eq_u32 vcc, {val}, v{vT+4}")
        I(f"v_cndmask_b32 v{dst}, v{dst}, v{src}, vcc")
    I(f"s_mov_b32 s{sODD}, 0xaaaaaaaa"); I(f"s_mov_b32 s{sODD+1}, 0xaaaaaaaa")
    I(f"s_mov_b32 s{sBIT1}, 0xcccccccc"); I(f"s_mov_b32 s{sBIT1+1}, 0xcccccccc")
    I(f"s_mov_b32 s{sL2E}, {f32(1.4426950408889634)}")
    I(f"s_mov_b32 s{sSCALE}, {f32(128 ** -0.5)}")
    I(f"s_mov_b32 s{sFFFF}, 0xffff")
    I(f"s_mov_b32 s{sP2}, {P2OFF}")
    I(f"s_lshl_b32 s{sTMP}, s{sB}, 10")
    I(f"s_lshl_b32 s{sTMP2}, s{sH}, 5")
    I(f"s_add_u32 s{sOUTO}, s{sTMP}, s{sTMP2}")
    I(f"s_lshl_b32 s{sHST}, s{sOUTO}, 2")
    I(f"s_add_u32 s{sHST}, s{sHST}, {HOFF}")
    I(f"s_lshl_b32 s{sTMP}, s{sB}, 12")
    I(f"s_add_u32 s{sTMP}, s{sTMP}, {HOFF}")
    for i in range(4):
        I(f"s_lshl_b32 s{sROT+i}, s{sROT+i}, 2")
        I(f"s_add_u32 s{sROT+i}, s{sROT+i}, s{sTMP}")
    I(f"v_mov_b32 v{vMAX}, 0xff800000")
    I("s_waitcnt lgkmcnt(0)")
    I(f"s_mul_i32 s{sTAG}, s{sTAG}, 1664525")
    I(f"s_add_u32 s{sTAG}, s{sTAG}, 1013904223")
    I(f"s_mul_i32 s{sTAG+1}, s{sTAG+1}, 22695477")
    I(f"s_add_u32 s{sTAG+1}, s{sTAG+1}, 1")
    I(f"v_mov_b32 v{vPB+2}, s{sTAG}")
    I(f"v_mov_b32 v{vPB+3}, s{sTAG+1}")
    pstamp(2)
    a.wait_vm(xl[3])
    pstamp(3)
    X0, X1 = vT, vT + 1
    ln([vT + 8 + i for i in range(4)], vP, vP + 1, vS)
    pstamp(4)
    for u in range(4):
        for r in range(2):
            afrag(vA + 4 * u + 2 * r, vP + r, u)
    base = xl[3] + 1
    fdone = 0
    def do_wq_upto(idx):
        nonlocal fdone
        while fdone < len(wqid) and wqid[fdone] <= idx:
            f = fdone; fdone += 1
            aa, u, r = f >> 3, (f >> 1) & 3, f & 1
            mfma2(vA + 4 * u + 2 * r, "a", 4 * f, aa, f == 0)
    while seqpos < len(seq):
        idx = seqid[seqpos - M]
        a.wait_vm(idx)
        issue_seq(seqpos); seqpos += 1
        do_wq_upto(idx)
    kleft = qextra
    while fdone < 32:
        idx = wqid[fdone]
        a.wait_vm(idx)
        while issued[0] - sum(1 for g in kvid if kvid[g] <= idx) < N: issue_kv()
        do_wq_upto(idx)
    pstamp(8)
    swap_reduce(vT)
    I(f"ds_write_b64 v{vLW}, v[{vT}:{vT+1}] offset:{LQ}")
    if qextra > 0: issue_kv()
    I("s_waitcnt lgkmcnt(0)")
    I("s_barrier")
    if qextra > 1: issue_kv()
    pstamp(9)
    for w in range(4):
        I(f"ds_read_b128 v[{vS+8*(w&1)}:{vS+8*(w&1)+3}], v{vLQ} offset:{LQ+w*512}" if w < 2 else f"ds_read_b128 v[{vA+8*(w&1)}:{vA+8*(w&1)+3}], v{vLQ} offset:{LQ+w*512}")
        I(f"ds_read_b128 v[{vS+8*(w&1)+4}:{vS+8*(w&1)+7}], v{vLQ} offset:{LQ+w*512+16}" if w < 2 else f"ds_read_b128 v[{vA+8*(w&1)+4}:{vA+8*(w&1)+7}], v{vLQ} offset:{LQ+w*512+16}")
    I("s_waitcnt lgkmcnt(0)")
    for i in range(8): I(f"v_add_f32 v{vS+i}, v{vS+i}, v{vS+8+i}")
    for i in range(8): I(f"v_add_f32 v{vA+i}, v{vA+i}, v{vA+8+i}")
    for i in range(8): I(f"v_add_f32 v{vS+i}, v{vS+i}, v{vA+i}")
    if qextra > 2: issue_kv()
    for i in range(4): I(f"v_cvt_pk_bf16_f32 v{vQ+i}, v{vS+2*i}, v{vS+2*i+1}")
    stamp()

    side = []
    def mkside():
        def clr():
            I(f"s_lshl_b32 s{sTMP}, s{sH}, 5")
            I(f"buffer_load_dword v{vXRES}, v{vHST}, {srd(sX)}, s{sTMP} offen")
        side.append(clr)
        def wo(f):
            def g():
                I(f"s_mov_b32 s{sWOFF}, {(f>>2)*4096}")
                I(f"buffer_load_dwordx4 a[{128+4*f}:{128+4*f+3}], v{vWO}, {srd(sWO)}, s{sWOFF} offen offset:{(f&3)*1024}{wp}")
            return g
        def gu(f):
            def g():
                I(f"global_load_dwordx4 a[{4*f}:{4*f+3}], v[{vGU}:{vGU+1}], off offset:{(f&1)*3584}{wp}")
                if f & 1: I(f"v_lshl_add_u64 v[{vGU}:{vGU+1}], v[{vGU}:{vGU+1}], 0, s[{sGUSTEP}:{sGUSTEP+1}]")
            return g
        def wd(f):
            def g():
                I(f"s_mov_b32 s{sWOFF}, {(f>>2)*4096}")
                I(f"buffer_load_dwordx4 v[{vWDF+4*f}:{vWDF+4*f+3}], v{vWD}, {srd(sWD)}, s{sWOFF} offen offset:{(f&3)*1024}{wp}")
            return g
        for f in range(32): side.append(wo(f))
        for f in range(32): side.append(gu(f))
        for f in range(16): side.append(wd(f))
    mkside()
    if noside: side = side[:1]
    side_steps = {}
    for k in range(len(side)):
        pos = wstart + (wend - wstart) * k // len(side)
        side_steps.setdefault(pos, []).append(side[k])

    work = []
    def push_group(g4):
        B, aa = g4 >> 2, g4 & 3
        def D(e):
            def f():
                for c in range(4):
                    I(f"v_dot2_f32_bf16 v{vP+c}, v{slot(4*g4+c)+e}, v{vQ+e}, " + ("0" if e == 0 else f"v{vP+c}"))
                if e == 3:
                    for c in range(4): release(4 * g4 + c)
            return f
        def Rd():
            I(f"v_add_f32_dpp v{vP}, v{vP}, v{vP} row_ror:8 row_mask:0xf bank_mask:0x3")
            I(f"v_add_f32_dpp v{vP+1}, v{vP+1}, v{vP+1} row_ror:8 row_mask:0xf bank_mask:0x3")
            I(f"v_add_f32_dpp v{vP}, v{vP+2}, v{vP+2} row_ror:8 row_mask:0xf bank_mask:0xc")
            I(f"v_add_f32_dpp v{vP+1}, v{vP+3}, v{vP+3} row_ror:8 row_mask:0xf bank_mask:0xc")
            I(f"v_add_f32_dpp v{vG+aa}, v{vP}, v{vP} row_half_mirror row_mask:0xf bank_mask:0x5")
            I(f"v_add_f32_dpp v{vG+aa}, v{vP+1}, v{vP+1} row_half_mirror row_mask:0xf bank_mask:0xa")
        def F1():
            for q in range(4):
                I(f"v_add_f32_dpp v{vG+q}, v{vG+q}, v{vG+q} quad_perm:[1,0,3,2] row_mask:0xf bank_mask:0xf")
            I(f"v_cndmask_b32 v{vG}, v{vG}, v{vG+1}, s[{sODD}:{sODD+1}]")
            I(f"v_cndmask_b32 v{vG+2}, v{vG+2}, v{vG+3}, s[{sODD}:{sODD+1}]")
            I(f"v_add_f32_dpp v{vG}, v{vG}, v{vG} quad_perm:[2,3,0,1] row_mask:0xf bank_mask:0xf")
            I(f"v_add_f32_dpp v{vG+2}, v{vG+2}, v{vG+2} quad_perm:[2,3,0,1] row_mask:0xf bank_mask:0xf")
            I(f"v_cndmask_b32 v{vS+B}, v{vG}, v{vG+2}, s[{sBIT1}:{sBIT1+1}]")
        def F2():
            I(f"v_cvt_pk_bf16_f32 v{vS+B}, v{vS+B}, v{vS+B}")
            I(f"v_and_b32 v{vS+B}, 0xffff0000, v{vS+B}")
            I(f"v_mul_f32 v{vS+B}, s{sSCALE}, v{vS+B}")
            I(f"v_cvt_pk_bf16_f32 v{vS+B}, v{vS+B}, v{vS+B}")
            I(f"v_and_b32 v{vS+B}, 0xffff0000, v{vS+B}")
            I(f"v_max_f32 v{vMAX}, v{vMAX}, v{vS+B}")
        work.extend([D(0), D(1), D(2), D(3), Rd])
        if aa == 3: work.extend([F1, F2])
    I1 = issued[0]
    for i in range(256):
        a.wait_vm(kvid[i])
        tgt = max(i + 1 + N, I1 + i // cu)
        while issued[0] < tgt: issue_kv()
        for fn in side_steps.get(i, []): fn()
        if (i & 3) == 3: push_group(i >> 2)
        n = 1 if len(work) <= 4 - (i & 3) + 0 else 2
        for _ in range(min(n, len(work))): work.pop(0)()
    nV = NV or N
    xleft = [Tx]
    def xissue():
        if xleft[0] > 0:
            xleft[0] -= 1; issue_kv()
    while work: work.pop(0)()
    stamp()
    xissue()
    wave_reduce(vMAX, vT, "v_max_f32")
    I(f"v_mul_f32 v{vT}, s{sL2E}, v{vMAX}")
    for B in range(16): I(f"v_fma_f32 v{vS+B}, v{vS+B}, s{sL2E}, -v{vT}")
    for B in range(16): I(f"v_exp_f32 v{vS+B}, v{vS+B}")
    xissue()
    for k in range(8): I(f"v_add_f32 v{vA+k}, v{vS+2*k}, v{vS+2*k+1}")
    for k in range(4): I(f"v_add_f32 v{vA+k}, v{vA+k}, v{vA+4+k}")
    for k in range(2): I(f"v_add_f32 v{vA+k}, v{vA+k}, v{vA+2+k}")
    I(f"v_add_f32 v{vT+3}, v{vA}, v{vA+1}")
    wave_reduce(vT + 3, vT + 1, "v_add_f32")
    I(f"v_mov_b32 v{vT+2}, v{vT}")
    I(f"s_lshl_b32 s{sTMP}, s{sW}, 3")
    I(f"v_mov_b32 v{vT+1}, s{sTMP}")
    I("s_mov_b64 exec, 1")
    I(f"ds_write_b64 v{vT+1}, v[{vT+2}:{vT+3}] offset:{LML}")
    I("s_mov_b64 exec, -1")
    I(f"v_mov_b32 v{vT+1}, 0")
    xissue()
    I("s_waitcnt lgkmcnt(0)")
    I("s_barrier")
    xissue()
    I(f"ds_read_b128 v[{vA}:{vA+3}], v{vT+1} offset:{LML}")
    I(f"ds_read_b128 v[{vA+4}:{vA+7}], v{vT+1} offset:{LML+16}")
    I("s_waitcnt lgkmcnt(0)")
    I(f"v_max3_f32 v{vT+5}, v{vA}, v{vA+2}, v{vA+4}")
    I(f"v_max_f32 v{vT+5}, v{vT+5}, v{vA+6}")
    for k in range(4): I(f"v_sub_f32 v{vA+2*k}, v{vA+2*k}, v{vT+5}")
    I(f"v_sub_f32 v{vT}, v{vT}, v{vT+5}")
    for k in range(4): I(f"v_exp_f32 v{vA+2*k}, v{vA+2*k}")
    I(f"v_exp_f32 v{vT}, v{vT}")
    I(f"v_mul_f32 v{vA}, v{vA}, v{vA+1}")
    I(f"v_mul_f32 v{vA+4}, v{vA+4}, v{vA+5}")
    I(f"v_fmac_f32 v{vA}, v{vA+2}, v{vA+3}")
    I(f"v_fmac_f32 v{vA+4}, v{vA+6}, v{vA+7}")
    I(f"v_add_f32 v{vA}, v{vA}, v{vA+4}")
    I(f"v_rcp_f32 v{vA}, v{vA}")
    I(f"v_mul_f32 v{vT}, v{vT}, v{vA}")
    while xleft[0] > 0: xissue()
    for B in range(16): I(f"v_mul_f32 v{vS+B}, v{vS+B}, v{vT}")
    for B in range(16): I(f"v_cvt_pk_bf16_f32 v{vS+B}, v{vS+B}, v{vS+B}")
    stamp()
    cnt_id = None
    for i in range(256, 512):
        B, t = (i - 256) >> 4, i & 15
        u, c = t >> 2, t & 3
        A = vA + 2 * ((i >> 2) & 1)
        if i == 256: afrag(A, vS, 0)
        a.wait_vm(kvid[i])
        tgt = min(i + 1 + nV, 512)
        while issued[0] < tgt: issue_kv()
        for fn in side_steps.get(i, []): fn()
        mfma2(A, "v", slot(i), c, i == 256)
        release(i)
        if c == 0 and i + 4 < 512:
            j = i + 4
            afrag(vA + 2 * ((j >> 2) & 1), vS + ((j - 256) >> 4), (j & 15) >> 2)
    stamp()
    swap_reduce(vT)
    I(f"ds_write_b64 v{vLW}, v[{vT}:{vT+1}] offset:{LO}")
    I("s_waitcnt lgkmcnt(0)")
    I("s_barrier")
    I(f"ds_read2_b64 v[{vT}:{vT+3}], v{vLO} offset0:0 offset1:64")
    I(f"ds_read2_b64 v[{vT+4}:{vT+7}], v{vLO} offset0:128 offset1:192")
    I("s_waitcnt lgkmcnt(0)")
    I(f"v_add_f32 v{vT}, v{vT}, v{vT+2}")
    I(f"v_add_f32 v{vT+1}, v{vT+1}, v{vT+3}")
    I(f"v_add_f32 v{vT+4}, v{vT+4}, v{vT+6}")
    I(f"v_add_f32 v{vT+5}, v{vT+5}, v{vT+7}")
    I(f"v_add_f32 v{vT}, v{vT}, v{vT+4}")
    I(f"v_add_f32 v{vT+1}, v{vT+1}, v{vT+5}")
    I(f"v_cvt_pk_bf16_f32 v{vP}, v{vT}, v{vT}")
    I(f"v_cvt_pk_bf16_f32 v{vP+1}, v{vT+1}, v{vT+1}")
    a.wait_vm_all()
    gemv32(vP, vP + 1, "a", 128)
    swap_reduce(vPB)
    I(f"buffer_store_dwordx4 v[{vPB}:{vPB+3}], v{vPUB}, {srd(sWS)}, s{sGOFF} offen sc1")
    stamp()
    I(f"s_cmp_lg_u32 s{sW}, 0")
    I("s_cbranch_scc1 L_notw0")
    GR = RING0

    def poll(label, loads):
        I(f"s_mov_b32 s{sCNT}, {SPIN}")
        I(f"{label}:")
        for l in loads: I(l)
        I("s_waitcnt vmcnt(0)")
        for i in range(4):
            I(f"v_cmp_ne_u64 s[{60+20+2*i if False else 8+2*i}:{9+2*i}], s[{sTAG}:{sTAG+1}], v[{GR+4*i+2}:{GR+4*i+3}]")
        I("s_or_b64 s[8:9], s[8:9], s[10:11]")
        I("s_or_b64 s[12:13], s[12:13], s[14:15]")
        I("s_or_b64 s[8:9], s[8:9], s[12:13]")
        I(f"s_cbranch_scc0 {label}_ok")
        if sleep: I(f"s_sleep {sleep}")
        I(f"s_sub_u32 s{sCNT}, s{sCNT}, 1")
        I(f"s_cmp_lg_u32 s{sCNT}, 0")
        I(f"s_cbranch_scc1 {label}")
        I(f"{label}_ok:")

    def colsum():
        x0, x1, t0, t1 = vT, vT + 1, vT + 2, vT + 3
        I(f"v_add_f32 v{x0}, v{GR}, v{GR+4}")
        I(f"v_add_f32 v{x1}, v{GR+1}, v{GR+5}")
        I(f"v_add_f32 v{t0}, v{GR+8}, v{GR+12}")
        I(f"v_add_f32 v{t1}, v{GR+9}, v{GR+13}")
        I(f"v_add_f32 v{x0}, v{x0}, v{t0}")
        I(f"v_add_f32 v{x1}, v{x1}, v{t1}")
        I(f"v_add_f32_dpp v{x0}, v{x0}, v{x0} row_ror:8 row_mask:0xf bank_mask:0xf")
        I(f"v_add_f32_dpp v{x1}, v{x1}, v{x1} row_ror:8 row_mask:0xf bank_mask:0xf")
        for sw in ("v_permlane16_swap_b32", "v_permlane32_swap_b32"):
            I(f"v_mov_b32 v{t0}, v{x0}")
            I(f"v_mov_b32 v{t1}, v{x1}")
            I(f"{sw} v{x0}, v{t0}")
            I(f"{sw} v{x1}, v{t1}")
            I(f"v_add_f32 v{x0}, v{x0}, v{t0}")
            I(f"v_add_f32 v{x1}, v{x1}, v{t1}")
        I(f"v_cvt_pk_bf16_f32 v{x0}, v{x0}, v{x1}")
        I(f"v_lshlrev_b32 v{t0}, 16, v{x0}")
        I(f"v_and_b32 v{t1}, 0xffff0000, v{x0}")

    I(f"v_lshlrev_b32 v{vH}, 16, v{vXRES}")
    I(f"v_and_b32 v{vH+1}, 0xffff0000, v{vXRES}")
    poll("L_p1", [f"buffer_load_dwordx4 v[{GR+4*i}:{GR+4*i+3}], v{vGAT}, {srd(sWS)}, s{sGOFF+i} offen sc1" for i in range(4)])
    colsum()
    I(f"v_add_f32 v{vT+2}, v{vT+2}, v{vH}")
    I(f"v_add_f32 v{vT+3}, v{vT+3}, v{vH+1}")
    I(f"v_cvt_pk_bf16_f32 v{vPB}, v{vT+2}, v{vT+3}")
    I("s_mov_b64 exec, 0xff")
    I(f"buffer_store_dwordx4 v[{vPB}:{vPB+3}], v{vHROW}, {srd(sWS)}, s{sHST} offen sc1")
    I("s_mov_b64 exec, -1")
    I(f"v_lshlrev_b32 v{vH}, 16, v{vPB}")
    I(f"v_and_b32 v{vH+1}, 0xffff0000, v{vPB}")
    I(f"s_cmp_lg_u32 s{sH}, 31")
    I("s_cbranch_scc1 L_noep")
    I(f"s_lshl_b32 s{sTMP}, s{sB}, 7")
    I("s_mov_b64 exec, 1")
    I(f"buffer_store_dwordx2 v[{vPB+2}:{vPB+3}], v{vHROW}, {srd(sWS)}, s{sTMP} offen")
    I("s_mov_b64 exec, -1")
    I("L_noep:")
    stamp()
    I(f"s_cmp_ge_u32 s{sH}, 28")
    I("s_cbranch_scc1 L_final")
    I("s_branch L_ffn")
    I("L_notw0:")
    I(f"s_cmp_ge_u32 s{sH}, 28")
    I("s_cbranch_scc1 L_end")
    I("L_ffn:")
    I("s_barrier")
    poll("L_h", [f"buffer_load_dwordx4 v[{GR+4*i}:{GR+4*i+3}], v{vHROW}, {srd(sWS)}, s{sROT+i} offen sc1" for i in range(4)])
    stamp()
    ln([GR, GR + 4, GR + 8, GR + 12], vP, vP + 1, vS)
    gemv32(vP, vP + 1, "a", 0)
    swap_reduce(vT)
    I(f"ds_write_b64 v{vLW}, v[{vT}:{vT+1}] offset:{LGU}")
    I("s_waitcnt lgkmcnt(0)")
    I("s_barrier")
    for w in range(4):
        I(f"ds_read2st64_b32 v[{vT+2*w}:{vT+2*w+1}], v{vLGU} offset0:{2*w} offset1:{2*w+1}")
    I("s_waitcnt lgkmcnt(0)")
    I(f"v_add_f32 v{vT}, v{vT}, v{vT+2}")
    I(f"v_add_f32 v{vT+1}, v{vT+1}, v{vT+3}")
    I(f"v_add_f32 v{vT+4}, v{vT+4}, v{vT+6}")
    I(f"v_add_f32 v{vT+5}, v{vT+5}, v{vT+7}")
    I(f"v_add_f32 v{vT}, v{vT}, v{vT+4}")
    I(f"v_add_f32 v{vT+1}, v{vT+1}, v{vT+5}")
    I(f"v_cvt_pk_bf16_f32 v{vT}, v{vT}, v{vT+1}")
    I(f"v_and_b32 v{vT+1}, 0xffff0000, v{vT}")
    I(f"v_lshlrev_b32 v{vT}, 16, v{vT}")
    I(f"v_max_f32 v{vT}, 0, v{vT}")
    I(f"v_mul_f32 v{vT}, v{vT}, v{vT+1}")
    I(f"v_cvt_pk_bf16_f32 v{vP}, v{vT}, v{vT}")
    for u in range(4): afrag(vA + 2 * u, vP, u)
    for f in range(16):
        mfma2(vA + 2 * (f & 3), "v", vWDF + 4 * f, f >> 2, f == 0)
    swap_reduce(vPB)
    I(f"buffer_store_dwordx4 v[{vPB}:{vPB+3}], v{vPUB}, {srd(sWS)}, s{sP2} offen sc1")
    stamp()
    I(f"s_cmp_lg_u32 s{sW}, 0")
    I("s_cbranch_scc1 L_end")
    I("L_final:")
    I(f"v_add_u32 v{vGAT}, {P2OFF - P1OFF}, v{vGAT}")
    I(f"v_mov_b32 v{GR+12}, 0")
    I(f"v_mov_b32 v{GR+13}, 0")
    I(f"v_mov_b32 v{GR+14}, s{sTAG}")
    I(f"v_mov_b32 v{GR+15}, s{sTAG+1}")
    I(f"s_mov_b32 s{sTMP}, -1")
    I(f"s_mov_b32 s{sTMP2}, 0")
    poll("L_p2", [f"buffer_load_dwordx4 v[{GR+4*i}:{GR+4*i+3}], v{vGAT}, {srd(sWS)}, s{sGOFF+i} offen sc1" for i in range(3)]
         + [f"s_mov_b64 exec, s[{sTMP}:{sTMP2}]", f"buffer_load_dwordx4 v[{GR+12}:{GR+15}], v{vGAT}, {srd(sWS)}, s{sGOFF+3} offen sc1", "s_mov_b64 exec, -1"])
    colsum()
    I(f"v_add_f32 v{vT+2}, v{vT+2}, v{vH}")
    I(f"v_add_f32 v{vT+3}, v{vT+3}, v{vH+1}")
    I(f"v_cvt_pk_bf16_f32 v{vT}, v{vT+2}, v{vT+3}")
    I("s_mov_b64 exec, 0xff")
    I(f"buffer_store_dword v{vT}, v{vHST}, {srd(sOUT)}, s{sOUTO} offen")
    I("s_mov_b64 exec, -1")
    if stamps:
        stamp()
        I("s_waitcnt lgkmcnt(0)")
        I(f"s_lshl_b32 s{sTMP}, s2, 6")
        I(f"s_add_u32 s{sTMP}, s{sTMP}, {STAMPOFF}")
        I(f"v_mov_b32 v{vT+2}, 0")
        I("s_mov_b64 exec, 1")
        for k in range(stamp_n[0]):
            r = 84 if k == 0 else 60 + 2 * (k - 1)
            I(f"v_mov_b32 v{vT+3}, s{r}")
            I(f"buffer_store_dword v{vT+3}, v{vT+2}, {srd(sWS)}, s{sTMP} offen offset:{4*k}")
        if pstamps:
            I("s_mov_b64 exec, 0xffff")
            I(f"s_add_u32 s60, s{sTMP}, 0x10000")
            I(f"buffer_store_dword v91, v{vROW}, {srd(sWS)}, s60 offen")
            I("s_mov_b64 exec, 1")
        I("s_getreg_b32 s60, hwreg(HW_REG_XCC_ID)")
        I(f"v_mov_b32 v{vT+3}, s60")
        I(f"buffer_store_dword v{vT+3}, v{vT+2}, {srd(sWS)}, s{sTMP} offen offset:60")
    I("L_end:")
    I("s_endpgm")
    body = a.finish()
    out = HEADER + "; @launch grid=(256,1,1) block=(256,1,1) lds=8192\n"
    out += '.amdgcn_target "amdgcn-amd-amdhsa--gfx950"\n.text\n'
    out += f".globl {KNAME}\n.p2align 8\n.type {KNAME},@function\n{KNAME}:\n"
    out += body
    out += f'''.section .rodata,"a"
.p2align 6
.amdhsa_kernel {KNAME}
  .amdhsa_next_free_vgpr 512
  .amdhsa_next_free_sgpr 102
  .amdhsa_accum_offset 256
  .amdhsa_group_segment_fixed_size 0
  .amdhsa_kernarg_size 96
  .amdhsa_user_sgpr_count 2
  .amdhsa_user_sgpr_kernarg_segment_ptr 1
  .amdhsa_system_sgpr_workgroup_id_x 1
.end_amdhsa_kernel
'''
    return out

if __name__ == "__main__":
    import json
    cfg = json.loads(sys.argv[2]) if len(sys.argv) > 2 else {}
    open(sys.argv[1], "w").write(gen(**cfg))
```

```python
import sys
sys.path.insert(0, "gen")
from asmlib import Asm
import struct

KNAME = "sequential_preLN__mha_block_cached__glu_gated_reglu__decode_kernel"
HEADER = open("sequential_preLN__mha_block_cached__glu_gated_reglu__decode.s.ref").read().split("; Override launch")[0]

def f32(x):
    return "0x%08x" % struct.unpack("<I", struct.pack("<f", x))[0]

vLANE, vKV, vWQ, vWO, vWD = 1, 2, 3, 4, 5
vGU = 6
vPUB, vGAT, vROW, vLW, vM0, vM1, vXRES, vMAX = 8, 9, 10, 11, 12, 13, 14, 15
vQ, vP, vG, vS, vA, vACC, vT = 16, 20, 24, 28, 44, 60, 68
vLO, vLGU, vLQ, vHST, vHROW, vH = 84, 85, 86, 87, 88, 89
vPB = 92
RING0 = 96
vWDF = 192
sW, sB, sH, sJF = 3, 4, 5, 6
sK, sV, sWQ, sWO, sWD, sWS, sX, sOUT, sDBG = 8, 12, 16, 20, 24, 28, 32, 36, 40
sISS, sWOFF, sTMP, sTMP2 = 48, 49, 50, 51
sODD, sBIT1 = 52, 54
sCNT, sL2E = 58, 59
sSCALE, sFFFF, sP2, sHST = 44, 45, 46, 47
sGOFF = 86
sROT = 94
sGUSTEP = 98
sOUTO = 100
sTAG = 56
sTAGP = 88
sTB, sTC = 90, 91
sHSTA, sROTA, sP2A = 92, 93, 87
sXCC = 95
sXT = 40
LQ, LML, LO, LGU, LCS, LST, LFL = 0, 2048, 4096, 6144, 8192, 10240, 10304
P1OFF, P2OFF, HOFF, STAMPOFF = 0x10000, 0x110000, 0x210000, 0x400000
P2AOFF, HAOFF = 0x220000, 0x218000
SPIN = 200000

def srd(b): return f"s[{b}:{b+3}]"

def gen(N=5, NV=None, R=24, wpol="nt", kvpol="nt", stamps=False, pstamps=False, sleep=4, wstart=40, wend=250, M=11, kfirst=1, ratio=(5, 6), qextra=3, cu=5, Tx=5, noside=False, vpol=None, lpol="sc1", spol="sc1", K=4, gap=1, TH=16, slow=16, cs_start=300, remap=False, fast=False, NA=32, fpol=None, pretouch=470, rawh=True, dH=0, dP=0, psl=0, align=True, NE=None, E=0, hmap=False, kstamps=False, nokc=False):
    a = Asm(); I = a.I
    wp = (" " + wpol) if wpol else ""
    kp = (" " + kvpol) if kvpol else ""
    fp = wp if fpol is None else ((" " + fpol) if fpol else "")
    vp = kp if vpol is None else ((" " + vpol) if vpol else "")
    stamp_n = [0]
    def stamp():
        if stamps:
            k = stamp_n[0]; stamp_n[0] += 1
            r = 84 if k == 0 else 60 + 2 * (k - 1)
            I(f"s_memrealtime s[{r}:{r+1}]")
    def pstamp(k, force=False):
        if (pstamps and not kstamps) or force:
            I(f"s_memrealtime s[96:97]")
            I("s_waitcnt lgkmcnt(0)")
            I(f"v_writelane_b32 v91, s96, {k}")
    free = [("v", RING0 + 4 * k) for k in range(R)]
    extra = [("v", vWDF + 4 * k) for k in range(16)] + [("a", 252 - 4 * k) for k in range(28)]
    slot_of = {}
    busy_a = set()
    def slot(g): return slot_of[g][1]
    def alloc(g):
        if free: r = free.pop(0)
        else:
            assert g < 100 and extra, f"out of slots at {g}"
            r = extra.pop(0)
        if r[0] == "a": busy_a.add(r[1])
        slot_of[g] = r
    def release(g):
        r = slot_of[g]
        if r[0] == "v" and r[1] < vWDF: free.append(r)
        if r[0] == "a": busy_a.discard(r[1])

    def wave_reduce(x, t, op):
        for r in (8, 4, 2, 1):
            I(f"{op}_dpp v{x}, v{x}, v{x} row_ror:{r} row_mask:0xf bank_mask:0xf")
        I(f"v_mov_b32 v{t}, v{x}")
        I(f"v_permlane16_swap_b32 v{x}, v{t}")
        I(f"{op} v{x}, v{x}, v{t}")
        I(f"v_mov_b32 v{t}, v{x}")
        I(f"v_permlane32_swap_b32 v{x}, v{t}")
        I(f"{op} v{x}, v{x}, v{t}")

    def ln(Dl, X0, X1, F):
        f = [F + i for i in range(8)]
        c = [F + 8 + i for i in range(4)]
        s, t = F + 12, F + 13
        for i in range(4):
            I(f"v_lshlrev_b32 v{f[2*i]}, 16, v{Dl[i]}")
            I(f"v_and_b32 v{f[2*i+1]}, 0xffff0000, v{Dl[i]}")
        for i in range(4):
            I(f"v_add_f32 v{c[i]}, v{f[2*i]}, v{f[2*i+1]}")
        I(f"v_add_f32 v{c[0]}, v{c[0]}, v{c[2]}")
        I(f"v_add_f32 v{c[1]}, v{c[1]}, v{c[3]}")
        I(f"v_add_f32 v{s}, v{c[0]}, v{c[1]}")
        wave_reduce(s, t, "v_add_f32")
        I(f"v_mul_f32 v{s}, {f32(1/512)}, v{s}")
        for i in range(4):
            I(f"v_sub_f32 v{Dl[i]}, v{f[2*i]}, v{s}")
            I(f"v_sub_f32 v{c[i]}, v{f[2*i+1]}, v{s}")
        for i in range(4):
            I(f"v_mul_f32 v{Dl[i]}, v{Dl[i]}, v{Dl[i]}")
        for i in range(4):
            I(f"v_fmac_f32 v{Dl[i]}, v{c[i]}, v{c[i]}")
        I(f"v_add_f32 v{Dl[0]}, v{Dl[0]}, v{Dl[2]}")
        I(f"v_add_f32 v{Dl[1]}, v{Dl[1]}, v{Dl[3]}")
        I(f"v_add_f32 v{Dl[0]}, v{Dl[0]}, v{Dl[1]}")
        wave_reduce(Dl[0], t, "v_add_f32")
        I(f"v_mul_f32 v{Dl[0]}, {f32(1/512)}, v{Dl[0]}")
        I(f"v_cvt_pk_bf16_f32 v{t}, v{s}, v{Dl[0]}")
        I(f"v_lshlrev_b32 v{s}, 16, v{t}")
        I(f"v_and_b32 v{t}, 0xffff0000, v{t}")
        I(f"v_add_f32 v{t}, {f32(1e-5)}, v{t}")
        I(f"v_sub_f32 v{f[0]}, v{f[0]}, v{s}")
        I(f"v_cvt_pk_bf16_f32 v{t}, v{t}, v{t}")
        I(f"v_sub_f32 v{f[1]}, v{f[1]}, v{s}")
        I(f"v_and_b32 v{t}, 0xffff0000, v{t}")
        I(f"v_cvt_pk_bf16_f32 v{f[0]}, v{f[0]}, v{f[1]}")
        I(f"v_sqrt_f32 v{t}, v{t}")
        I(f"v_and_b32 v{f[1]}, 0xffff0000, v{f[0]}")
        I(f"v_lshlrev_b32 v{f[0]}, 16, v{f[0]}")
        I(f"v_cvt_pk_bf16_f32 v{t}, v{t}, v{t}")
        I(f"v_and_b32 v{t}, 0xffff0000, v{t}")
        I(f"v_rcp_f32 v{s}, v{t}")
        I(f"v_mul_f32 v{f[2]}, v{f[0]}, v{s}")
        I(f"v_mul_f32 v{f[3]}, v{f[1]}, v{s}")
        I(f"v_fma_f32 v{f[4]}, -v{f[2]}, v{t}, v{f[0]}")
        I(f"v_fma_f32 v{f[5]}, -v{f[3]}, v{t}, v{f[1]}")
        I(f"v_fmac_f32 v{f[2]}, v{f[4]}, v{s}")
        I(f"v_fmac_f32 v{f[3]}, v{f[5]}, v{s}")
        I(f"v_cvt_pk_bf16_f32 v{X0}, v{f[2]}, v{f[2]}")
        I(f"v_cvt_pk_bf16_f32 v{X1}, v{f[3]}, v{f[3]}")

    def afrag(dst, src, u):
        I(f"v_and_b32_dpp v{dst}, v{src}, v{vM0} quad_perm:[{u},{u},{u},{u}] row_mask:0xf bank_mask:0xf")
        I(f"v_and_b32_dpp v{dst+1}, v{src}, v{vM1} quad_perm:[{u},{u},{u},{u}] row_mask:0xf bank_mask:0xf")

    def mfma2(A, bfile, b, abid, first, acc=vACC):
        lo, hi = acc, acc + 4
        c0 = "0" if first else f"v[{lo}:{lo+3}]"
        c1 = "0" if first else f"v[{hi}:{hi+3}]"
        I(f"v_mfma_f32_4x4x4_16b_bf16 v[{lo}:{lo+3}], v[{A}:{A+1}], {bfile}[{b}:{b+1}], {c0} cbsz:2 abid:{abid}")
        I(f"v_mfma_f32_4x4x4_16b_bf16 v[{hi}:{hi+3}], v[{A}:{A+1}], {bfile}[{b+2}:{b+3}], {c1} cbsz:2 abid:{abid}")

    def swap_reduce(dst, acc=vACC):
        lo, hi = acc, acc + 4
        for i in range(4): I(f"v_permlane32_swap_b32 v{lo+i}, v{hi+i}")
        for i in range(4): I(f"v_add_f32 v{lo+i}, v{lo+i}, v{hi+i}")
        I(f"v_permlane16_swap_b32 v{lo}, v{lo+2}")
        I(f"v_permlane16_swap_b32 v{lo+1}, v{lo+3}")
        I(f"v_add_f32 v{dst}, v{lo}, v{lo+2}")
        I(f"v_add_f32 v{dst+1}, v{lo+1}, v{lo+3}")

    def gemv32(X0, X1, bfile, b0, waits=None):
        for r, X in ((0, X0), (1, X1)):
            pass
        for u in range(4):
            for r, X in ((0, X0), (1, X1)):
                afrag(vA + 4 * u + 2 * r, X, u)
        for f in range(32):
            aa, u, r = f >> 3, (f >> 1) & 3, f & 1
            if waits: a.wait_vm(waits[f])
            mfma2(vA + 4 * u + 2 * r, bfile, b0 + 4 * f, aa, f == 0)

    I(f"s_cmp_ge_u32 s2, 256")
    I("s_cbranch_scc1 L_end")
    stamp()
    I("s_load_dwordx16 s[60:75], s[0:1], 0")
    I("s_load_dwordx8 s[76:83], s[0:1], 64")
    I(f"v_lshrrev_b32 v{vT}, 6, v0")
    I(f"v_and_b32 v{vLANE}, 63, v0")
    I(f"v_readfirstlane_b32 s{sW}, v{vT}")
    I(f"s_lshr_b32 s{sB}, s2, 5")
    if hmap:
        I(f"s_and_b32 s{sH}, s2, 7")
        I(f"s_lshl_b32 s{sH}, s{sH}, 2")
        I(f"s_bfe_u32 s{sTMP}, s2, 0x20003")
        I(f"s_or_b32 s{sH}, s{sH}, s{sTMP}")
        I(f"s_andn2_b32 s2, s2, 31")
        I(f"s_or_b32 s2, s2, s{sH}")
    else:
        I(f"s_and_b32 s{sH}, s2, 31")
    if remap:
        I(f"s_and_b32 s{sTB}, s2, 7")
        I(f"s_lshr_b32 s{sTC}, s2, 3")
    else:
        I(f"s_mov_b32 s{sTB}, s{sB}")
        I(f"s_mov_b32 s{sTC}, s{sH}")
    I(f"s_min_u32 s{sJF}, s{sTC}, 27")
    J16, SS = vT + 1, vT + 2
    I(f"v_and_b32 v{J16}, 15, v{vLANE}")
    I(f"v_lshrrev_b32 v{SS}, 4, v{vLANE}")
    I(f"v_lshlrev_b32 v{vROW}, 2, v{vLANE}")
    I(f"v_lshlrev_b32 v{vKV}, 4, v{vLANE}")
    I(f"s_lshl_b32 s{sTMP}, s{sW}, 12")
    I(f"v_add_u32 v{vKV}, s{sTMP}, v{vKV}")
    for i in range(4):
        I(f"s_add_u32 s{sROT+i}, s{sW}, {i}")
        I(f"s_and_b32 s{sROT+i}, s{sROT+i}, 3")
        I(f"s_lshl_b32 s{sROT+i}, s{sROT+i}, 8")
    I(f"v_lshlrev_b32 v{vT+3}, 4, v{J16}")
    I(f"s_lshl_b32 s{sTMP}, s{sW}, 20")
    I(f"s_lshl_b32 s{sTMP2}, s{sH}, 8")
    I(f"s_add_u32 s{sTMP}, s{sTMP}, s{sTMP2}")
    I(f"v_lshlrev_b32 v{vWQ}, 18, v{SS}")
    I(f"v_add3_u32 v{vWQ}, v{vWQ}, v{vT+3}, s{sTMP}")
    I("s_waitcnt lgkmcnt(0)")
    pstamp(0)
    def mk(b, plo, offlo, size, offhi=None):
        if offlo is None:
            I(f"s_mov_b32 s{b}, s{plo}"); I(f"s_mov_b32 s{b+1}, s{plo+1}")
        else:
            I(f"s_add_u32 s{b}, s{plo}, {offlo}"); I(f"s_addc_u32 s{b+1}, s{plo+1}, 0")
        I(f"s_mov_b32 s{b+2}, {size}"); I(f"s_mov_b32 s{b+3}, 0x20000")
    I(f"s_lshl_b32 s{sTMP}, s{sB}, 10")
    mk(sX, 60, f"s{sTMP}", 1024)
    I(f"s_lshl_b32 s{sTMP}, s2, 20")
    mk(sK, 62, f"s{sTMP}", 1 << 20)
    xl = [I(f"buffer_load_dword v{vT+8+i}, v{vROW}, {srd(sX)}, s{sROT+i} offen") for i in range(4)]
    I(f"s_mov_b32 s{sISS}, 0")
    issued = [0]
    kvid = {}
    def issue_kv():
        g = issued[0]; issued[0] += 1
        alloc(g)
        s = sK if g < 256 else sV
        if g == 256: I(f"s_mov_b32 s{sISS}, 0")
        kvid[g] = I(f"buffer_load_dwordx4 {slot_of[g][0]}[{slot(g)}:{slot(g)+3}], v{vKV}, {srd(s)}, s{sISS} offen offset:{(g&3)*1024}{kp if g < 256 else vp}")
        if (g & 3) == 3 and g != 255 and g != 511: I(f"s_add_u32 s{sISS}, s{sISS}, 16384")
    wqid = []
    def issue_wq():
        f = len(wqid)
        I(f"s_mov_b32 s{sWOFF}, {f*8192}")
        wqid.append(I(f"buffer_load_dwordx4 a[{4*f}:{4*f+3}], v{vWQ}, {srd(sWQ)}, s{sWOFF} offen{wp}"))
    mk(sWQ, 66, None, 4 << 20)
    seq = ['K'] * kfirst
    acc = 0
    nwq = 0
    while nwq < 32:
        seq.append('W'); nwq += 1
        acc += ratio[0]
        while acc >= ratio[1] and nwq < 32 + 1 - (1 if True else 0):
            seq.append('K'); acc -= ratio[1]
    seqid = []
    def issue_seq(n):
        if seq[n] == 'K': issue_kv()
        else: issue_wq()
        seqid.append(a.vm - 1)
    seqpos = 0
    while seqpos < min(M, len(seq)):
        issue_seq(seqpos); seqpos += 1
    I(f"s_lshl_b32 s{sTMP2}, s{sTB}, 7")
    I(f"s_load_dwordx2 s[{sTAG}:{sTAG+1}], s[82:83], s{sTMP2}")
    I(f"s_lshl_b32 s{sTMP2}, s{sB}, 7")
    I(f"s_load_dwordx2 s[{sTAGP}:{sTAGP+1}], s[82:83], s{sTMP2}")
    mk(sV, 64, f"s{sTMP}", 1 << 20)
    I(f"s_lshl_b32 s{sTMP}, s{sH}, 17")
    mk(sWO, 68, f"s{sTMP}", 1 << 17)
    I(f"s_lshl_b32 s{sTMP}, s{sJF}, 16")
    mk(sWD, 76, f"s{sTMP}", 1 << 16)
    I(f"s_cmp_ge_u32 s{sTC}, 28")
    I(f"s_cselect_b32 s{sWD+2}, 0, s{sWD+2}")
    I(f"s_lshl_b32 s{sTMP}, s{sTB}, 10")
    mk(sXT, 60, f"s{sTMP}", 1024)
    mk(sOUT, 78, None, 8192)
    mk(sWS, 82, None, 0x500000 if stamps else P2AOFF + 0x100000)
    I(f"s_lshl_b32 s{sTMP}, s{sW}, 8")
    I(f"v_lshlrev_b32 v{vWO}, 15, v{SS}")
    I(f"v_add3_u32 v{vWO}, v{vWO}, v{vT+3}, s{sTMP}")
    I(f"v_lshlrev_b32 v{vWD}, 14, v{SS}")
    I(f"v_add3_u32 v{vWD}, v{vWD}, v{vT+3}, s{sTMP}")
    I(f"v_cmp_gt_u32 vcc, 8, v{J16}")
    I(f"v_mov_b32 v{vT+4}, s74")
    I(f"v_mov_b32 v{vT+5}, s72")
    I(f"v_cndmask_b32 v{vGU}, v{vT+4}, v{vT+5}, vcc")
    I(f"v_mov_b32 v{vT+4}, s75")
    I(f"v_mov_b32 v{vT+5}, s73")
    I(f"v_cndmask_b32 v{vGU+1}, v{vT+4}, v{vT+5}, vcc")
    I(f"s_mul_i32 s{sTMP}, s{sW}, {128*3584}")
    I(f"s_lshl_b32 s{sTMP2}, s{sJF}, 7")
    I(f"s_add_u32 s{sTMP}, s{sTMP}, s{sTMP2}")
    I(f"v_mul_u32_u24 v{vT+4}, {32*3584}, v{SS}")
    I(f"v_and_b32 v{vT+5}, 0x70, v{vT+3}")
    I(f"v_add3_u32 v{vT+4}, v{vT+4}, v{vT+5}, s{sTMP}")
    I(f"s_cmp_ge_u32 s{sTC}, 28")
    I(f"s_cselect_b32 s{sTMP}, 0, -1")
    I(f"s_cselect_b32 s{sGUSTEP}, 0, 7168")
    I(f"v_and_b32 v{vT+4}, s{sTMP}, v{vT+4}")
    I(f"v_mov_b32 v{vT+5}, 0")
    I(f"v_lshl_add_u64 v[{vGU}:{vGU+1}], v[{vT+4}:{vT+5}], 0, v[{vGU}:{vGU+1}]")
    I(f"s_mov_b32 s{sGUSTEP+1}, 0")
    I(f"s_lshl_b32 s{sTMP}, s{sW}, 9")
    I(f"v_lshlrev_b32 v{vLW}, 5, v{J16}")
    I(f"v_lshlrev_b32 v{vT+4}, 3, v{SS}")
    I(f"v_add3_u32 v{vLW}, v{vLW}, v{vT+4}, s{sTMP}")
    I(f"s_lshl_b32 s{sTMP}, s2, 12")
    I(f"v_lshl_add_u32 v{vPUB}, v{vLW}, 1, s{sTMP}")
    I(f"s_lshl_b32 s{sTMP}, s{sTB}, 17")
    I(f"s_lshl_b32 s{sTMP2}, s{sTC}, 7")
    I(f"s_add_u32 s{sTMP}, s{sTMP}, s{sTMP2}")
    I(f"s_lshl_b32 s{sTMP2}, s{sW}, 5")
    I(f"s_add_u32 s{sTMP}, s{sTMP}, s{sTMP2}")
    I(f"v_lshrrev_b32 v{vGAT}, 1, v{vLANE}")
    I(f"v_lshlrev_b32 v{vGAT}, 12, v{vGAT}")
    I(f"v_and_b32 v{vT+4}, 16, v{vT+3}")
    I(f"v_add3_u32 v{vGAT}, v{vGAT}, v{vT+4}, s{sTMP}")
    I(f"s_mov_b32 s{sGOFF}, {P1OFF}")
    I(f"v_lshlrev_b32 v{vHROW}, 4, v{vLANE}")
    I(f"v_lshlrev_b32 v{vLO}, 3, v{vLANE}")
    I(f"v_add_u32 v{vLO}, {LO}, v{vLO}")
    I(f"v_add_u32 v{vLGU}, {LGU}, v{vROW}")
    I(f"v_lshlrev_b32 v{vLQ}, 5, v{J16}")
    I(f"v_and_b32 v{vHST}, 4, v{vROW}")
    I(f"v_and_b32 v{vT+4}, 3, v{vLANE}")
    I(f"v_mov_b32 v{vT+5}, 0xffff")
    I(f"v_mov_b32 v{vT+6}, 0xffff0000")
    I(f"v_mov_b32 v{vM0}, 0")
    I(f"v_mov_b32 v{vM1}, 0")
    for val, dst, src in ((0, vM0, vT+5), (1, vM0, vT+6), (2, vM1, vT+5), (3, vM1, vT+6)):
        I(f"v_cmp_eq_u32 vcc, {val}, v{vT+4}")
        I(f"v_cndmask_b32 v{dst}, v{dst}, v{src}, vcc")
    I(f"s_mov_b32 s{sODD}, 0xaaaaaaaa"); I(f"s_mov_b32 s{sODD+1}, 0xaaaaaaaa")
    I(f"s_mov_b32 s{sBIT1}, 0xcccccccc"); I(f"s_mov_b32 s{sBIT1+1}, 0xcccccccc")
    I(f"s_mov_b32 s{sL2E}, {f32(1.4426950408889634)}")
    I(f"s_mov_b32 s{sSCALE}, {f32(128 ** -0.5)}")
    I(f"s_mov_b32 s{sFFFF}, 0xffff")
    I(f"s_mov_b32 s{sP2}, {P2OFF}")
    I(f"s_lshl_b32 s{sTMP}, s{sTB}, 10")
    I(f"s_lshl_b32 s{sTMP2}, s{sTC}, 5")
    I(f"s_add_u32 s{sOUTO}, s{sTMP}, s{sTMP2}")
    I(f"s_lshl_b32 s{sTMP2}, s{sW}, 3")
    I(f"s_add_u32 s{sOUTO}, s{sOUTO}, s{sTMP2}")
    I(f"s_lshl_b32 s{sHST}, s{sOUTO}, 2")
    I(f"s_add_u32 s{sHST}, s{sHST}, {HOFF}")
    I(f"s_lshl_b32 s{sTMP}, s{sTB}, 12")
    I(f"s_lshl_b32 s{sROT}, s{sW}, 10")
    I(f"s_add_u32 s{sROT}, s{sROT}, s{sTMP}")
    I(f"s_add_u32 s{sROT}, s{sROT}, {HOFF}")
    I(f"s_add_u32 s{sHSTA}, s{sHST}, {HAOFF - HOFF}")
    I(f"s_add_u32 s{sROTA}, s{sROT}, {HAOFF - HOFF}")
    I(f"s_mov_b32 s{sP2A}, {P2AOFF}")
    I(f"v_mov_b32 v{vMAX}, 0xff800000")
    I("s_waitcnt lgkmcnt(0)")
    for tg in (sTAG, sTAGP):
        I(f"s_mul_i32 s{tg}, s{tg}, 1664525")
        I(f"s_add_u32 s{tg}, s{tg}, 1013904223")
        I(f"s_mul_i32 s{tg+1}, s{tg+1}, 22695477")
        I(f"s_add_u32 s{tg+1}, s{tg+1}, 1")
    I(f"v_mov_b32 v{vPB+2}, s{sTAGP}")
    I(f"v_mov_b32 v{vPB+3}, s{sTAGP+1}")
    pstamp(2)
    a.wait_vm(xl[3])
    pstamp(3)
    X0, X1 = vT, vT + 1
    ln([vT + 8 + i for i in range(4)], vP, vP + 1, vS)
    pstamp(4)
    for u in range(4):
        for r in range(2):
            afrag(vA + 4 * u + 2 * r, vP + r, u)
    base = xl[3] + 1
    fdone = 0
    def do_wq_upto(idx):
        nonlocal fdone
        while fdone < len(wqid) and wqid[fdone] <= idx:
            f = fdone; fdone += 1
            aa, u, r = f >> 3, (f >> 1) & 3, f & 1
            mfma2(vA + 4 * u + 2 * r, "a", 4 * f, aa, f == 0)
    while seqpos < len(seq):
        idx = seqid[seqpos - M]
        a.wait_vm(idx)
        issue_seq(seqpos); seqpos += 1
        do_wq_upto(idx)
    kleft = qextra
    while fdone < 32:
        idx = wqid[fdone]
        a.wait_vm(idx)
        while issued[0] - sum(1 for g in kvid if kvid[g] <= idx) < N: issue_kv()
        do_wq_upto(idx)
    pstamp(8)
    swap_reduce(vT)
    I(f"ds_write_b64 v{vLW}, v[{vT}:{vT+1}] offset:{LQ}")
    if qextra > 0: issue_kv()
    I("s_waitcnt lgkmcnt(0)")
    I("s_barrier")
    if qextra > 1: issue_kv()
    pstamp(9)
    for w in range(4):
        I(f"ds_read_b128 v[{vS+8*(w&1)}:{vS+8*(w&1)+3}], v{vLQ} offset:{LQ+w*512}" if w < 2 else f"ds_read_b128 v[{vA+8*(w&1)}:{vA+8*(w&1)+3}], v{vLQ} offset:{LQ+w*512}")
        I(f"ds_read_b128 v[{vS+8*(w&1)+4}:{vS+8*(w&1)+7}], v{vLQ} offset:{LQ+w*512+16}" if w < 2 else f"ds_read_b128 v[{vA+8*(w&1)+4}:{vA+8*(w&1)+7}], v{vLQ} offset:{LQ+w*512+16}")
    I("s_waitcnt lgkmcnt(0)")
    for i in range(8): I(f"v_add_f32 v{vS+i}, v{vS+i}, v{vS+8+i}")
    for i in range(8): I(f"v_add_f32 v{vA+i}, v{vA+i}, v{vA+8+i}")
    for i in range(8): I(f"v_add_f32 v{vS+i}, v{vS+i}, v{vA+i}")
    if qextra > 2: issue_kv()
    for i in range(4): I(f"v_cvt_pk_bf16_f32 v{vQ+i}, v{vS+2*i}, v{vS+2*i+1}")
    stamp()

    side = []
    side_last = [0]
    def mkside():
        def clr():
            I(f"s_and_b32 s{sTMP}, s{sOUTO}, 1023")
            I(f"buffer_load_dword v{vXRES}, v{vHST}, {srd(sXT)}, s{sTMP} offen")
        side.append(clr)
        def wo(f):
            def g():
                assert 128 + 4 * f not in busy_a
                I(f"s_mov_b32 s{sWOFF}, {(f>>2)*4096}")
                I(f"buffer_load_dwordx4 a[{128+4*f}:{128+4*f+3}], v{vWO}, {srd(sWO)}, s{sWOFF} offen offset:{(f&3)*1024}{wp}")
            return g
        def gu(f):
            def g():
                side_last[0] = I(f"global_load_dwordx4 a[{4*f}:{4*f+3}], v[{vGU}:{vGU+1}], off offset:{(f&1)*3584}{fp}")
                if f & 1: I(f"v_lshl_add_u64 v[{vGU}:{vGU+1}], v[{vGU}:{vGU+1}], 0, s[{sGUSTEP}:{sGUSTEP+1}]")
            return g
        def wd(f):
            def g():
                I(f"s_mov_b32 s{sWOFF}, {(f>>2)*4096}")
                I(f"buffer_load_dwordx4 v[{vWDF+4*f}:{vWDF+4*f+3}], v{vWD}, {srd(sWD)}, s{sWOFF} offen offset:{(f&3)*1024}{fp}")
            return g
        for f in range(32): side.append(wo(f))
        for f in range(32): side.append(gu(f))
        for f in range(16): side.append(wd(f))
    mkside()
    if noside: side = side[:1]
    side_steps = {}
    for k in range(len(side)):
        pos = wstart + (wend - wstart) * k // len(side)
        side_steps.setdefault(pos, []).append(side[k])

    work = []
    def push_group(g4):
        B, aa = g4 >> 2, g4 & 3
        def D(e):
            def f():
                src = []
                for c in range(4):
                    g = 4 * g4 + c
                    if slot_of[g][0] == "a":
                        I(f"v_accvgpr_read_b32 v{vA+c}, a{slot(g)+e}"); src.append(vA + c)
                    else: src.append(slot(g) + e)
                for c in range(4):
                    I(f"v_dot2_f32_bf16 v{vP+c}, v{src[c]}, v{vQ+e}, " + ("0" if e == 0 else f"v{vP+c}"))
                if e == 3:
                    for c in range(4): release(4 * g4 + c)
            return f
        def Rd():
            I(f"v_add_f32_dpp v{vP}, v{vP}, v{vP} row_ror:8 row_mask:0xf bank_mask:0x3")
            I(f"v_add_f32_dpp v{vP+1}, v{vP+1}, v{vP+1} row_ror:8 row_mask:0xf bank_mask:0x3")
            I(f"v_add_f32_dpp v{vP}, v{vP+2}, v{vP+2} row_ror:8 row_mask:0xf bank_mask:0xc")
            I(f"v_add_f32_dpp v{vP+1}, v{vP+3}, v{vP+3} row_ror:8 row_mask:0xf bank_mask:0xc")
            I(f"v_add_f32_dpp v{vG+aa}, v{vP}, v{vP} row_half_mirror row_mask:0xf bank_mask:0x5")
            I(f"v_add_f32_dpp v{vG+aa}, v{vP+1}, v{vP+1} row_half_mirror row_mask:0xf bank_mask:0xa")
        def F1():
            for q in range(4):
                I(f"v_add_f32_dpp v{vG+q}, v{vG+q}, v{vG+q} quad_perm:[1,0,3,2] row_mask:0xf bank_mask:0xf")
            I(f"v_cndmask_b32 v{vG}, v{vG}, v{vG+1}, s[{sODD}:{sODD+1}]")
            I(f"v_cndmask_b32 v{vG+2}, v{vG+2}, v{vG+3}, s[{sODD}:{sODD+1}]")
            I(f"v_add_f32_dpp v{vG}, v{vG}, v{vG} quad_perm:[2,3,0,1] row_mask:0xf bank_mask:0xf")
            I(f"v_add_f32_dpp v{vG+2}, v{vG+2}, v{vG+2} quad_perm:[2,3,0,1] row_mask:0xf bank_mask:0xf")
            I(f"v_cndmask_b32 v{vS+B}, v{vG}, v{vG+2}, s[{sBIT1}:{sBIT1+1}]")
        def F2():
            I(f"v_cvt_pk_bf16_f32 v{vS+B}, v{vS+B}, v{vS+B}")
            I(f"v_and_b32 v{vS+B}, 0xffff0000, v{vS+B}")
            I(f"v_mul_f32 v{vS+B}, s{sSCALE}, v{vS+B}")
            I(f"v_cvt_pk_bf16_f32 v{vS+B}, v{vS+B}, v{vS+B}")
            I(f"v_and_b32 v{vS+B}, 0xffff0000, v{vS+B}")
            I(f"v_max_f32 v{vMAX}, v{vMAX}, v{vS+B}")
        work.extend([D(0), D(1), D(2), D(3), Rd])
        if aa == 3: work.extend([F1, F2])
    I1 = issued[0]
    for i in range(256):
        a.wait_vm(kvid[i])
        tgt = max(i + 1 + N, I1 + i // cu)
        while issued[0] < tgt: issue_kv()
        for fn in side_steps.get(i, []): fn()
        if kstamps and i % 32 == 31: pstamp(i // 32, True)
        if (i & 3) == 3:
            if nokc and i > 64:
                for c in range(4): release(i - 3 + c)
            else: push_group(i >> 2)
        n = 1 if len(work) <= 4 - (i & 3) + 0 else 2
        for _ in range(min(n, len(work))): work.pop(0)()
    nV = NV or N
    xleft = [Tx]
    def xissue():
        if xleft[0] > 0:
            xleft[0] -= 1; issue_kv()
    while work: work.pop(0)()
    stamp()
    xissue()
    wave_reduce(vMAX, vT, "v_max_f32")
    I(f"v_mul_f32 v{vT}, s{sL2E}, v{vMAX}")
    for B in range(16): I(f"v_fma_f32 v{vS+B}, v{vS+B}, s{sL2E}, -v{vT}")
    for B in range(16): I(f"v_exp_f32 v{vS+B}, v{vS+B}")
    xissue()
    for k in range(8): I(f"v_add_f32 v{vA+k}, v{vS+2*k}, v{vS+2*k+1}")
    for k in range(4): I(f"v_add_f32 v{vA+k}, v{vA+k}, v{vA+4+k}")
    for k in range(2): I(f"v_add_f32 v{vA+k}, v{vA+k}, v{vA+2+k}")
    I(f"v_add_f32 v{vT+3}, v{vA}, v{vA+1}")
    wave_reduce(vT + 3, vT + 1, "v_add_f32")
    I(f"v_mov_b32 v{vT+2}, v{vT}")
    I(f"s_lshl_b32 s{sTMP}, s{sW}, 3")
    I(f"v_mov_b32 v{vT+1}, s{sTMP}")
    I("s_mov_b64 exec, 1")
    I(f"ds_write_b64 v{vT+1}, v[{vT+2}:{vT+3}] offset:{LML}")
    I("s_mov_b64 exec, -1")
    I(f"v_mov_b32 v{vT+1}, 0")
    xissue()
    I("s_waitcnt lgkmcnt(0)")
    I("s_barrier")
    xissue()
    I(f"ds_read_b128 v[{vA}:{vA+3}], v{vT+1} offset:{LML}")
    I(f"ds_read_b128 v[{vA+4}:{vA+7}], v{vT+1} offset:{LML+16}")
    I("s_waitcnt lgkmcnt(0)")
    I(f"v_max3_f32 v{vT+5}, v{vA}, v{vA+2}, v{vA+4}")
    I(f"v_max_f32 v{vT+5}, v{vT+5}, v{vA+6}")
    for k in range(4): I(f"v_sub_f32 v{vA+2*k}, v{vA+2*k}, v{vT+5}")
    I(f"v_sub_f32 v{vT}, v{vT}, v{vT+5}")
    for k in range(4): I(f"v_exp_f32 v{vA+2*k}, v{vA+2*k}")
    I(f"v_exp_f32 v{vT}, v{vT}")
    I(f"v_mul_f32 v{vA}, v{vA}, v{vA+1}")
    I(f"v_mul_f32 v{vA+4}, v{vA+4}, v{vA+5}")
    I(f"v_fmac_f32 v{vA}, v{vA+2}, v{vA+3}")
    I(f"v_fmac_f32 v{vA+4}, v{vA+6}, v{vA+7}")
    I(f"v_add_f32 v{vA}, v{vA}, v{vA+4}")
    I(f"v_rcp_f32 v{vA}, v{vA}")
    I(f"v_mul_f32 v{vT}, v{vT}, v{vA}")
    while xleft[0] > 0: xissue()
    for B in range(16): I(f"v_mul_f32 v{vS+B}, v{vS+B}, v{vT}")
    for B in range(16): I(f"v_cvt_pk_bf16_f32 v{vS+B}, v{vS+B}, v{vS+B}")
    stamp()
    cnt_id = None
    for i in range(256, 512):
        B, t = (i - 256) >> 4, i & 15
        u, c = t >> 2, t & 3
        A = vA + 2 * ((i >> 2) & 1)
        if i == 256: afrag(A, vS, 0)
        a.wait_vm(kvid[i])
        tgt = min(i + 1 + (NE if (NE and i >= 512 - E) else nV), 512)
        while issued[0] < tgt: issue_kv()
        for fn in side_steps.get(i, []): fn()
        mfma2(A, "v", slot(i), c, i == 256)
        release(i)
        if kstamps and i % 32 == 31: pstamp(i // 32, True)
        if fast and i == pretouch:
            I(f"buffer_load_dwordx4 v[{vT+4}:{vT+7}], v{vHROW}, {srd(sWS)}, s{sROTA} offen sc1")
        if fast and i == pretouch + 4:
            I(f"buffer_load_dwordx4 v[{vT+4}:{vT+7}], v{vGAT}, {srd(sWS)}, s{sP2A} offen sc1")
        if i == cs_start - 1:
            assert side_last[0] < a.vm_done
            I(f"v_and_b32 v{vA+4}, 0x3f803f80, v{vM0}")
            I(f"v_and_b32 v{vA+5}, 0x3f803f80, v{vM1}")
        if cs_start <= i < cs_start + 32:
            mfma2(vA + 4, "a", 4 * (i - cs_start), 0, i == cs_start, acc=vT + 8)
        if i == cs_start + 33:
            swap_reduce(vT, acc=vT + 8)
            I(f"ds_write_b64 v{vLW}, v[{vT}:{vT+1}] offset:{LCS}")
        if c == 0 and i + 4 < 512:
            j = i + 4
            afrag(vA + 2 * ((j >> 2) & 1), vS + ((j - 256) >> 4), (j & 15) >> 2)
    stamp()
    swap_reduce(vT)
    I(f"ds_write_b64 v{vLW}, v[{vT}:{vT+1}] offset:{LO}")
    I("s_waitcnt lgkmcnt(0)")
    I("s_barrier")
    I(f"ds_read2_b64 v[{vT}:{vT+3}], v{vLO} offset0:0 offset1:64")
    I(f"ds_read2_b64 v[{vT+4}:{vT+7}], v{vLO} offset0:128 offset1:192")
    vCS = vS
    for w in range(4):
        I(f"ds_read2st64_b32 v[{vCS+2*w}:{vCS+2*w+1}], v{vLGU} offset0:{(LCS-LGU)//256+2*w} offset1:{(LCS-LGU)//256+2*w+1}")
    I("s_waitcnt lgkmcnt(4)")
    I(f"v_add_f32 v{vT}, v{vT}, v{vT+2}")
    I(f"v_add_f32 v{vT+1}, v{vT+1}, v{vT+3}")
    I(f"v_add_f32 v{vT+4}, v{vT+4}, v{vT+6}")
    I(f"v_add_f32 v{vT+5}, v{vT+5}, v{vT+7}")
    I(f"v_add_f32 v{vT}, v{vT}, v{vT+4}")
    I(f"v_add_f32 v{vT+1}, v{vT+1}, v{vT+5}")
    I(f"v_cvt_pk_bf16_f32 v{vP}, v{vT}, v{vT}")
    I(f"v_cvt_pk_bf16_f32 v{vP+1}, v{vT+1}, v{vT+1}")
    gemv32(vP, vP + 1, "a", 128)
    swap_reduce(vPB)
    I(f"buffer_store_dwordx4 v[{vPB}:{vPB+3}], v{vPUB}, {srd(sWS)}, s{sGOFF} offen {spol}")
    stamp()
    vR = vG
    vPUB2 = vWQ

    def poll(label, S, voff, soff, nres, pre=None, th=0, soffA=None, lazy=None, delay=0):
        ld = lambda so: f"buffer_load_dwordx4 v[{S}:{S+3}], v{voff}, {srd(sWS)}, s{so} offen {lpol}"
        def check():
            I("s_waitcnt vmcnt(0)")
            I(f"v_cmp_eq_u64 vcc, s[{sTAG}:{sTAG+1}], v[{S+2}:{S+3}]")
            for r in range(nres): I(f"v_cndmask_b32 v{vR+r}, v{vR+r}, v{S+r}, vcc")
            I("s_andn2_b64 exec, exec, vcc")
            I(f"s_cbranch_scc0 {label}_ok")
        if delay:
            if pre: pre()
            I(f"s_sleep {delay}")
        a.X(ld(soffA if soffA else soff))
        if pre and not delay: pre()
        I(f"s_mov_b32 s{sCNT}, {SPIN}")
        I(f"{label}:")
        check()
        if th:
            I(f"s_bcnt1_i32_b64 s{sTMP}, exec")
            I(f"s_cmp_le_u32 s{sTMP}, {th}")
            I(f"s_cbranch_scc1 {label}_f")
            I(f"s_sleep {slow}")
            I(f"{label}_f:")
        if psl and not th: I(f"s_sleep {psl}")
        I(f"s_sub_u32 s{sCNT}, s{sCNT}, 1")
        if soffA:
            I(f"s_and_b32 s{sTMP}, s{sCNT}, {NA-1}")
            I(f"s_cselect_b32 s{sTMP}, s{soffA}, s{soff}")
            if lazy:
                I(f"s_cbranch_scc1 {label}_n")
                I("s_mov_b64 s[8:9], exec")
                I("s_mov_b64 exec, 3")
                a.X(lazy)
                I("s_mov_b64 exec, s[8:9]")
                I(f"{label}_n:")
            a.X(ld(sTMP))
        else:
            a.X(ld(soff))
        I(f"s_cmp_lg_u32 s{sCNT}, 0")
        I(f"s_cbranch_scc1 {label}")
        I(f"{label}_ok:")
        I("s_mov_b64 exec, -1")

    def colsum():
        x0, x1, t0, t1 = vR, vR + 1, vT + 2, vT + 3
        for r in (8, 4, 2):
            I(f"v_add_f32_dpp v{x0}, v{x0}, v{x0} row_ror:{r} row_mask:0xf bank_mask:0xf")
            I(f"v_add_f32_dpp v{x1}, v{x1}, v{x1} row_ror:{r} row_mask:0xf bank_mask:0xf")
        for sw in ("v_permlane16_swap_b32", "v_permlane32_swap_b32"):
            I(f"v_mov_b32 v{t0}, v{x0}")
            I(f"v_mov_b32 v{t1}, v{x1}")
            I(f"{sw} v{x0}, v{t0}")
            I(f"{sw} v{x1}, v{t1}")
            I(f"v_add_f32 v{x0}, v{x0}, v{t0}")
            I(f"v_add_f32 v{x1}, v{x1}, v{t1}")
        I(f"v_cvt_pk_bf16_f32 v{x0}, v{x0}, v{x1}")
        I(f"v_lshlrev_b32 v{t0}, 16, v{x0}")
        I(f"v_and_b32 v{t1}, 0xffff0000, v{x0}")

    def pre1():
        I(f"s_lshl_b32 s{sTMP}, s{sTB}, 5")
        I(f"s_add_u32 s{sTMP}, s{sTMP}, s{sTC}")
        I(f"s_lshl_b32 s{sTMP}, s{sTMP}, 12")
        I(f"v_lshl_add_u32 v{vPUB2}, v{vLW}, 1, s{sTMP}")
        I(f"v_mov_b32 v{vPB+2}, s{sTAG}")
        I(f"v_mov_b32 v{vPB+3}, s{sTAG+1}")
        I(f"s_getreg_b32 s{sXCC}, hwreg(HW_REG_XCC_ID, 0, 4)")
        I(f"v_mov_b32 v{vPB+1}, s{sXCC}")
        I(f"v_lshlrev_b32 v{vH}, 16, v{vXRES}")
        I(f"v_and_b32 v{vH+1}, 0xffff0000, v{vXRES}")
        I("s_waitcnt lgkmcnt(0)")
        I(f"v_add_f32 v{vCS}, v{vCS}, v{vCS+2}")
        I(f"v_add_f32 v{vCS+1}, v{vCS+1}, v{vCS+3}")
        I(f"v_add_f32 v{vCS+4}, v{vCS+4}, v{vCS+6}")
        I(f"v_add_f32 v{vCS+5}, v{vCS+5}, v{vCS+7}")
        I(f"v_add_f32 v{vCS}, v{vCS}, v{vCS+4}")
        I(f"v_add_f32 v{vCS+1}, v{vCS+1}, v{vCS+5}")
    poll("L_p1", RING0, vGAT, sGOFF, 2, pre1, TH)
    colsum()
    I(f"v_add_f32 v{vT+2}, v{vT+2}, v{vH}")
    I(f"v_add_f32 v{vT+3}, v{vT+3}, v{vH+1}")
    I(f"v_cvt_pk_bf16_f32 v{vPB}, v{vT+2}, v{vT+3}")
    I("s_mov_b64 exec, 3")
    if fast: I(f"buffer_store_dwordx4 v[{vPB}:{vPB+3}], v{vHROW}, {srd(sWS)}, s{sHSTA} offen")
    HB = f"buffer_store_dwordx4 v[{vPB}:{vPB+3}], v{vHROW}, {srd(sWS)}, s{sHST} offen {spol}"
    if not fast: I(HB)
    I("s_mov_b64 exec, -1")
    stamp()
    if not align:
        I(f"s_cmp_ge_u32 s{sTC}, 28")
        I("s_cbranch_scc1 L_noffn")
    def pre2():
        I(f"v_lshlrev_b32 v{vH}, 16, v{vPB}")
        I(f"v_and_b32 v{vH+1}, 0xffff0000, v{vPB}")
    poll("L_h", RING0 + 16, vHROW, sROT, 2 if fast else 1, pre2, soffA=sROTA if fast else None, lazy=HB if fast else None, delay=dH)
    if fast:
        I("s_mov_b64 exec, 3")
        I(HB)
        I("s_mov_b64 exec, -1")
        I(f"v_cmp_ne_u32 s[8:9], s{sXCC}, v{vR+1}")
    stamp()
    f0, f1, s1, t = vS + 8, vS + 9, vS + 10, vS + 11
    I(f"v_lshlrev_b32 v{f0}, 16, v{vR}")
    I(f"v_and_b32 v{f1}, 0xffff0000, v{vR}")
    I(f"v_and_b32 v{vP}, 0xffff, v{vR}")
    I(f"v_lshrrev_b32 v{vP+1}, 16, v{vR}")
    I(f"v_or_b32 v{vP}, v{vP}, v{f0}")
    I(f"v_or_b32 v{vP+1}, v{vP+1}, v{f1}")
    I(f"v_add_f32 v{s1}, v{f0}, v{f1}")
    stats = []
    def red(x):
        for r in (8, 4, 2, 1):
            stats.append(f"v_add_f32_dpp v{x}, v{x}, v{x} row_ror:{r} row_mask:0xf bank_mask:0xf")
        for sw in ("v_permlane16_swap_b32", "v_permlane32_swap_b32"):
            stats.append(f"v_mov_b32 v{t}, v{x}")
            stats.append(f"{sw} v{x}, v{t}")
            stats.append(f"v_add_f32 v{x}, v{x}, v{t}")
    red(s1)
    stats.append(f"v_mul_f32 v{s1}, {f32(1/128)}, v{s1}")
    stats.append(f"v_sub_f32 v{f0}, v{f0}, v{s1}")
    stats.append(f"v_sub_f32 v{f1}, v{f1}, v{s1}")
    stats.append(f"v_mul_f32 v{f0}, v{f0}, v{f0}")
    stats.append(f"v_fmac_f32 v{f0}, v{f1}, v{f1}")
    red(f0)
    stats.append(f"v_mov_b32 v{f1}, v{s1}")
    for u in range(4):
        for r in range(2): afrag(vA + 4 * u + 2 * r, vP + r, u)
    for f in range(32):
        aa, u, r = f >> 3, (f >> 1) & 3, f & 1
        mfma2(vA + 4 * u + 2 * r, "a", 4 * f, aa, f == 0)
        if stats: I(stats.pop(0))
    assert not stats
    I(f"s_lshl_b32 s{sTMP}, s{sW}, 3")
    I(f"v_mov_b32 v{t}, s{sTMP}")
    I("s_mov_b64 exec, 1")
    I(f"ds_write_b64 v{t}, v[{f0}:{f1}] offset:{LST}")
    if fast:
        I("s_or_b32 s8, s8, s9")
        I(f"v_mov_b32 v{s1}, s8")
        I(f"v_lshrrev_b32 v{t}, 1, v{t}")
        I(f"ds_write_b32 v{t}, v{s1} offset:{LFL}")
    I("s_mov_b64 exec, -1")
    I(f"v_mov_b32 v{t}, 0")
    swap_reduce(vT)
    I(f"ds_write_b64 v{vLW}, v[{vT}:{vT+1}] offset:{LGU}")
    I("s_waitcnt lgkmcnt(0)")
    I("s_barrier")
    Z = vA
    I(f"ds_read_b128 v[{Z}:{Z+3}], v{t} offset:{LST}")
    I(f"ds_read_b128 v[{Z+4}:{Z+7}], v{t} offset:{LST+16}")
    for w in range(4):
        I(f"ds_read2st64_b32 v[{vT+2*w}:{vT+2*w+1}], v{vLGU} offset0:{2*w} offset1:{2*w+1}")
    if fast: I(f"ds_read_b128 v[{vS+12}:{vS+15}], v{t} offset:{LFL}")
    I("s_waitcnt lgkmcnt(5)" if fast else "s_waitcnt lgkmcnt(4)")
    m, q = Z + 8, Z + 9
    I(f"v_add_f32 v{m}, v{Z+1}, v{Z+3}")
    I(f"v_add_f32 v{q}, v{Z+5}, v{Z+7}")
    I(f"v_add_f32 v{Z}, v{Z}, v{Z+2}")
    I(f"v_add_f32 v{m}, v{m}, v{q}")
    I(f"v_add_f32 v{Z+4}, v{Z+4}, v{Z+6}")
    I(f"v_mul_f32 v{m}, 0.25, v{m}" if False else f"v_mul_f32 v{m}, {f32(0.25)}, v{m}")
    I(f"v_add_f32 v{Z}, v{Z}, v{Z+4}")
    for k in (1, 3, 5, 7): I(f"v_sub_f32 v{Z+k}, v{Z+k}, v{m}")
    I(f"v_mul_f32 v{Z+1}, v{Z+1}, v{Z+1}")
    I(f"v_mul_f32 v{Z+5}, v{Z+5}, v{Z+5}")
    I(f"v_fmac_f32 v{Z+1}, v{Z+3}, v{Z+3}")
    I(f"v_fmac_f32 v{Z+5}, v{Z+7}, v{Z+7}")
    I(f"v_mul_f32 v{Z}, {f32(1/512)}, v{Z}")
    I(f"v_add_f32 v{Z+1}, v{Z+1}, v{Z+5}")
    I(f"v_fmac_f32 v{Z}, {f32(0.25)}, v{Z+1}")
    I(f"v_cvt_pk_bf16_f32 v{q}, v{m}, v{Z}")
    I("s_waitcnt lgkmcnt(0)")
    I(f"v_add_f32 v{vT}, v{vT}, v{vT+2}")
    I(f"v_lshlrev_b32 v{m}, 16, v{q}")
    I(f"v_and_b32 v{q}, 0xffff0000, v{q}")
    I(f"v_add_f32 v{vT+1}, v{vT+1}, v{vT+3}")
    I(f"v_add_f32 v{q}, {f32(1e-5)}, v{q}")
    I(f"v_add_f32 v{vT+4}, v{vT+4}, v{vT+6}")
    I(f"v_cvt_pk_bf16_f32 v{q}, v{q}, v{q}")
    I(f"v_add_f32 v{vT+5}, v{vT+5}, v{vT+7}")
    I(f"v_and_b32 v{q}, 0xffff0000, v{q}")
    I(f"v_add_f32 v{vT}, v{vT}, v{vT+4}")
    I(f"v_sqrt_f32 v{q}, v{q}")
    I(f"v_add_f32 v{vT+1}, v{vT+1}, v{vT+5}")
    I(f"v_cvt_pk_bf16_f32 v{q}, v{q}, v{q}")
    I(f"v_fma_f32 v{vT}, -v{m}, v{vCS}, v{vT}")
    I(f"v_and_b32 v{q}, 0xffff0000, v{q}")
    I(f"v_fma_f32 v{vT+1}, -v{m}, v{vCS+1}, v{vT+1}")
    I(f"v_rcp_f32 v{q}, v{q}")
    I(f"v_mul_f32 v{vT}, v{vT}, v{q}")
    I(f"v_mul_f32 v{vT+1}, v{vT+1}, v{q}")
    I(f"v_cvt_pk_bf16_f32 v{vT}, v{vT}, v{vT+1}")
    I(f"v_and_b32 v{vT+1}, 0xffff0000, v{vT}")
    I(f"v_lshlrev_b32 v{vT}, 16, v{vT}")
    I(f"v_max_f32 v{vT}, 0, v{vT}")
    I(f"v_mul_f32 v{vT}, v{vT}, v{vT+1}")
    I(f"v_cvt_pk_bf16_f32 v{vP}, v{vT}, v{vT}")
    for u in range(4): afrag(vA + 2 * u, vP, u)
    for f in range(16):
        mfma2(vA + 2 * (f & 3), "v", vWDF + 4 * f, f >> 2, f == 0)
    if fast:
        I(f"v_or3_b32 v{vS+12}, v{vS+12}, v{vS+13}, v{vS+14}")
        I(f"v_or_b32 v{vS+12}, v{vS+12}, v{vS+15}")
        I(f"v_readfirstlane_b32 s8, v{vS+12}")
    swap_reduce(vPB)
    if align:
        I(f"s_cmp_ge_u32 s{sTC}, 28")
        I("s_cbranch_scc1 L_local")
    if fast:
        I(f"buffer_store_dwordx4 v[{vPB}:{vPB+3}], v{vPUB2}, {srd(sWS)}, s{sP2A} offen")
        I("s_cmp_eq_u32 s8, 0")
        I("s_cbranch_scc1 L_local")
    I(f"buffer_store_dwordx4 v[{vPB}:{vPB+3}], v{vPUB2}, {srd(sWS)}, s{sP2} offen {spol}")
    I("L_local:")
    I(f"s_lshl_b32 s{sTMP}, s{sTC}, 2")
    I(f"s_add_u32 s{sTMP}, s{sTMP}, s{sW}")
    I(f"s_cmp_lg_u32 s{sTMP}, 0")
    I("s_cbranch_scc1 L_noep")
    I(f"s_lshl_b32 s{sTMP}, s{sTB}, 7")
    I("s_mov_b64 exec, 1")
    I(f"buffer_store_dwordx2 v[{vPB+2}:{vPB+3}], v{vHROW}, {srd(sWS)}, s{sTMP} offen")
    I("s_mov_b64 exec, -1")
    I("L_noep:")
    stamp()
    if not align: I("s_branch L_final")
    I("L_noffn:")
    if fast and not align:
        I("s_mov_b64 exec, 3")
        I(HB)
        I("s_mov_b64 exec, -1")
    if not align:
        I(f"v_lshlrev_b32 v{vH}, 16, v{vPB}")
        I(f"v_and_b32 v{vH+1}, 0xffff0000, v{vPB}")
    I("L_final:")
    I(f"v_mov_b32 v{vR}, 0")
    I(f"v_mov_b32 v{vR+1}, 0")
    I(f"s_mov_b32 exec_hi, 0x00ffffff")
    poll("L_p2", RING0 + 32, vGAT, sP2, 2, soffA=sP2A if fast else None, delay=dP)
    colsum()
    I(f"v_add_f32 v{vT+2}, v{vT+2}, v{vH}")
    I(f"v_add_f32 v{vT+3}, v{vT+3}, v{vH+1}")
    I(f"v_cvt_pk_bf16_f32 v{vT}, v{vT+2}, v{vT+3}")
    I("s_mov_b64 exec, 3")
    I(f"buffer_store_dword v{vT}, v{vHST}, {srd(sOUT)}, s{sOUTO} offen")
    I("s_mov_b64 exec, -1")
    if stamps:
        stamp()
        I(f"s_cmp_lg_u32 s{sW}, 0")
        I("s_cbranch_scc1 L_end")
        I("s_waitcnt lgkmcnt(0)")
        I(f"s_lshl_b32 s{sTMP}, s2, 6")
        I(f"s_add_u32 s{sTMP}, s{sTMP}, {STAMPOFF}")
        I(f"v_mov_b32 v{vT+2}, 0")
        I("s_mov_b64 exec, 1")
        for k in range(stamp_n[0]):
            r = 84 if k == 0 else 60 + 2 * (k - 1)
            I(f"v_mov_b32 v{vT+3}, s{r}")
            I(f"buffer_store_dword v{vT+3}, v{vT+2}, {srd(sWS)}, s{sTMP} offen offset:{4*k}")
        if pstamps:
            I("s_mov_b64 exec, 0xffff")
            I(f"s_add_u32 s60, s{sTMP}, 0x10000")
            I(f"buffer_store_dword v91, v{vROW}, {srd(sWS)}, s60 offen")
            I("s_mov_b64 exec, 1")
        I("s_getreg_b32 s60, hwreg(HW_REG_XCC_ID)")
        I(f"v_mov_b32 v{vT+3}, s60")
        I(f"buffer_store_dword v{vT+3}, v{vT+2}, {srd(sWS)}, s{sTMP} offen offset:60")
    I("L_end:")
    I("s_endpgm")
    body = a.finish()
    out = HEADER + "; @launch grid=(256,1,1) block=(256,1,1) lds=10368\n"
    out += '.amdgcn_target "amdgcn-amd-amdhsa--gfx950"\n.text\n'
    out += f".globl {KNAME}\n.p2align 8\n.type {KNAME},@function\n{KNAME}:\n"
    out += body
    out += f'''.section .rodata,"a"
.p2align 6
.amdhsa_kernel {KNAME}
  .amdhsa_next_free_vgpr 512
  .amdhsa_next_free_sgpr 102
  .amdhsa_accum_offset 256
  .amdhsa_group_segment_fixed_size 0
  .amdhsa_kernarg_size 96
  .amdhsa_user_sgpr_count 2
  .amdhsa_user_sgpr_kernarg_segment_ptr 1
  .amdhsa_system_sgpr_workgroup_id_x 1
.end_amdhsa_kernel
'''
    return out

if __name__ == "__main__":
    import json
    cfg = json.loads(sys.argv[2]) if len(sys.argv) > 2 else {}
    open(sys.argv[1], "w").write(gen(**cfg))
```

```python
import sys
sys.path.insert(0, "gen")
from asmlib import Asm
import struct

KNAME = "sequential_preLN__mha_block_cached__glu_gated_reglu__decode_kernel"
HEADER = open("sequential_preLN__mha_block_cached__glu_gated_reglu__decode.s.ref").read().split("; Override launch")[0]

def f32(x):
    return "0x%08x" % struct.unpack("<I", struct.pack("<f", x))[0]

vLANE, vKV, vWQ, vWO, vWD = 1, 2, 3, 4, 5
vGU = 6
vPUB, vGAT, vROW, vLW, vM0, vM1, vXRES, vMAX = 8, 9, 10, 11, 12, 13, 14, 15
vQ, vP, vG, vS, vA, vACC, vT = 16, 20, 24, 28, 44, 60, 68
vLO, vLGU, vLQ, vHST, vHROW, vH = 84, 85, 86, 87, 88, 89
vPB = 92
RING0 = 96
vWDF = 192
sW, sB, sH, sJF = 3, 4, 5, 6
sK, sV, sWQ, sWO, sWD, sWS, sX, sOUT, sDBG = 8, 12, 16, 20, 24, 28, 32, 36, 40
sISS, sWOFF, sTMP, sTMP2 = 48, 49, 50, 51
sODD, sBIT1 = 52, 54
sCNT, sL2E = 58, 59
sSCALE, sFFFF, sP2, sHST = 44, 45, 46, 47
sGOFF = 86
sROT = 94
sGUSTEP = 98
sOUTO = 100
sTAG = 56
sTAGP = 88
sTB, sTC = 90, 91
sHSTA, sROTA, sP2A = 92, 93, 87
sXCC = 95
sRQ = 7
sNOW, sLVL, sT0 = 80, 101, 84
sPC, sPFD = 78, 83
sXT = 40
LQ, LML, LO, LGU, LCS, LST, LFL = 0, 2048, 4096, 6144, 8192, 10240, 10304
P1OFF, P2OFF, HOFF, STAMPOFF = 0x10000, 0x110000, 0x210000, 0x400000
P2AOFF, HAOFF = 0x220000, 0x218000
SPIN = 200000

def srd(b): return f"s[{b}:{b+3}]"

def gen(N=5, NV=None, R=24, wpol="nt", kvpol="nt", stamps=False, pstamps=False, sleep=4, wstart=40, wend=250, M=11, kfirst=1, ratio=(5, 6), qextra=3, cu=5, Tx=5, noside=False, vpol=None, lpol="sc1", spol="sc1", K=4, gap=1, TH=0, slow=16, cs_start=300, remap=False, fast=False, NA=32, fpol=None, pretouch=470, rawh=True, dH=20, dP=12, psl=0, align=True, NE=8, E=24, hmap=False, kstamps=False, nokc=False, fB=0, fC=0, KC=1, dS=5, rotq=0, tstamps=False, ND=0, dper=2, fakeq=0, qpol=None, qdelay=0, ctl=True, Ts=135.5, T0=2200, Tside=17.5, dl=300, U=16, cands=2, nl=8, ustart=48, d1=16, two=True, pf=4, pft=True, pfd=3):
    a = Asm(); I = a.I
    wp = (" " + wpol) if wpol else ""
    kp = (" " + kvpol) if kvpol else ""
    fp = wp if fpol is None else ((" " + fpol) if fpol else "")
    qp = wp if qpol is None else ((" " + qpol) if qpol else "")
    NWQ = fakeq or 32
    vp = kp if vpol is None else ((" " + vpol) if vpol else "")
    stamp_n = [0]
    def stamp():
        if stamps:
            k = stamp_n[0]; stamp_n[0] += 1
            r = 84 if k == 0 else 60 + 2 * (k - 1)
            I(f"s_memrealtime s[{r}:{r+1}]")
    def pstamp(k, force=False):
        if (pstamps and not kstamps and not tstamps) or force:
            I(f"s_memrealtime s[96:97]")
            I("s_waitcnt lgkmcnt(0)")
            I(f"v_writelane_b32 v91, s96, {k}")
    free = [("v", RING0 + 4 * k) for k in range(R)]
    extra = [("v", vWDF + 4 * k) for k in range(16)] + [("a", 252 - 4 * k) for k in range(28)]
    slot_of = {}
    busy_a = set()
    tn = [0]
    def tstamp():
        if tstamps:
            k = tn[0]; tn[0] += 1
            r = 10 + 2 * k if k < 9 else [32, 34, 40, 42][k - 9]
            I(f"s_memtime s[{r}:{r+1}]")
    def slot(g): return slot_of[g][1]
    def alloc(g):
        if free: r = free.pop(0)
        else:
            assert g < 100 and extra, f"out of slots at {g}"
            r = extra.pop(0)
        if r[0] == "a": busy_a.add(r[1])
        slot_of[g] = r
    def release(g):
        r = slot_of[g]
        if r[0] == "v" and r[1] < vWDF: free.append(r)
        if r[0] == "a": busy_a.discard(r[1])

    def wave_reduce(x, t, op):
        for r in (8, 4, 2, 1):
            I(f"{op}_dpp v{x}, v{x}, v{x} row_ror:{r} row_mask:0xf bank_mask:0xf")
        I(f"v_mov_b32 v{t}, v{x}")
        I(f"v_permlane16_swap_b32 v{x}, v{t}")
        I(f"{op} v{x}, v{x}, v{t}")
        I(f"v_mov_b32 v{t}, v{x}")
        I(f"v_permlane32_swap_b32 v{x}, v{t}")
        I(f"{op} v{x}, v{x}, v{t}")

    def ln(Dl, X0, X1, F):
        f = [F + i for i in range(8)]
        c = [F + 8 + i for i in range(4)]
        s, t = F + 12, F + 13
        for i in range(4):
            I(f"v_lshlrev_b32 v{f[2*i]}, 16, v{Dl[i]}")
            I(f"v_and_b32 v{f[2*i+1]}, 0xffff0000, v{Dl[i]}")
        for i in range(4):
            I(f"v_add_f32 v{c[i]}, v{f[2*i]}, v{f[2*i+1]}")
        I(f"v_add_f32 v{c[0]}, v{c[0]}, v{c[2]}")
        I(f"v_add_f32 v{c[1]}, v{c[1]}, v{c[3]}")
        I(f"v_add_f32 v{s}, v{c[0]}, v{c[1]}")
        wave_reduce(s, t, "v_add_f32")
        I(f"v_mul_f32 v{s}, {f32(1/512)}, v{s}")
        for i in range(4):
            I(f"v_sub_f32 v{Dl[i]}, v{f[2*i]}, v{s}")
            I(f"v_sub_f32 v{c[i]}, v{f[2*i+1]}, v{s}")
        for i in range(4):
            I(f"v_mul_f32 v{Dl[i]}, v{Dl[i]}, v{Dl[i]}")
        for i in range(4):
            I(f"v_fmac_f32 v{Dl[i]}, v{c[i]}, v{c[i]}")
        I(f"v_add_f32 v{Dl[0]}, v{Dl[0]}, v{Dl[2]}")
        I(f"v_add_f32 v{Dl[1]}, v{Dl[1]}, v{Dl[3]}")
        I(f"v_add_f32 v{Dl[0]}, v{Dl[0]}, v{Dl[1]}")
        wave_reduce(Dl[0], t, "v_add_f32")
        I(f"v_mul_f32 v{Dl[0]}, {f32(1/512)}, v{Dl[0]}")
        I(f"v_cvt_pk_bf16_f32 v{t}, v{s}, v{Dl[0]}")
        I(f"v_lshlrev_b32 v{s}, 16, v{t}")
        I(f"v_and_b32 v{t}, 0xffff0000, v{t}")
        I(f"v_add_f32 v{t}, {f32(1e-5)}, v{t}")
        I(f"v_sub_f32 v{f[0]}, v{f[0]}, v{s}")
        I(f"v_cvt_pk_bf16_f32 v{t}, v{t}, v{t}")
        I(f"v_sub_f32 v{f[1]}, v{f[1]}, v{s}")
        I(f"v_and_b32 v{t}, 0xffff0000, v{t}")
        I(f"v_cvt_pk_bf16_f32 v{f[0]}, v{f[0]}, v{f[1]}")
        I(f"v_sqrt_f32 v{t}, v{t}")
        I(f"v_and_b32 v{f[1]}, 0xffff0000, v{f[0]}")
        I(f"v_lshlrev_b32 v{f[0]}, 16, v{f[0]}")
        I(f"v_cvt_pk_bf16_f32 v{t}, v{t}, v{t}")
        I(f"v_and_b32 v{t}, 0xffff0000, v{t}")
        I(f"v_rcp_f32 v{s}, v{t}")
        I(f"v_mul_f32 v{f[2]}, v{f[0]}, v{s}")
        I(f"v_mul_f32 v{f[3]}, v{f[1]}, v{s}")
        I(f"v_fma_f32 v{f[4]}, -v{f[2]}, v{t}, v{f[0]}")
        I(f"v_fma_f32 v{f[5]}, -v{f[3]}, v{t}, v{f[1]}")
        I(f"v_fmac_f32 v{f[2]}, v{f[4]}, v{s}")
        I(f"v_fmac_f32 v{f[3]}, v{f[5]}, v{s}")
        I(f"v_cvt_pk_bf16_f32 v{X0}, v{f[2]}, v{f[2]}")
        I(f"v_cvt_pk_bf16_f32 v{X1}, v{f[3]}, v{f[3]}")

    def afrag(dst, src, u):
        I(f"v_and_b32_dpp v{dst}, v{src}, v{vM0} quad_perm:[{u},{u},{u},{u}] row_mask:0xf bank_mask:0xf")
        I(f"v_and_b32_dpp v{dst+1}, v{src}, v{vM1} quad_perm:[{u},{u},{u},{u}] row_mask:0xf bank_mask:0xf")

    def mfma2(A, bfile, b, abid, first, acc=vACC):
        lo, hi = acc, acc + 4
        c0 = "0" if first else f"v[{lo}:{lo+3}]"
        c1 = "0" if first else f"v[{hi}:{hi+3}]"
        I(f"v_mfma_f32_4x4x4_16b_bf16 v[{lo}:{lo+3}], v[{A}:{A+1}], {bfile}[{b}:{b+1}], {c0} cbsz:2 abid:{abid}")
        I(f"v_mfma_f32_4x4x4_16b_bf16 v[{hi}:{hi+3}], v[{A}:{A+1}], {bfile}[{b+2}:{b+3}], {c1} cbsz:2 abid:{abid}")

    def swap_reduce(dst, acc=vACC):
        lo, hi = acc, acc + 4
        for i in range(4): I(f"v_permlane32_swap_b32 v{lo+i}, v{hi+i}")
        for i in range(4): I(f"v_add_f32 v{lo+i}, v{lo+i}, v{hi+i}")
        I(f"v_permlane16_swap_b32 v{lo}, v{lo+2}")
        I(f"v_permlane16_swap_b32 v{lo+1}, v{lo+3}")
        I(f"v_add_f32 v{dst}, v{lo}, v{lo+2}")
        I(f"v_add_f32 v{dst+1}, v{lo+1}, v{lo+3}")

    def afrag1(dst, src, u, half):
        I(f"v_and_b32_dpp v{dst+half}, v{src}, v{vM0 if half == 0 else vM1} quad_perm:[{u},{u},{u},{u}] row_mask:0xf bank_mask:0xf")

    def gemv_il(Xs, bfile, b0, fill=None):
        nr = len(Xs)
        combos = [(u, r) for u in range(4) for r in range(nr)]
        fill = fill if fill is not None else []
        dbl = len(fill) > 18
        def put():
            x = fill.pop(0)
            if callable(x): x()
            else: I(x)
        afrag(vA, Xs[combos[0][1]], combos[0][0])
        first = True
        for ci, (u, r) in enumerate(combos):
            A = vA + 2 * (ci & 1)
            for aa in range(4):
                f = (8 * aa + 2 * u + r) if nr == 2 else (4 * aa + u)
                mfma2(A, bfile, b0 + 4 * f, aa, first); first = False
                if aa < 2 and ci + 1 < len(combos):
                    afrag1(vA + 2 * ((ci + 1) & 1), Xs[combos[ci + 1][1]], combos[ci + 1][0], aa)
                    if fill and aa == 0 and dbl: put()
                elif fill:
                    put()
                    if fill and aa == 2 and dbl: put()
        while fill: put()

    I(f"s_cmp_ge_u32 s2, 256")
    I("s_cbranch_scc1 L_end")
    stamp()
    if ctl and not stamps: I(f"s_memrealtime s[{sT0}:{sT0+1}]")
    I("s_load_dwordx16 s[60:75], s[0:1], 0")
    I("s_load_dwordx8 s[76:83], s[0:1], 64")
    I(f"v_lshrrev_b32 v{vT}, 6, v0")
    I(f"v_and_b32 v{vLANE}, 63, v0")
    I(f"v_readfirstlane_b32 s{sW}, v{vT}")
    I(f"s_lshr_b32 s{sB}, s2, 5")
    if hmap:
        I(f"s_and_b32 s{sH}, s2, 7")
        I(f"s_lshl_b32 s{sH}, s{sH}, 2")
        I(f"s_bfe_u32 s{sTMP}, s2, 0x20003")
        I(f"s_or_b32 s{sH}, s{sH}, s{sTMP}")
        I(f"s_andn2_b32 s2, s2, 31")
        I(f"s_or_b32 s2, s2, s{sH}")
    else:
        I(f"s_and_b32 s{sH}, s2, 31")
    if remap:
        I(f"s_and_b32 s{sTB}, s2, 7")
        I(f"s_lshr_b32 s{sTC}, s2, 3")
    else:
        I(f"s_mov_b32 s{sTB}, s{sB}")
        I(f"s_mov_b32 s{sTC}, s{sH}")
    I(f"s_min_u32 s{sJF}, s{sTC}, 27")
    J16, SS = vT + 1, vT + 2
    I(f"v_and_b32 v{J16}, 15, v{vLANE}")
    I(f"v_lshrrev_b32 v{SS}, 4, v{vLANE}")
    I(f"v_lshlrev_b32 v{vROW}, 2, v{vLANE}")
    I(f"v_lshlrev_b32 v{vKV}, 4, v{vLANE}")
    I(f"s_lshl_b32 s{sTMP}, s{sW}, 12")
    I(f"v_add_u32 v{vKV}, s{sTMP}, v{vKV}")
    for i in range(4):
        I(f"s_add_u32 s{sROT+i}, s{sW}, {i}")
        I(f"s_and_b32 s{sROT+i}, s{sROT+i}, 3")
        I(f"s_lshl_b32 s{sROT+i}, s{sROT+i}, 8")
    I(f"v_lshlrev_b32 v{vT+3}, 4, v{J16}")
    I(f"s_lshl_b32 s{sTMP}, s{sW}, 20" if not fakeq else f"s_lshl_b32 s{sTMP}, s{sB}, 19")
    I(f"s_lshl_b32 s{sTMP2}, s{sH}, 8")
    I(f"s_add_u32 s{sTMP}, s{sTMP}, s{sTMP2}")
    I(f"v_lshlrev_b32 v{vWQ}, {17 if fakeq else 18}, v{SS}")
    I(f"v_add3_u32 v{vWQ}, v{vWQ}, v{vT+3}, s{sTMP}")
    if rotq:
        I(f"s_mul_i32 s{sRQ}, s{sB}, {rotq // 2}")
        I(f"v_add_u32 v{vT+7}, s{sRQ}, v{vLANE}")
        I(f"v_and_b32 v{vT+7}, 15, v{vT+7}")
        I(f"v_and_or_b32 v{vT+7}, v{vLANE}, 48, v{vT+7}")
        I(f"v_lshlrev_b32 v{vT+7}, 2, v{vT+7}")
        I(f"s_lshl_b32 s{sRQ}, s{sRQ}, 14")
    I("s_waitcnt lgkmcnt(0)")
    pstamp(0)
    def mk(b, plo, offlo, size, offhi=None):
        if offlo is None:
            I(f"s_mov_b32 s{b}, s{plo}"); I(f"s_mov_b32 s{b+1}, s{plo+1}")
        else:
            I(f"s_add_u32 s{b}, s{plo}, {offlo}"); I(f"s_addc_u32 s{b+1}, s{plo+1}, 0")
        I(f"s_mov_b32 s{b+2}, {size}"); I(f"s_mov_b32 s{b+3}, 0x20000")
    I(f"s_lshl_b32 s{sTMP}, s{sB}, 10")
    mk(sX, 60, f"s{sTMP}", 1024)
    I(f"s_lshl_b32 s{sTMP}, s2, 20")
    mk(sK, 62, f"s{sTMP}", 1 << 20)
    xl = [I(f"buffer_load_dword v{vT+8+i}, v{vT+7 if rotq else vROW}, {srd(sX)}, s{sROT+i} offen") for i in range(4)]
    I(f"s_mov_b32 s{sISS}, 0")
    issued = [0]
    kvid = {}
    def issue_kv():
        g = issued[0]; issued[0] += 1
        alloc(g)
        s = sK if g < 256 else sV
        if g == 256: I(f"s_mov_b32 s{sISS}, 0")
        kvid[g] = I(f"buffer_load_dwordx4 {slot_of[g][0]}[{slot(g)}:{slot(g)+3}], v{vKV}, {srd(s)}, s{sISS} offen offset:{(g&3)*1024}{kp if g < 256 else vp}")
        if (g & 3) == 3 and g != 255 and g != 511: I(f"s_add_u32 s{sISS}, s{sISS}, 16384")
    wqid = []
    def issue_wq():
        f = len(wqid)
        if rotq:
            I(f"s_add_u32 s{sWOFF}, s{sRQ}, {f*8192}")
            I(f"s_and_b32 s{sWOFF}, s{sWOFF}, 0x3ffff")
        else: I(f"s_mov_b32 s{sWOFF}, {f*8192}")
        wqid.append(I(f"buffer_load_dwordx4 a[{4*f}:{4*f+3}], v{vWQ}, {srd(sWQ)}, s{sWOFF} offen{qp}"))
    mk(sWQ, 66, None, 4 << 20)
    seq = ['K'] * kfirst
    acc = 0
    nwq = 0
    while nwq < NWQ:
        seq.append('W'); nwq += 1
        acc += ratio[0]
        while acc >= ratio[1] and nwq < NWQ:
            seq.append('K'); acc -= ratio[1]
    seqid = []
    def issue_seq(n):
        if seq[n] == 'K': issue_kv()
        else: issue_wq()
        seqid.append(a.vm - 1)
    seqpos = 0
    while seqpos < min(M, len(seq)):
        issue_seq(seqpos); seqpos += 1
    I(f"s_lshl_b32 s{sTMP2}, s{sTB}, 7")
    I(f"s_load_dwordx2 s[{sTAG}:{sTAG+1}], s[82:83], s{sTMP2}")
    I(f"s_lshl_b32 s{sTMP2}, s{sB}, 7")
    I(f"s_load_dwordx2 s[{sTAGP}:{sTAGP+1}], s[82:83], s{sTMP2}")
    mk(sV, 64, f"s{sTMP}", 1 << 20)
    I(f"s_lshl_b32 s{sTMP}, s{sH}, 17")
    mk(sWO, 68, f"s{sTMP}", 1 << 17)
    I(f"s_lshl_b32 s{sTMP}, s{sJF}, 16")
    mk(sWD, 76, f"s{sTMP}", 1 << 16)
    I(f"s_cmp_ge_u32 s{sTC}, 28")
    I(f"s_cselect_b32 s{sWD+2}, 0, s{sWD+2}")
    I(f"s_lshl_b32 s{sTMP}, s{sTB}, 10")
    mk(sXT, 60, f"s{sTMP}", 1024)
    mk(sOUT, 78, None, 8192)
    mk(sWS, 82, None, 0x500000 if stamps else P2AOFF + 0x100000)
    I(f"s_lshl_b32 s{sTMP}, s{sW}, 8")
    I(f"v_lshlrev_b32 v{vWO}, 15, v{SS}")
    I(f"v_add3_u32 v{vWO}, v{vWO}, v{vT+3}, s{sTMP}")
    I(f"v_lshlrev_b32 v{vWD}, 14, v{SS}")
    I(f"v_add3_u32 v{vWD}, v{vWD}, v{vT+3}, s{sTMP}")
    I(f"v_cmp_gt_u32 vcc, 8, v{J16}")
    I(f"v_mov_b32 v{vT+4}, s74")
    I(f"v_mov_b32 v{vT+5}, s72")
    I(f"v_cndmask_b32 v{vGU}, v{vT+4}, v{vT+5}, vcc")
    I(f"v_mov_b32 v{vT+4}, s75")
    I(f"v_mov_b32 v{vT+5}, s73")
    I(f"v_cndmask_b32 v{vGU+1}, v{vT+4}, v{vT+5}, vcc")
    I(f"s_mul_i32 s{sTMP}, s{sW}, {128*3584}")
    I(f"s_lshl_b32 s{sTMP2}, s{sJF}, 7")
    I(f"s_add_u32 s{sTMP}, s{sTMP}, s{sTMP2}")
    I(f"v_mul_u32_u24 v{vT+4}, {32*3584}, v{SS}")
    I(f"v_and_b32 v{vT+5}, 0x70, v{vT+3}")
    I(f"v_add3_u32 v{vT+4}, v{vT+4}, v{vT+5}, s{sTMP}")
    I(f"s_cmp_ge_u32 s{sTC}, 28")
    I(f"s_cselect_b32 s{sTMP}, 0, -1")
    I(f"s_cselect_b32 s{sGUSTEP}, 0, 7168")
    I(f"v_and_b32 v{vT+4}, s{sTMP}, v{vT+4}")
    I(f"v_mov_b32 v{vT+5}, 0")
    I(f"v_lshl_add_u64 v[{vGU}:{vGU+1}], v[{vT+4}:{vT+5}], 0, v[{vGU}:{vGU+1}]")
    I(f"s_mov_b32 s{sGUSTEP+1}, 0")
    I(f"s_lshl_b32 s{sTMP}, s{sW}, 9")
    I(f"v_lshlrev_b32 v{vLW}, 5, v{J16}")
    I(f"v_lshlrev_b32 v{vT+4}, 3, v{SS}")
    I(f"v_add3_u32 v{vLW}, v{vLW}, v{vT+4}, s{sTMP}")
    I(f"s_lshl_b32 s{sTMP}, s2, 12")
    I(f"v_lshl_add_u32 v{vPUB}, v{vLW}, 1, s{sTMP}")
    I(f"s_lshl_b32 s{sTMP}, s{sTB}, 17")
    I(f"s_lshl_b32 s{sTMP2}, s{sTC}, 7")
    I(f"s_add_u32 s{sTMP}, s{sTMP}, s{sTMP2}")
    I(f"s_lshl_b32 s{sTMP2}, s{sW}, 5")
    I(f"s_add_u32 s{sTMP}, s{sTMP}, s{sTMP2}")
    I(f"v_lshrrev_b32 v{vGAT}, 1, v{vLANE}")
    I(f"v_lshlrev_b32 v{vGAT}, 12, v{vGAT}")
    I(f"v_and_b32 v{vT+4}, 16, v{vT+3}")
    I(f"v_add3_u32 v{vGAT}, v{vGAT}, v{vT+4}, s{sTMP}")
    I(f"s_mov_b32 s{sGOFF}, {P1OFF}")
    I(f"v_lshlrev_b32 v{vHROW}, 4, v{vLANE}")
    I(f"v_lshlrev_b32 v{vLO}, 3, v{vLANE}")
    I(f"v_add_u32 v{vLO}, {LO}, v{vLO}")
    I(f"v_add_u32 v{vLGU}, {LGU}, v{vROW}")
    I(f"v_lshlrev_b32 v{vLQ}, 5, v{J16}")
    I(f"v_and_b32 v{vHST}, 4, v{vROW}")
    I(f"v_and_b32 v{vT+4}, 3, v{vLANE}")
    I(f"v_mov_b32 v{vT+5}, 0xffff")
    I(f"v_mov_b32 v{vT+6}, 0xffff0000")
    I(f"v_mov_b32 v{vM0}, 0")
    I(f"v_mov_b32 v{vM1}, 0")
    for val, dst, src in ((0, vM0, vT+5), (1, vM0, vT+6), (2, vM1, vT+5), (3, vM1, vT+6)):
        I(f"v_cmp_eq_u32 vcc, {val}, v{vT+4}")
        I(f"v_cndmask_b32 v{dst}, v{dst}, v{src}, vcc")
    I(f"s_mov_b32 s{sODD}, 0xaaaaaaaa"); I(f"s_mov_b32 s{sODD+1}, 0xaaaaaaaa")
    I(f"s_mov_b32 s{sBIT1}, 0xcccccccc"); I(f"s_mov_b32 s{sBIT1+1}, 0xcccccccc")
    I(f"s_mov_b32 s{sL2E}, {f32(1.4426950408889634)}")
    I(f"s_mov_b32 s{sSCALE}, {f32(128 ** -0.5)}")
    I(f"s_mov_b32 s{sFFFF}, 0xffff")
    I(f"s_mov_b32 s{sP2}, {P2OFF}")
    I(f"s_lshl_b32 s{sTMP}, s{sTB}, 10")
    I(f"s_lshl_b32 s{sTMP2}, s{sTC}, 5")
    I(f"s_add_u32 s{sOUTO}, s{sTMP}, s{sTMP2}")
    I(f"s_lshl_b32 s{sTMP2}, s{sW}, 3")
    I(f"s_add_u32 s{sOUTO}, s{sOUTO}, s{sTMP2}")
    I(f"s_lshl_b32 s{sHST}, s{sOUTO}, 2")
    I(f"s_add_u32 s{sHST}, s{sHST}, {HOFF}")
    I(f"s_lshl_b32 s{sTMP}, s{sTB}, 12")
    I(f"s_lshl_b32 s{sROT}, s{sW}, 10")
    I(f"s_add_u32 s{sROT}, s{sROT}, s{sTMP}")
    I(f"s_add_u32 s{sROT}, s{sROT}, {HOFF}")
    I(f"s_add_u32 s{sHSTA}, s{sHST}, {HAOFF - HOFF}")
    I(f"s_add_u32 s{sROTA}, s{sROT}, {HAOFF - HOFF}")
    I(f"s_mov_b32 s{sP2A}, {P2AOFF}")
    I(f"v_mov_b32 v{vMAX}, 0xff800000")
    I("s_waitcnt lgkmcnt(0)")
    for tg in (sTAG, sTAGP):
        I(f"s_mul_i32 s{tg}, s{tg}, 1664525")
        I(f"s_add_u32 s{tg}, s{tg}, 1013904223")
        I(f"s_mul_i32 s{tg+1}, s{tg+1}, 22695477")
        I(f"s_add_u32 s{tg+1}, s{tg+1}, 1")
    I(f"v_mov_b32 v{vPB+2}, s{sTAGP}")
    I(f"v_mov_b32 v{vPB+3}, s{sTAGP+1}")
    pstamp(2)
    a.wait_vm(xl[3])
    pstamp(3)
    X0, X1 = vT, vT + 1
    ln([vT + 8 + i for i in range(4)], vP, vP + 1, vS)
    pstamp(4)
    for u in range(4):
        for r in range(2):
            afrag(vA + 4 * u + 2 * r, vP + r, u)
    base = xl[3] + 1
    fdone = 0
    def do_wq_upto(idx):
        nonlocal fdone
        while fdone < len(wqid) and wqid[fdone] <= idx:
            f = fdone; fdone += 1
            aa, u, r = f >> 3, (f >> 1) & 3, f & 1
            mfma2(vA + 4 * u + 2 * r, "a", 4 * f, aa, f == 0)
    while seqpos < len(seq):
        idx = seqid[seqpos - M]
        a.wait_vm(idx)
        issue_seq(seqpos); seqpos += 1
        do_wq_upto(idx)
    kleft = qextra
    while fdone < NWQ:
        idx = wqid[fdone]
        a.wait_vm(idx)
        while issued[0] - sum(1 for g in kvid if kvid[g] <= idx) < N: issue_kv()
        do_wq_upto(idx)
    for _ in range(qdelay):
        a.wait_vm(kvid[issued[0] - N]); issue_kv()
    pstamp(8)
    swap_reduce(vT)
    I(f"ds_write_b64 v{vLW}, v[{vT}:{vT+1}] offset:{LQ}")
    if qextra > 0: issue_kv()
    I("s_waitcnt lgkmcnt(0)")
    I("s_barrier")
    if qextra > 1: issue_kv()
    pstamp(9)
    for w in range(4):
        I(f"ds_read_b128 v[{vS+8*(w&1)}:{vS+8*(w&1)+3}], v{vLQ} offset:{LQ+w*512}" if w < 2 else f"ds_read_b128 v[{vA+8*(w&1)}:{vA+8*(w&1)+3}], v{vLQ} offset:{LQ+w*512}")
        I(f"ds_read_b128 v[{vS+8*(w&1)+4}:{vS+8*(w&1)+7}], v{vLQ} offset:{LQ+w*512+16}" if w < 2 else f"ds_read_b128 v[{vA+8*(w&1)+4}:{vA+8*(w&1)+7}], v{vLQ} offset:{LQ+w*512+16}")
    I("s_waitcnt lgkmcnt(0)")
    for i in range(8): I(f"v_add_f32 v{vS+i}, v{vS+i}, v{vS+8+i}")
    for i in range(8): I(f"v_add_f32 v{vA+i}, v{vA+i}, v{vA+8+i}")
    for i in range(8): I(f"v_add_f32 v{vS+i}, v{vS+i}, v{vA+i}")
    if qextra > 2: issue_kv()
    for i in range(4): I(f"v_cvt_pk_bf16_f32 v{vQ+i}, v{vS+2*i}, v{vS+2*i+1}")
    stamp()

    side = []
    side_last = [0]
    def mkside():
        def clr():
            I(f"s_and_b32 s{sTMP}, s{sOUTO}, 1023")
            I(f"buffer_load_dword v{vXRES}, v{vHST}, {srd(sXT)}, s{sTMP} offen")
        side.append(clr)
        def wo(f):
            def g():
                assert 128 + 4 * f not in busy_a
                I(f"s_mov_b32 s{sWOFF}, {(f>>2)*4096}")
                I(f"buffer_load_dwordx4 a[{128+4*f}:{128+4*f+3}], v{vWO}, {srd(sWO)}, s{sWOFF} offen offset:{(f&3)*1024}{wp}")
            return g
        def gu(f):
            def g():
                side_last[0] = I(f"global_load_dwordx4 a[{4*f}:{4*f+3}], v[{vGU}:{vGU+1}], off offset:{(f&1)*3584}{fp}")
                if f & 1: I(f"v_lshl_add_u64 v[{vGU}:{vGU+1}], v[{vGU}:{vGU+1}], 0, s[{sGUSTEP}:{sGUSTEP+1}]")
            return g
        def wd(f):
            def g():
                I(f"s_mov_b32 s{sWOFF}, {(f>>2)*4096}")
                I(f"buffer_load_dwordx4 v[{vWDF+4*f}:{vWDF+4*f+3}], v{vWD}, {srd(sWD)}, s{sWOFF} offen offset:{(f&3)*1024}{fp}")
            return g
        for f in range(32): side.append(wo(f))
        for f in range(32): side.append(gu(f))
        for f in range(16): side.append(wd(f))
    mkside()
    if noside: side = side[:1]
    deferred = side[len(side) - ND:] if ND else []
    side = side[:len(side) - ND]
    late_cs = ND > 16
    side_steps = {}
    for k in range(len(side)):
        pos = wstart + (wend - wstart) * k // len(side)
        side_steps.setdefault(pos, []).append(side[k])

    work = []
    def push_group(g4):
        B, aa = g4 >> 2, g4 & 3
        def D(e):
            def f():
                src = []
                for c in range(4):
                    g = 4 * g4 + c
                    if slot_of[g][0] == "a":
                        I(f"v_accvgpr_read_b32 v{vA+c}, a{slot(g)+e}"); src.append(vA + c)
                    else: src.append(slot(g) + e)
                for c in range(4):
                    I(f"v_dot2_f32_bf16 v{vP+c}, v{src[c]}, v{vQ+e}, " + ("0" if e == 0 else f"v{vP+c}"))
                if e == 3:
                    for c in range(4): release(4 * g4 + c)
            return f
        def Rd():
            I(f"v_add_f32_dpp v{vP}, v{vP}, v{vP} row_ror:8 row_mask:0xf bank_mask:0x3")
            I(f"v_add_f32_dpp v{vP+1}, v{vP+1}, v{vP+1} row_ror:8 row_mask:0xf bank_mask:0x3")
            I(f"v_add_f32_dpp v{vP}, v{vP+2}, v{vP+2} row_ror:8 row_mask:0xf bank_mask:0xc")
            I(f"v_add_f32_dpp v{vP+1}, v{vP+3}, v{vP+3} row_ror:8 row_mask:0xf bank_mask:0xc")
            I(f"v_add_f32_dpp v{vG+aa}, v{vP}, v{vP} row_half_mirror row_mask:0xf bank_mask:0x5")
            I(f"v_add_f32_dpp v{vG+aa}, v{vP+1}, v{vP+1} row_half_mirror row_mask:0xf bank_mask:0xa")
        def F1():
            for q in range(4):
                I(f"v_add_f32_dpp v{vG+q}, v{vG+q}, v{vG+q} quad_perm:[1,0,3,2] row_mask:0xf bank_mask:0xf")
            I(f"v_cndmask_b32 v{vG}, v{vG}, v{vG+1}, s[{sODD}:{sODD+1}]")
            I(f"v_cndmask_b32 v{vG+2}, v{vG+2}, v{vG+3}, s[{sODD}:{sODD+1}]")
            I(f"v_add_f32_dpp v{vG}, v{vG}, v{vG} quad_perm:[2,3,0,1] row_mask:0xf bank_mask:0xf")
            I(f"v_add_f32_dpp v{vG+2}, v{vG+2}, v{vG+2} quad_perm:[2,3,0,1] row_mask:0xf bank_mask:0xf")
            I(f"v_cndmask_b32 v{vS+B}, v{vG}, v{vG+2}, s[{sBIT1}:{sBIT1+1}]")
        def F2():
            I(f"v_cvt_pk_bf16_f32 v{vS+B}, v{vS+B}, v{vS+B}")
            I(f"v_and_b32 v{vS+B}, 0xffff0000, v{vS+B}")
            I(f"v_mul_f32 v{vS+B}, s{sSCALE}, v{vS+B}")
            I(f"v_cvt_pk_bf16_f32 v{vS+B}, v{vS+B}, v{vS+B}")
            I(f"v_and_b32 v{vS+B}, 0xffff0000, v{vS+B}")
            I(f"v_max_f32 v{vMAX}, v{vMAX}, v{vS+B}")
        work.extend([D(0), D(1), D(2), D(3), Rd])
        if aa == 3: work.extend([F1, F2])
    if pf or pft:
        I(f"s_getpc_b64 s[{sPC}:{sPC+1}]")
        I("L_pc:")
        I(f"s_lshl_b32 s{sTMP}, s{sW}, 7")
        I(f"s_add_u32 s{sPC}, s{sPC}, s{sTMP}")
        I(f"s_addc_u32 s{sPC+1}, s{sPC+1}, 0")
    def codepf(i):
        if i % 16 == 0: I(f"L_blk{i // 16}:")
        if pf and i % 16 == 3 and i // 16 + pfd < 32:
            I(f"s_mov_b32 s{sPFD-1}, L_blk{i // 16 + pfd}-L_pc")
            for k in range(pf if i // 16 + pfd < 17 else (pf + 1) // 2 + 1):
                I(f"s_load_dword s{sPFD}, s[{sPC}:{sPC+1}], s{sPFD-1} offset:{512 * k}")
        if pft and i == 451:
            I(f"s_mov_b32 s{sPFD-1}, L_tail-L_pc")
            for k in range(6):
                I(f"s_load_dword s{sPFD}, s[{sPC}:{sPC+1}], s{sPFD-1} offset:{512 * k}")
    I1 = issued[0]
    boost = fB or fC or ctl
    I(f"s_mov_b32 s{sLVL}, 0")
    def nominal(i):
        ns = sum(len(v) for k, v in side_steps.items() if k <= i)
        return T0 + Ts * (i + 1) + Tside * ns
    def control(i):
        if not ctl or i < ustart: return
        if i % U == 0: I(f"s_memrealtime s[{sNOW}:{sNOW+1}]")
        if i % U == 2:
            I("s_waitcnt lgkmcnt(0)")
            I(f"s_sub_u32 s{sLVL}, s{sNOW}, s{sT0}")
            I(f"s_sub_i32 s{sLVL}, s{sLVL}, {int(nominal(i - 3) / 10)}")
            I(f"s_mul_i32 s{sLVL}, s{sLVL}, {int(65536 * 10 / dl)}")
            I(f"s_ashr_i32 s{sLVL}, s{sLVL}, 16")
    if fB:
        I(f"s_getreg_b32 s{sTMP}, hwreg(HW_REG_XCC_ID, 0, 1)")
        I(f"s_cmp_eq_u32 s{sTMP}, 0")
        I("s_cselect_b64 vcc, -1, 0")
    accs = [0.0, 0.0]
    def paced1(i, n):
        tgt = min(i + 2 + n, 512)
        if issued[0] >= tgt: return
        if issued[0] == tgt - 1 and i + 1 in kvid:
            accs[1] += fC; accs[0] += fB
            if ctl and i > ustart and i % cands == 0:
                j = (i // cands) % nl
                th = int(format(j, f"0{nl.bit_length()-1}b")[::-1], 2) + 1
                I(f"s_cmp_ge_i32 s{sLVL}, {th}")
                I(f"s_cbranch_scc1 L_b{i}")
                I(f"s_waitcnt vmcnt({a.vm - 1 - kvid[i+1]})")
                I(f"L_b{i}:")
            elif accs[1] >= 1: accs[1] -= 1
            elif accs[0] >= 1:
                accs[0] -= 1
                I(f"s_cbranch_vccnz L_b{i}")
                I(f"s_waitcnt vmcnt({a.vm - 1 - kvid[i+1]})")
                I(f"L_b{i}:")
            else: a.wait_vm(kvid[i + 1])
        while issued[0] < tgt: issue_kv()
    def paced2(i, n):
        tgt = min(i + 3 + n, 512)
        if issued[0] >= tgt: return
        while issued[0] < tgt - 1:
            a.wait_vm(kvid[issued[0] - n]); issue_kv()
        if i <= ustart:
            a.wait_vm(kvid[i + 2])
        else:
            k = i & 15
            ta = 1 if k == 0 else 2 if k == 8 else 3 if k % 4 == 0 else 4 if k % 2 == 0 else 5
            tb = 6 if k % 4 == 0 else 7 if k % 2 == 0 else 8
            if kvid[i + 1] >= a.vm_done:
                I(f"s_cmp_ge_i32 s{sLVL}, {tb}")
                I(f"s_cbranch_scc1 L_b{i}")
                I(f"s_waitcnt vmcnt({a.vm - 1 - kvid[i+1]})")
            I(f"s_cmp_ge_i32 s{sLVL}, {ta}")
            I(f"s_cbranch_scc1 L_b{i}")
            I(f"s_waitcnt vmcnt({a.vm - 1 - kvid[i+2]})")
            I(f"L_b{i}:")
        issue_kv()
    paced = paced2 if two else paced1
    for i in range(256):
        a.wait_vm(kvid[i])
        control(i)
        codepf(i)
        if boost and i + 1 + N >= I1 + i // cu: paced(i, N)
        tgt = max(i + 1 + N, I1 + i // cu)
        while issued[0] < tgt: issue_kv()
        for fn in side_steps.get(i, []): fn()
        if kstamps and i % 32 == 31: pstamp(i // 32, True)
        if (i & 3) == 3:
            if nokc and i > 64:
                for c in range(4): release(i - 3 + c)
            else: push_group(i >> 2)
        n = 1 if len(work) <= 4 - (i & 3) + 0 else 2
        for _ in range(min(n, len(work))): work.pop(0)()
    nV = NV or N
    xleft = [Tx]
    def xissue():
        if xleft[0] > 0:
            xleft[0] -= 1; issue_kv()
    while work: work.pop(0)()
    stamp()
    xissue()
    wave_reduce(vMAX, vT, "v_max_f32")
    I(f"v_mul_f32 v{vT}, s{sL2E}, v{vMAX}")
    for B in range(16): I(f"v_fma_f32 v{vS+B}, v{vS+B}, s{sL2E}, -v{vT}")
    for B in range(16): I(f"v_exp_f32 v{vS+B}, v{vS+B}")
    xissue()
    for k in range(8): I(f"v_add_f32 v{vA+k}, v{vS+2*k}, v{vS+2*k+1}")
    for k in range(4): I(f"v_add_f32 v{vA+k}, v{vA+k}, v{vA+4+k}")
    for k in range(2): I(f"v_add_f32 v{vA+k}, v{vA+k}, v{vA+2+k}")
    I(f"v_add_f32 v{vT+3}, v{vA}, v{vA+1}")
    wave_reduce(vT + 3, vT + 1, "v_add_f32")
    I(f"v_mov_b32 v{vT+2}, v{vT}")
    I(f"s_lshl_b32 s{sTMP}, s{sW}, 3")
    I(f"v_mov_b32 v{vT+1}, s{sTMP}")
    I("s_mov_b64 exec, 1")
    I(f"ds_write_b64 v{vT+1}, v[{vT+2}:{vT+3}] offset:{LML}")
    I("s_mov_b64 exec, -1")
    I(f"v_mov_b32 v{vT+1}, 0")
    xissue()
    I("s_waitcnt lgkmcnt(0)")
    I("s_barrier")
    xissue()
    I(f"ds_read_b128 v[{vA}:{vA+3}], v{vT+1} offset:{LML}")
    I(f"ds_read_b128 v[{vA+4}:{vA+7}], v{vT+1} offset:{LML+16}")
    I("s_waitcnt lgkmcnt(0)")
    I(f"v_max3_f32 v{vT+5}, v{vA}, v{vA+2}, v{vA+4}")
    I(f"v_max_f32 v{vT+5}, v{vT+5}, v{vA+6}")
    for k in range(4): I(f"v_sub_f32 v{vA+2*k}, v{vA+2*k}, v{vT+5}")
    I(f"v_sub_f32 v{vT}, v{vT}, v{vT+5}")
    for k in range(4): I(f"v_exp_f32 v{vA+2*k}, v{vA+2*k}")
    I(f"v_exp_f32 v{vT}, v{vT}")
    I(f"v_mul_f32 v{vA}, v{vA}, v{vA+1}")
    I(f"v_mul_f32 v{vA+4}, v{vA+4}, v{vA+5}")
    I(f"v_fmac_f32 v{vA}, v{vA+2}, v{vA+3}")
    I(f"v_fmac_f32 v{vA+4}, v{vA+6}, v{vA+7}")
    I(f"v_add_f32 v{vA}, v{vA}, v{vA+4}")
    I(f"v_rcp_f32 v{vA}, v{vA}")
    I(f"v_mul_f32 v{vT}, v{vT}, v{vA}")
    while xleft[0] > 0: xissue()
    for B in range(16): I(f"v_mul_f32 v{vS+B}, v{vS+B}, v{vT}")
    for B in range(16): I(f"v_cvt_pk_bf16_f32 v{vS+B}, v{vS+B}, v{vS+B}")
    stamp()
    cnt_id = None
    for i in range(256, 512):
        B, t = (i - 256) >> 4, i & 15
        u, c = t >> 2, t & 3
        A = vA + 2 * ((i >> 2) & 1)
        if i == 256: afrag(A, vS, 0)
        a.wait_vm(kvid[i])
        if not (NE and i >= 512 - E): control(i)
        codepf(i)
        if boost and not (NE and i >= 512 - E): paced(i, nV)
        tgt = min(i + 1 + (NE if (NE and i >= 512 - E) else nV), 512)
        while issued[0] < tgt: issue_kv()
        for fn in side_steps.get(i, []): fn()
        if issued[0] == 512:
            for _ in range(min(dper, len(deferred))): deferred.pop(0)()
        mfma2(A, "v", slot(i), c, i == 256)
        release(i)
        if kstamps and i % 32 == 31: pstamp(i // 32, True)
        if fast and i == pretouch:
            I(f"buffer_load_dwordx4 v[{vT+4}:{vT+7}], v{vHROW}, {srd(sWS)}, s{sROTA} offen sc1")
        if fast and i == pretouch + 4:
            I(f"buffer_load_dwordx4 v[{vT+4}:{vT+7}], v{vGAT}, {srd(sWS)}, s{sP2A} offen sc1")
        if late_cs: pass
        elif i == cs_start - 1:
            assert side_last[0] < a.vm_done
            I(f"v_and_b32 v{vA+4}, 0x3f803f80, v{vM0}")
            I(f"v_and_b32 v{vA+5}, 0x3f803f80, v{vM1}")
        if not late_cs and cs_start <= i < cs_start + 32:
            mfma2(vA + 4, "a", 4 * (i - cs_start), 0, i == cs_start, acc=vT + 8)
        if not late_cs and i == cs_start + 33:
            swap_reduce(vT, acc=vT + 8)
            I(f"ds_write_b64 v{vLW}, v[{vT}:{vT+1}] offset:{LCS}")
        if c == 0 and i + 4 < 512:
            j = i + 4
            afrag(vA + 2 * ((j >> 2) & 1), vS + ((j - 256) >> 4), (j & 15) >> 2)
    stamp()
    I("L_tail:")
    tstamp()
    swap_reduce(vT)
    I(f"ds_write_b64 v{vLW}, v[{vT}:{vT+1}] offset:{LO}")
    for _ in range(min(3, len(deferred))): deferred.pop(0)()
    I("s_waitcnt lgkmcnt(0)")
    tstamp()
    I("s_barrier")
    tstamp()
    I(f"ds_read2_b64 v[{vT}:{vT+3}], v{vLO} offset0:0 offset1:64")
    I(f"ds_read2_b64 v[{vT+4}:{vT+7}], v{vLO} offset0:128 offset1:192")
    vCS = vS
    def read_cs():
        for w in range(4):
            I(f"ds_read2st64_b32 v[{vCS+2*w}:{vCS+2*w+1}], v{vLGU} offset0:{(LCS-LGU)//256+2*w} offset1:{(LCS-LGU)//256+2*w+1}")
    if not late_cs: read_cs()
    for _ in range(min(3, len(deferred))): deferred.pop(0)()
    I("s_waitcnt lgkmcnt(0)" if (tstamps or late_cs) else "s_waitcnt lgkmcnt(4)")
    tstamp()
    I(f"v_add_f32 v{vT}, v{vT}, v{vT+2}")
    I(f"v_add_f32 v{vT+1}, v{vT+1}, v{vT+3}")
    I(f"v_add_f32 v{vT+4}, v{vT+4}, v{vT+6}")
    I(f"v_add_f32 v{vT+5}, v{vT+5}, v{vT+7}")
    I(f"v_add_f32 v{vT}, v{vT}, v{vT+4}")
    I(f"v_add_f32 v{vT+1}, v{vT+1}, v{vT+5}")
    I(f"v_cvt_pk_bf16_f32 v{vP}, v{vT}, v{vT}")
    I(f"v_cvt_pk_bf16_f32 v{vP+1}, v{vT+1}, v{vT+1}")
    gemv_il([vP, vP + 1], "a", 128, deferred)
    tstamp()
    swap_reduce(vPB)
    tstamp()
    I(f"buffer_store_dwordx4 v[{vPB}:{vPB+3}], v{vPUB}, {srd(sWS)}, s{sGOFF} offen {spol}")
    stamp()
    vR = vG
    vPUB2 = vWQ

    def poll(label, S, voff, soff, nres, pre=None, th=0, soffA=None, lazy=None, delay=0):
        ld = lambda so: f"buffer_load_dwordx4 v[{S}:{S+3}], v{voff}, {srd(sWS)}, s{so} offen {lpol}"
        def check():
            I("s_waitcnt vmcnt(0)")
            I(f"v_cmp_eq_u64 vcc, s[{sTAG}:{sTAG+1}], v[{S+2}:{S+3}]")
            for r in range(nres): I(f"v_cndmask_b32 v{vR+r}, v{vR+r}, v{S+r}, vcc")
            I("s_andn2_b64 exec, exec, vcc")
            I(f"s_cbranch_scc0 {label}_ok")
        if delay:
            if pre: pre()
            I(f"s_sleep {delay}")
        a.X(ld(soffA if soffA else soff))
        if pre and not delay: pre()
        I(f"s_mov_b32 s{sCNT}, {SPIN}")
        I(f"{label}:")
        check()
        if th:
            I(f"s_bcnt1_i32_b64 s{sTMP}, exec")
            I(f"s_cmp_le_u32 s{sTMP}, {th}")
            I(f"s_cbranch_scc1 {label}_f")
            I(f"s_sleep {slow}")
            I(f"{label}_f:")
        if psl and not th: I(f"s_sleep {psl}")
        I(f"s_sub_u32 s{sCNT}, s{sCNT}, 1")
        if soffA:
            I(f"s_and_b32 s{sTMP}, s{sCNT}, {NA-1}")
            I(f"s_cselect_b32 s{sTMP}, s{soffA}, s{soff}")
            if lazy:
                I(f"s_cbranch_scc1 {label}_n")
                I("s_mov_b64 s[8:9], exec")
                I("s_mov_b64 exec, 3")
                a.X(lazy)
                I("s_mov_b64 exec, s[8:9]")
                I(f"{label}_n:")
            a.X(ld(sTMP))
        else:
            a.X(ld(soff))
        I(f"s_cmp_lg_u32 s{sCNT}, 0")
        I(f"s_cbranch_scc1 {label}")
        I(f"{label}_ok:")
        I("s_mov_b64 exec, -1")

    def colsum():
        x0, x1, t0, t1 = vR, vR + 1, vT + 2, vT + 3
        for r in (8, 4, 2):
            I(f"v_add_f32_dpp v{x0}, v{x0}, v{x0} row_ror:{r} row_mask:0xf bank_mask:0xf")
            I(f"v_add_f32_dpp v{x1}, v{x1}, v{x1} row_ror:{r} row_mask:0xf bank_mask:0xf")
        for sw in ("v_permlane16_swap_b32", "v_permlane32_swap_b32"):
            I(f"v_mov_b32 v{t0}, v{x0}")
            I(f"v_mov_b32 v{t1}, v{x1}")
            I(f"{sw} v{x0}, v{t0}")
            I(f"{sw} v{x1}, v{t1}")
            I(f"v_add_f32 v{x0}, v{x0}, v{t0}")
            I(f"v_add_f32 v{x1}, v{x1}, v{t1}")
        I(f"v_cvt_pk_bf16_f32 v{x0}, v{x0}, v{x1}")
        I(f"v_lshlrev_b32 v{t0}, 16, v{x0}")
        I(f"v_and_b32 v{t1}, 0xffff0000, v{x0}")

    def pre1():
        I(f"s_lshl_b32 s{sTMP}, s{sTB}, 5")
        I(f"s_add_u32 s{sTMP}, s{sTMP}, s{sTC}")
        I(f"s_lshl_b32 s{sTMP}, s{sTMP}, 12")
        I(f"v_lshl_add_u32 v{vPUB2}, v{vLW}, 1, s{sTMP}")
        I(f"v_mov_b32 v{vPB+2}, s{sTAG}")
        I(f"v_mov_b32 v{vPB+3}, s{sTAG+1}")
        I(f"s_getreg_b32 s{sXCC}, hwreg(HW_REG_XCC_ID, 0, 4)")
        I(f"v_mov_b32 v{vPB+1}, s{sXCC}")
        I(f"v_lshlrev_b32 v{vH}, 16, v{vXRES}")
        I(f"v_and_b32 v{vH+1}, 0xffff0000, v{vXRES}")
        if late_cs:
            I(f"v_and_b32 v{vA+4}, 0x3f803f80, v{vM0}")
            I(f"v_and_b32 v{vA+5}, 0x3f803f80, v{vM1}")
            I(f"s_waitcnt vmcnt({a.vm - 1 - side_last[0] + 1})")
            for f in range(32): mfma2(vA + 4, "a", 4 * f, 0, f == 0)
            swap_reduce(vT)
            I(f"ds_write_b64 v{vLW}, v[{vT}:{vT+1}] offset:{LCS}")
            I("s_waitcnt lgkmcnt(0)")
            I("s_barrier")
            read_cs()
        I("s_waitcnt lgkmcnt(0)")
        I(f"v_add_f32 v{vCS}, v{vCS}, v{vCS+2}")
        I(f"v_add_f32 v{vCS+1}, v{vCS+1}, v{vCS+3}")
        I(f"v_add_f32 v{vCS+4}, v{vCS+4}, v{vCS+6}")
        I(f"v_add_f32 v{vCS+5}, v{vCS+5}, v{vCS+7}")
        I(f"v_add_f32 v{vCS}, v{vCS}, v{vCS+4}")
        I(f"v_add_f32 v{vCS+1}, v{vCS+1}, v{vCS+5}")
    poll("L_p1", RING0, vGAT, sGOFF, 2, pre1, TH, delay=d1)
    colsum()
    I(f"v_add_f32 v{vT+2}, v{vT+2}, v{vH}")
    I(f"v_add_f32 v{vT+3}, v{vT+3}, v{vH+1}")
    I(f"v_cvt_pk_bf16_f32 v{vPB}, v{vT+2}, v{vT+3}")
    I("s_mov_b64 exec, 3")
    if fast: I(f"buffer_store_dwordx4 v[{vPB}:{vPB+3}], v{vHROW}, {srd(sWS)}, s{sHSTA} offen")
    HB = f"buffer_store_dwordx4 v[{vPB}:{vPB+3}], v{vHROW}, {srd(sWS)}, s{sHST} offen {spol}"
    if not fast: I(HB)
    I("s_mov_b64 exec, -1")
    stamp()
    if not align:
        I(f"s_cmp_ge_u32 s{sTC}, 28")
        I("s_cbranch_scc1 L_noffn")
    def pre2():
        I(f"v_lshlrev_b32 v{vH}, 16, v{vPB}")
        I(f"v_and_b32 v{vH+1}, 0xffff0000, v{vPB}")
    poll("L_h", RING0 + 16, vHROW, sROT, 2 if fast else 1, pre2, soffA=sROTA if fast else None, lazy=HB if fast else None, delay=dH)
    if fast:
        I("s_mov_b64 exec, 3")
        I(HB)
        I("s_mov_b64 exec, -1")
        I(f"v_cmp_ne_u32 s[8:9], s{sXCC}, v{vR+1}")
    stamp()
    tstamp()
    f0, f1, s1, t = vS + 8, vS + 9, vS + 10, vS + 11
    I(f"v_lshlrev_b32 v{f0}, 16, v{vR}")
    I(f"v_and_b32 v{f1}, 0xffff0000, v{vR}")
    I(f"v_and_b32 v{vP}, 0xffff, v{vR}")
    I(f"v_lshrrev_b32 v{vP+1}, 16, v{vR}")
    I(f"v_or_b32 v{vP}, v{vP}, v{f0}")
    I(f"v_or_b32 v{vP+1}, v{vP+1}, v{f1}")
    I(f"v_add_f32 v{s1}, v{f0}, v{f1}")
    stats = []
    def red(x):
        for r in (8, 4, 2, 1):
            stats.append(f"v_add_f32_dpp v{x}, v{x}, v{x} row_ror:{r} row_mask:0xf bank_mask:0xf")
        for sw in ("v_permlane16_swap_b32", "v_permlane32_swap_b32"):
            stats.append(f"v_mov_b32 v{t}, v{x}")
            stats.append(f"{sw} v{x}, v{t}")
            stats.append(f"v_add_f32 v{x}, v{x}, v{t}")
    red(s1)
    stats.append(f"v_mul_f32 v{s1}, {f32(1/128)}, v{s1}")
    stats.append(f"v_sub_f32 v{f0}, v{f0}, v{s1}")
    stats.append(f"v_sub_f32 v{f1}, v{f1}, v{s1}")
    stats.append(f"v_mul_f32 v{f0}, v{f0}, v{f0}")
    stats.append(f"v_fmac_f32 v{f0}, v{f1}, v{f1}")
    red(f0)
    stats.append(f"v_mov_b32 v{f1}, v{s1}")
    gemv_il([vP, vP + 1], "a", 0, stats)
    tstamp()
    I(f"s_lshl_b32 s{sTMP}, s{sW}, 3")
    I(f"v_mov_b32 v{t}, s{sTMP}")
    I("s_mov_b64 exec, 1")
    I(f"ds_write_b64 v{t}, v[{f0}:{f1}] offset:{LST}")
    if fast:
        I("s_or_b32 s8, s8, s9")
        I(f"v_mov_b32 v{s1}, s8")
        I(f"v_lshrrev_b32 v{t}, 1, v{t}")
        I(f"ds_write_b32 v{t}, v{s1} offset:{LFL}")
    I("s_mov_b64 exec, -1")
    I(f"v_mov_b32 v{t}, 0")
    swap_reduce(vT)
    I(f"ds_write_b64 v{vLW}, v[{vT}:{vT+1}] offset:{LGU}")
    I("s_waitcnt lgkmcnt(0)")
    I("s_barrier")
    tstamp()
    Z = vA
    I(f"ds_read_b128 v[{Z}:{Z+3}], v{t} offset:{LST}")
    I(f"ds_read_b128 v[{Z+4}:{Z+7}], v{t} offset:{LST+16}")
    for w in range(4):
        I(f"ds_read2st64_b32 v[{vT+2*w}:{vT+2*w+1}], v{vLGU} offset0:{2*w} offset1:{2*w+1}")
    if fast: I(f"ds_read_b128 v[{vS+12}:{vS+15}], v{t} offset:{LFL}")
    I("s_waitcnt lgkmcnt(0)" if tstamps else "s_waitcnt lgkmcnt(5)" if fast else "s_waitcnt lgkmcnt(4)")
    m, q = Z + 8, Z + 9
    I(f"v_add_f32 v{m}, v{Z+1}, v{Z+3}")
    I(f"v_add_f32 v{q}, v{Z+5}, v{Z+7}")
    I(f"v_add_f32 v{Z}, v{Z}, v{Z+2}")
    I(f"v_add_f32 v{m}, v{m}, v{q}")
    I(f"v_add_f32 v{Z+4}, v{Z+4}, v{Z+6}")
    I(f"v_mul_f32 v{m}, 0.25, v{m}" if False else f"v_mul_f32 v{m}, {f32(0.25)}, v{m}")
    I(f"v_add_f32 v{Z}, v{Z}, v{Z+4}")
    for k in (1, 3, 5, 7): I(f"v_sub_f32 v{Z+k}, v{Z+k}, v{m}")
    I(f"v_mul_f32 v{Z+1}, v{Z+1}, v{Z+1}")
    I(f"v_mul_f32 v{Z+5}, v{Z+5}, v{Z+5}")
    I(f"v_fmac_f32 v{Z+1}, v{Z+3}, v{Z+3}")
    I(f"v_fmac_f32 v{Z+5}, v{Z+7}, v{Z+7}")
    I(f"v_mul_f32 v{Z}, {f32(1/512)}, v{Z}")
    I(f"v_add_f32 v{Z+1}, v{Z+1}, v{Z+5}")
    I(f"v_fmac_f32 v{Z}, {f32(0.25)}, v{Z+1}")
    I(f"v_cvt_pk_bf16_f32 v{q}, v{m}, v{Z}")
    I("s_waitcnt lgkmcnt(0)")
    I(f"v_add_f32 v{vT}, v{vT}, v{vT+2}")
    I(f"v_lshlrev_b32 v{m}, 16, v{q}")
    I(f"v_and_b32 v{q}, 0xffff0000, v{q}")
    I(f"v_add_f32 v{vT+1}, v{vT+1}, v{vT+3}")
    I(f"v_add_f32 v{q}, {f32(1e-5)}, v{q}")
    I(f"v_add_f32 v{vT+4}, v{vT+4}, v{vT+6}")
    I(f"v_cvt_pk_bf16_f32 v{q}, v{q}, v{q}")
    I(f"v_add_f32 v{vT+5}, v{vT+5}, v{vT+7}")
    I(f"v_and_b32 v{q}, 0xffff0000, v{q}")
    I(f"v_add_f32 v{vT}, v{vT}, v{vT+4}")
    I(f"v_sqrt_f32 v{q}, v{q}")
    I(f"v_add_f32 v{vT+1}, v{vT+1}, v{vT+5}")
    I(f"v_cvt_pk_bf16_f32 v{q}, v{q}, v{q}")
    I(f"v_fma_f32 v{vT}, -v{m}, v{vCS}, v{vT}")
    I(f"v_and_b32 v{q}, 0xffff0000, v{q}")
    I(f"v_fma_f32 v{vT+1}, -v{m}, v{vCS+1}, v{vT+1}")
    I(f"v_rcp_f32 v{q}, v{q}")
    I(f"v_mul_f32 v{vT}, v{vT}, v{q}")
    I(f"v_mul_f32 v{vT+1}, v{vT+1}, v{q}")
    I(f"v_cvt_pk_bf16_f32 v{vT}, v{vT}, v{vT+1}")
    I(f"v_and_b32 v{vT+1}, 0xffff0000, v{vT}")
    I(f"v_lshlrev_b32 v{vT}, 16, v{vT}")
    I(f"v_max_f32 v{vT}, 0, v{vT}")
    I(f"v_mul_f32 v{vT}, v{vT}, v{vT+1}")
    I(f"v_cvt_pk_bf16_f32 v{vP}, v{vT}, v{vT}")
    tstamp()
    gemv_il([vP], "v", vWDF)
    tstamp()
    if fast:
        I(f"v_or3_b32 v{vS+12}, v{vS+12}, v{vS+13}, v{vS+14}")
        I(f"v_or_b32 v{vS+12}, v{vS+12}, v{vS+15}")
        I(f"v_readfirstlane_b32 s8, v{vS+12}")
    swap_reduce(vPB)
    tstamp()
    if align:
        I(f"s_cmp_ge_u32 s{sTC}, 28")
        I("s_cbranch_scc1 L_local")
    if fast:
        I(f"buffer_store_dwordx4 v[{vPB}:{vPB+3}], v{vPUB2}, {srd(sWS)}, s{sP2A} offen")
        I("s_cmp_eq_u32 s8, 0")
        I("s_cbranch_scc1 L_local")
    I(f"buffer_store_dwordx4 v[{vPB}:{vPB+3}], v{vPUB2}, {srd(sWS)}, s{sP2} offen {spol}")
    I("L_local:")
    I(f"s_lshl_b32 s{sTMP}, s{sTC}, 2")
    I(f"s_add_u32 s{sTMP}, s{sTMP}, s{sW}")
    I(f"s_cmp_lg_u32 s{sTMP}, 0")
    I("s_cbranch_scc1 L_noep")
    I(f"s_lshl_b32 s{sTMP}, s{sTB}, 7")
    I("s_mov_b64 exec, 1")
    I(f"buffer_store_dwordx2 v[{vPB+2}:{vPB+3}], v{vHROW}, {srd(sWS)}, s{sTMP} offen")
    I("s_mov_b64 exec, -1")
    I("L_noep:")
    stamp()
    if not align: I("s_branch L_final")
    I("L_noffn:")
    if fast and not align:
        I("s_mov_b64 exec, 3")
        I(HB)
        I("s_mov_b64 exec, -1")
    if not align:
        I(f"v_lshlrev_b32 v{vH}, 16, v{vPB}")
        I(f"v_and_b32 v{vH+1}, 0xffff0000, v{vPB}")
    I("L_final:")
    I(f"v_mov_b32 v{vR}, 0")
    I(f"v_mov_b32 v{vR+1}, 0")
    I(f"s_mov_b32 exec_hi, 0x00ffffff")
    poll("L_p2", RING0 + 32, vGAT, sP2, 2, soffA=sP2A if fast else None, delay=dP)
    colsum()
    I(f"v_add_f32 v{vT+2}, v{vT+2}, v{vH}")
    I(f"v_add_f32 v{vT+3}, v{vT+3}, v{vH+1}")
    I(f"v_cvt_pk_bf16_f32 v{vT}, v{vT+2}, v{vT+3}")
    I("s_mov_b64 exec, 3")
    I(f"buffer_store_dword v{vT}, v{vHST}, {srd(sOUT)}, s{sOUTO} offen")
    I("s_mov_b64 exec, -1")
    if stamps:
        stamp()
        I(f"s_cmp_lg_u32 s{sW}, 0")
        I("s_cbranch_scc1 L_end")
        I("s_waitcnt lgkmcnt(0)")
        I(f"s_lshl_b32 s{sTMP}, s2, 6")
        I(f"s_add_u32 s{sTMP}, s{sTMP}, {STAMPOFF}")
        I(f"v_mov_b32 v{vT+2}, 0")
        I("s_mov_b64 exec, 1")
        for k in range(stamp_n[0]):
            r = 84 if k == 0 else 60 + 2 * (k - 1)
            I(f"v_mov_b32 v{vT+3}, s{r}")
            I(f"buffer_store_dword v{vT+3}, v{vT+2}, {srd(sWS)}, s{sTMP} offen offset:{4*k}")
        if tstamps:
            for k in range(tn[0]):
                r = 10 + 2 * k if k < 9 else [32, 34, 40, 42][k - 9]
                I(f"v_writelane_b32 v91, s{r}, {k}")
        if pstamps:
            I("s_mov_b64 exec, 0xffff")
            I(f"s_add_u32 s60, s{sTMP}, 0x10000")
            I(f"buffer_store_dword v91, v{vROW}, {srd(sWS)}, s60 offen")
            I("s_mov_b64 exec, 1")
        I("s_getreg_b32 s60, hwreg(HW_REG_XCC_ID)")
        I(f"v_mov_b32 v{vT+3}, s60")
        I(f"buffer_store_dword v{vT+3}, v{vT+2}, {srd(sWS)}, s{sTMP} offen offset:60")
    I("L_end:")
    I("s_endpgm")
    body = a.finish()
    out = HEADER + "; @launch grid=(256,1,1) block=(256,1,1) lds=10368\n"
    out += '.amdgcn_target "amdgcn-amd-amdhsa--gfx950"\n.text\n'
    out += f".globl {KNAME}\n.p2align 8\n.type {KNAME},@function\n{KNAME}:\n"
    out += body
    out += f'''.section .rodata,"a"
.p2align 6
.amdhsa_kernel {KNAME}
  .amdhsa_next_free_vgpr 512
  .amdhsa_next_free_sgpr 102
  .amdhsa_accum_offset 256
  .amdhsa_group_segment_fixed_size 0
  .amdhsa_kernarg_size 96
  .amdhsa_user_sgpr_count 2
  .amdhsa_user_sgpr_kernarg_segment_ptr 1
  .amdhsa_system_sgpr_workgroup_id_x 1
.end_amdhsa_kernel
'''
    return out

if __name__ == "__main__":
    import json
    cfg = json.loads(sys.argv[2]) if len(sys.argv) > 2 else {}
    open(sys.argv[1], "w").write(gen(**cfg))
```

```python
import sys
sys.path.insert(0, "gen")
from asmlib import Asm
import struct

KNAME = "sequential_preLN__mha_block_cached__glu_gated_reglu__decode_kernel"
HEADER = open("sequential_preLN__mha_block_cached__glu_gated_reglu__decode.s.ref").read().split("; Override launch")[0]

def f32(x):
    return "0x%08x" % struct.unpack("<I", struct.pack("<f", x))[0]

vLANE, vKV, vWQ, vWO, vWD = 1, 2, 3, 4, 5
vGU = 6
vPUB, vGAT, vROW, vLW, vM0, vM1, vXRES, vMAX = 8, 9, 10, 11, 12, 13, 14, 15
vQ, vP, vG, vS, vA, vACC, vT = 16, 20, 24, 28, 44, 60, 68
vLO, vLGU, vLQ, vHST, vHROW, vH = 84, 85, 86, 87, 88, 89
vPB = 92
RING0 = 96
vWDF = 192
sW, sB, sH, sJF = 3, 4, 5, 6
sK, sV, sWQ, sWO, sWD, sWS, sX, sOUT, sDBG = 8, 12, 16, 20, 24, 28, 32, 36, 40
sISS, sWOFF, sTMP, sTMP2 = 48, 49, 50, 51
sODD, sBIT1 = 52, 54
sCNT, sL2E = 58, 59
sSCALE, sFFFF, sP2, sHST = 44, 45, 46, 47
sGOFF = 86
sROT = 94
sGUSTEP = 98
sOUTO = 100
sTAG = 56
sTAGP = 88
sTB, sTC = 90, 91
sHSTA, sROTA, sP2A = 92, 93, 87
sXCC = 95
sRQ = 7
sNOW, sLVL, sT0 = 80, 101, 84
sPC, sPFD = 78, 83
sXT = 40
LQ, LML, LO, LGU, LCS, LST, LFL = 0, 2048, 4096, 6144, 8192, 10240, 10304
P1OFF, P2OFF, HOFF, STAMPOFF = 0x10000, 0x110000, 0x210000, 0x400000
P2AOFF, HAOFF = 0x220000, 0x218000
SPIN = 200000

def srd(b): return f"s[{b}:{b+3}]"

def gen(N=5, NV=None, R=24, wpol="nt", kvpol="nt", stamps=False, pstamps=False, sleep=4, wstart=40, wend=250, M=11, kfirst=1, ratio=(5, 6), qextra=3, cu=5, Tx=5, noside=False, vpol=None, lpol="sc1", spol="sc1", K=4, gap=1, TH=0, slow=16, cs_start=300, remap=False, fast=False, NA=32, fpol=None, pretouch=470, rawh=True, dH=20, dP=12, psl=0, align=True, NE=8, E=24, hmap=False, kstamps=False, nokc=False, fB=0, fC=0, KC=1, dS=5, rotq=0, tstamps=False, ND=0, dper=2, fakeq=0, qpol=None, qdelay=0, ctl=True, Ts=135.5, T0=2200, Tside=17.5, dl=300, U=16, cands=2, nl=8, ustart=48, d1=16, two=True, pf=4, pft=True, pfd=3, fixt=0, fixref=False):
    a = Asm(); I = a.I
    wp = (" " + wpol) if wpol else ""
    kp = (" " + kvpol) if kvpol else ""
    fp = wp if fpol is None else ((" " + fpol) if fpol else "")
    qp = wp if qpol is None else ((" " + qpol) if qpol else "")
    NWQ = fakeq or 32
    vp = kp if vpol is None else ((" " + vpol) if vpol else "")
    stamp_n = [0]
    def stamp():
        if stamps:
            k = stamp_n[0]; stamp_n[0] += 1
            r = 84 if k == 0 else 60 + 2 * (k - 1)
            I(f"s_memrealtime s[{r}:{r+1}]")
    def pstamp(k, force=False):
        if (pstamps and not kstamps and not tstamps) or force:
            I(f"s_memrealtime s[96:97]")
            I("s_waitcnt lgkmcnt(0)")
            I(f"v_writelane_b32 v91, s96, {k}")
    free = [("v", RING0 + 4 * k) for k in range(R)]
    extra = [("v", vWDF + 4 * k) for k in range(16)] + [("a", 252 - 4 * k) for k in range(28)]
    slot_of = {}
    busy_a = set()
    tn = [0]
    def tstamp():
        if tstamps:
            k = tn[0]; tn[0] += 1
            r = 10 + 2 * k if k < 9 else [32, 34, 40, 42][k - 9]
            I(f"s_memtime s[{r}:{r+1}]")
    def slot(g): return slot_of[g][1]
    def alloc(g):
        if free: r = free.pop(0)
        else:
            assert g < 100 and extra, f"out of slots at {g}"
            r = extra.pop(0)
        if r[0] == "a": busy_a.add(r[1])
        slot_of[g] = r
    def release(g):
        r = slot_of[g]
        if r[0] == "v" and r[1] < vWDF: free.append(r)
        if r[0] == "a": busy_a.discard(r[1])

    def wave_reduce(x, t, op):
        for r in (8, 4, 2, 1):
            I(f"{op}_dpp v{x}, v{x}, v{x} row_ror:{r} row_mask:0xf bank_mask:0xf")
        I(f"v_mov_b32 v{t}, v{x}")
        I(f"v_permlane16_swap_b32 v{x}, v{t}")
        I(f"{op} v{x}, v{x}, v{t}")
        I(f"v_mov_b32 v{t}, v{x}")
        I(f"v_permlane32_swap_b32 v{x}, v{t}")
        I(f"{op} v{x}, v{x}, v{t}")

    def ln(Dl, X0, X1, F):
        f = [F + i for i in range(8)]
        c = [F + 8 + i for i in range(4)]
        s, t = F + 12, F + 13
        for i in range(4):
            I(f"v_lshlrev_b32 v{f[2*i]}, 16, v{Dl[i]}")
            I(f"v_and_b32 v{f[2*i+1]}, 0xffff0000, v{Dl[i]}")
        for i in range(4):
            I(f"v_add_f32 v{c[i]}, v{f[2*i]}, v{f[2*i+1]}")
        I(f"v_add_f32 v{c[0]}, v{c[0]}, v{c[2]}")
        I(f"v_add_f32 v{c[1]}, v{c[1]}, v{c[3]}")
        I(f"v_add_f32 v{s}, v{c[0]}, v{c[1]}")
        wave_reduce(s, t, "v_add_f32")
        I(f"v_mul_f32 v{s}, {f32(1/512)}, v{s}")
        for i in range(4):
            I(f"v_sub_f32 v{Dl[i]}, v{f[2*i]}, v{s}")
            I(f"v_sub_f32 v{c[i]}, v{f[2*i+1]}, v{s}")
        for i in range(4):
            I(f"v_mul_f32 v{Dl[i]}, v{Dl[i]}, v{Dl[i]}")
        for i in range(4):
            I(f"v_fmac_f32 v{Dl[i]}, v{c[i]}, v{c[i]}")
        I(f"v_add_f32 v{Dl[0]}, v{Dl[0]}, v{Dl[2]}")
        I(f"v_add_f32 v{Dl[1]}, v{Dl[1]}, v{Dl[3]}")
        I(f"v_add_f32 v{Dl[0]}, v{Dl[0]}, v{Dl[1]}")
        wave_reduce(Dl[0], t, "v_add_f32")
        I(f"v_mul_f32 v{Dl[0]}, {f32(1/512)}, v{Dl[0]}")
        I(f"v_cvt_pk_bf16_f32 v{t}, v{s}, v{Dl[0]}")
        I(f"v_lshlrev_b32 v{s}, 16, v{t}")
        I(f"v_and_b32 v{t}, 0xffff0000, v{t}")
        I(f"v_add_f32 v{t}, {f32(1e-5)}, v{t}")
        I(f"v_sub_f32 v{f[0]}, v{f[0]}, v{s}")
        I(f"v_cvt_pk_bf16_f32 v{t}, v{t}, v{t}")
        I(f"v_sub_f32 v{f[1]}, v{f[1]}, v{s}")
        I(f"v_and_b32 v{t}, 0xffff0000, v{t}")
        I(f"v_cvt_pk_bf16_f32 v{f[0]}, v{f[0]}, v{f[1]}")
        I(f"v_sqrt_f32 v{t}, v{t}")
        I(f"v_and_b32 v{f[1]}, 0xffff0000, v{f[0]}")
        I(f"v_lshlrev_b32 v{f[0]}, 16, v{f[0]}")
        I(f"v_cvt_pk_bf16_f32 v{t}, v{t}, v{t}")
        I(f"v_and_b32 v{t}, 0xffff0000, v{t}")
        I(f"v_rcp_f32 v{s}, v{t}")
        I(f"v_mul_f32 v{f[2]}, v{f[0]}, v{s}")
        I(f"v_mul_f32 v{f[3]}, v{f[1]}, v{s}")
        I(f"v_fma_f32 v{f[4]}, -v{f[2]}, v{t}, v{f[0]}")
        I(f"v_fma_f32 v{f[5]}, -v{f[3]}, v{t}, v{f[1]}")
        I(f"v_fmac_f32 v{f[2]}, v{f[4]}, v{s}")
        I(f"v_fmac_f32 v{f[3]}, v{f[5]}, v{s}")
        I(f"v_cvt_pk_bf16_f32 v{X0}, v{f[2]}, v{f[2]}")
        I(f"v_cvt_pk_bf16_f32 v{X1}, v{f[3]}, v{f[3]}")

    def afrag(dst, src, u):
        I(f"v_and_b32_dpp v{dst}, v{src}, v{vM0} quad_perm:[{u},{u},{u},{u}] row_mask:0xf bank_mask:0xf")
        I(f"v_and_b32_dpp v{dst+1}, v{src}, v{vM1} quad_perm:[{u},{u},{u},{u}] row_mask:0xf bank_mask:0xf")

    def mfma2(A, bfile, b, abid, first, acc=vACC):
        lo, hi = acc, acc + 4
        c0 = "0" if first else f"v[{lo}:{lo+3}]"
        c1 = "0" if first else f"v[{hi}:{hi+3}]"
        I(f"v_mfma_f32_4x4x4_16b_bf16 v[{lo}:{lo+3}], v[{A}:{A+1}], {bfile}[{b}:{b+1}], {c0} cbsz:2 abid:{abid}")
        I(f"v_mfma_f32_4x4x4_16b_bf16 v[{hi}:{hi+3}], v[{A}:{A+1}], {bfile}[{b+2}:{b+3}], {c1} cbsz:2 abid:{abid}")

    def swap_reduce(dst, acc=vACC):
        lo, hi = acc, acc + 4
        for i in range(4): I(f"v_permlane32_swap_b32 v{lo+i}, v{hi+i}")
        for i in range(4): I(f"v_add_f32 v{lo+i}, v{lo+i}, v{hi+i}")
        I(f"v_permlane16_swap_b32 v{lo}, v{lo+2}")
        I(f"v_permlane16_swap_b32 v{lo+1}, v{lo+3}")
        I(f"v_add_f32 v{dst}, v{lo}, v{lo+2}")
        I(f"v_add_f32 v{dst+1}, v{lo+1}, v{lo+3}")

    def afrag1(dst, src, u, half):
        I(f"v_and_b32_dpp v{dst+half}, v{src}, v{vM0 if half == 0 else vM1} quad_perm:[{u},{u},{u},{u}] row_mask:0xf bank_mask:0xf")

    def gemv_il(Xs, bfile, b0, fill=None):
        nr = len(Xs)
        combos = [(u, r) for u in range(4) for r in range(nr)]
        fill = fill if fill is not None else []
        dbl = len(fill) > 18
        def put():
            x = fill.pop(0)
            if callable(x): x()
            else: I(x)
        afrag(vA, Xs[combos[0][1]], combos[0][0])
        first = True
        for ci, (u, r) in enumerate(combos):
            A = vA + 2 * (ci & 1)
            for aa in range(4):
                f = (8 * aa + 2 * u + r) if nr == 2 else (4 * aa + u)
                mfma2(A, bfile, b0 + 4 * f, aa, first); first = False
                if aa < 2 and ci + 1 < len(combos):
                    afrag1(vA + 2 * ((ci + 1) & 1), Xs[combos[ci + 1][1]], combos[ci + 1][0], aa)
                    if fill and aa == 0 and dbl: put()
                elif fill:
                    put()
                    if fill and aa == 2 and dbl: put()
        while fill: put()

    I(f"s_cmp_ge_u32 s2, 256")
    I("s_cbranch_scc1 L_end")
    stamp()
    if ctl and not stamps: I(f"s_memrealtime s[{sT0}:{sT0+1}]")
    I("s_load_dwordx16 s[60:75], s[0:1], 0")
    I("s_load_dwordx8 s[76:83], s[0:1], 64")
    I(f"v_lshrrev_b32 v{vT}, 6, v0")
    I(f"v_and_b32 v{vLANE}, 63, v0")
    I(f"v_readfirstlane_b32 s{sW}, v{vT}")
    I(f"s_lshr_b32 s{sB}, s2, 5")
    if hmap:
        I(f"s_and_b32 s{sH}, s2, 7")
        I(f"s_lshl_b32 s{sH}, s{sH}, 2")
        I(f"s_bfe_u32 s{sTMP}, s2, 0x20003")
        I(f"s_or_b32 s{sH}, s{sH}, s{sTMP}")
        I(f"s_andn2_b32 s2, s2, 31")
        I(f"s_or_b32 s2, s2, s{sH}")
    else:
        I(f"s_and_b32 s{sH}, s2, 31")
    if remap:
        I(f"s_and_b32 s{sTB}, s2, 7")
        I(f"s_lshr_b32 s{sTC}, s2, 3")
    else:
        I(f"s_mov_b32 s{sTB}, s{sB}")
        I(f"s_mov_b32 s{sTC}, s{sH}")
    I(f"s_min_u32 s{sJF}, s{sTC}, 27")
    J16, SS = vT + 1, vT + 2
    I(f"v_and_b32 v{J16}, 15, v{vLANE}")
    I(f"v_lshrrev_b32 v{SS}, 4, v{vLANE}")
    I(f"v_lshlrev_b32 v{vROW}, 2, v{vLANE}")
    I(f"v_lshlrev_b32 v{vKV}, 4, v{vLANE}")
    I(f"s_lshl_b32 s{sTMP}, s{sW}, 12")
    I(f"v_add_u32 v{vKV}, s{sTMP}, v{vKV}")
    for i in range(4):
        I(f"s_add_u32 s{sROT+i}, s{sW}, {i}")
        I(f"s_and_b32 s{sROT+i}, s{sROT+i}, 3")
        I(f"s_lshl_b32 s{sROT+i}, s{sROT+i}, 8")
    I(f"v_lshlrev_b32 v{vT+3}, 4, v{J16}")
    I(f"s_lshl_b32 s{sTMP}, s{sW}, 20" if not fakeq else f"s_lshl_b32 s{sTMP}, s{sB}, 19")
    I(f"s_lshl_b32 s{sTMP2}, s{sH}, 8")
    I(f"s_add_u32 s{sTMP}, s{sTMP}, s{sTMP2}")
    I(f"v_lshlrev_b32 v{vWQ}, {17 if fakeq else 18}, v{SS}")
    I(f"v_add3_u32 v{vWQ}, v{vWQ}, v{vT+3}, s{sTMP}")
    if rotq:
        I(f"s_mul_i32 s{sRQ}, s{sB}, {rotq // 2}")
        I(f"v_add_u32 v{vT+7}, s{sRQ}, v{vLANE}")
        I(f"v_and_b32 v{vT+7}, 15, v{vT+7}")
        I(f"v_and_or_b32 v{vT+7}, v{vLANE}, 48, v{vT+7}")
        I(f"v_lshlrev_b32 v{vT+7}, 2, v{vT+7}")
        I(f"s_lshl_b32 s{sRQ}, s{sRQ}, 14")
    I("s_waitcnt lgkmcnt(0)")
    pstamp(0)
    def mk(b, plo, offlo, size, offhi=None):
        if offlo is None:
            I(f"s_mov_b32 s{b}, s{plo}"); I(f"s_mov_b32 s{b+1}, s{plo+1}")
        else:
            I(f"s_add_u32 s{b}, s{plo}, {offlo}"); I(f"s_addc_u32 s{b+1}, s{plo+1}, 0")
        I(f"s_mov_b32 s{b+2}, {size}"); I(f"s_mov_b32 s{b+3}, 0x20000")
    I(f"s_lshl_b32 s{sTMP}, s{sB}, 10")
    mk(sX, 60, f"s{sTMP}", 1024)
    I(f"s_lshl_b32 s{sTMP}, s2, 20")
    mk(sK, 62, f"s{sTMP}", 1 << 20)
    xl = [I(f"buffer_load_dword v{vT+8+i}, v{vT+7 if rotq else vROW}, {srd(sX)}, s{sROT+i} offen") for i in range(4)]
    I(f"s_mov_b32 s{sISS}, 0")
    issued = [0]
    kvid = {}
    def issue_kv():
        g = issued[0]; issued[0] += 1
        alloc(g)
        s = sK if g < 256 else sV
        if g == 256: I(f"s_mov_b32 s{sISS}, 0")
        kvid[g] = I(f"buffer_load_dwordx4 {slot_of[g][0]}[{slot(g)}:{slot(g)+3}], v{vKV}, {srd(s)}, s{sISS} offen offset:{(g&3)*1024}{kp if g < 256 else vp}")
        if (g & 3) == 3 and g != 255 and g != 511: I(f"s_add_u32 s{sISS}, s{sISS}, 16384")
    wqid = []
    def issue_wq():
        f = len(wqid)
        if rotq:
            I(f"s_add_u32 s{sWOFF}, s{sRQ}, {f*8192}")
            I(f"s_and_b32 s{sWOFF}, s{sWOFF}, 0x3ffff")
        else: I(f"s_mov_b32 s{sWOFF}, {f*8192}")
        wqid.append(I(f"buffer_load_dwordx4 a[{4*f}:{4*f+3}], v{vWQ}, {srd(sWQ)}, s{sWOFF} offen{qp}"))
    mk(sWQ, 66, None, 4 << 20)
    seq = ['K'] * kfirst
    acc = 0
    nwq = 0
    while nwq < NWQ:
        seq.append('W'); nwq += 1
        acc += ratio[0]
        while acc >= ratio[1] and nwq < NWQ:
            seq.append('K'); acc -= ratio[1]
    seqid = []
    def issue_seq(n):
        if seq[n] == 'K': issue_kv()
        else: issue_wq()
        seqid.append(a.vm - 1)
    seqpos = 0
    while seqpos < min(M, len(seq)):
        issue_seq(seqpos); seqpos += 1
    I(f"s_lshl_b32 s{sTMP2}, s{sTB}, 7")
    I(f"s_load_dwordx2 s[{sTAG}:{sTAG+1}], s[82:83], s{sTMP2}")
    I(f"s_lshl_b32 s{sTMP2}, s{sB}, 7")
    I(f"s_load_dwordx2 s[{sTAGP}:{sTAGP+1}], s[82:83], s{sTMP2}")
    mk(sV, 64, f"s{sTMP}", 1 << 20)
    I(f"s_lshl_b32 s{sTMP}, s{sH}, 17")
    mk(sWO, 68, f"s{sTMP}", 1 << 17)
    I(f"s_lshl_b32 s{sTMP}, s{sJF}, 16")
    mk(sWD, 76, f"s{sTMP}", 1 << 16)
    I(f"s_cmp_ge_u32 s{sTC}, 28")
    I(f"s_cselect_b32 s{sWD+2}, 0, s{sWD+2}")
    I(f"s_lshl_b32 s{sTMP}, s{sTB}, 10")
    mk(sXT, 60, f"s{sTMP}", 1024)
    mk(sOUT, 78, None, 8192)
    mk(sWS, 82, None, 0x500000 if stamps else P2AOFF + 0x100000)
    I(f"s_lshl_b32 s{sTMP}, s{sW}, 8")
    I(f"v_lshlrev_b32 v{vWO}, 15, v{SS}")
    I(f"v_add3_u32 v{vWO}, v{vWO}, v{vT+3}, s{sTMP}")
    I(f"v_lshlrev_b32 v{vWD}, 14, v{SS}")
    I(f"v_add3_u32 v{vWD}, v{vWD}, v{vT+3}, s{sTMP}")
    I(f"v_cmp_gt_u32 vcc, 8, v{J16}")
    I(f"v_mov_b32 v{vT+4}, s74")
    I(f"v_mov_b32 v{vT+5}, s72")
    I(f"v_cndmask_b32 v{vGU}, v{vT+4}, v{vT+5}, vcc")
    I(f"v_mov_b32 v{vT+4}, s75")
    I(f"v_mov_b32 v{vT+5}, s73")
    I(f"v_cndmask_b32 v{vGU+1}, v{vT+4}, v{vT+5}, vcc")
    I(f"s_mul_i32 s{sTMP}, s{sW}, {128*3584}")
    I(f"s_lshl_b32 s{sTMP2}, s{sJF}, 7")
    I(f"s_add_u32 s{sTMP}, s{sTMP}, s{sTMP2}")
    I(f"v_mul_u32_u24 v{vT+4}, {32*3584}, v{SS}")
    I(f"v_and_b32 v{vT+5}, 0x70, v{vT+3}")
    I(f"v_add3_u32 v{vT+4}, v{vT+4}, v{vT+5}, s{sTMP}")
    I(f"s_cmp_ge_u32 s{sTC}, 28")
    I(f"s_cselect_b32 s{sTMP}, 0, -1")
    I(f"s_cselect_b32 s{sGUSTEP}, 0, 7168")
    I(f"v_and_b32 v{vT+4}, s{sTMP}, v{vT+4}")
    I(f"v_mov_b32 v{vT+5}, 0")
    I(f"v_lshl_add_u64 v[{vGU}:{vGU+1}], v[{vT+4}:{vT+5}], 0, v[{vGU}:{vGU+1}]")
    I(f"s_mov_b32 s{sGUSTEP+1}, 0")
    I(f"s_lshl_b32 s{sTMP}, s{sW}, 9")
    I(f"v_lshlrev_b32 v{vLW}, 5, v{J16}")
    I(f"v_lshlrev_b32 v{vT+4}, 3, v{SS}")
    I(f"v_add3_u32 v{vLW}, v{vLW}, v{vT+4}, s{sTMP}")
    I(f"s_lshl_b32 s{sTMP}, s2, 12")
    I(f"v_lshl_add_u32 v{vPUB}, v{vLW}, 1, s{sTMP}")
    I(f"s_lshl_b32 s{sTMP}, s{sTB}, 17")
    I(f"s_lshl_b32 s{sTMP2}, s{sTC}, 7")
    I(f"s_add_u32 s{sTMP}, s{sTMP}, s{sTMP2}")
    I(f"s_lshl_b32 s{sTMP2}, s{sW}, 5")
    I(f"s_add_u32 s{sTMP}, s{sTMP}, s{sTMP2}")
    I(f"v_lshrrev_b32 v{vGAT}, 1, v{vLANE}")
    I(f"v_lshlrev_b32 v{vGAT}, 12, v{vGAT}")
    I(f"v_and_b32 v{vT+4}, 16, v{vT+3}")
    I(f"v_add3_u32 v{vGAT}, v{vGAT}, v{vT+4}, s{sTMP}")
    I(f"s_mov_b32 s{sGOFF}, {P1OFF}")
    I(f"v_lshlrev_b32 v{vHROW}, 4, v{vLANE}")
    I(f"v_lshlrev_b32 v{vLO}, 3, v{vLANE}")
    I(f"v_add_u32 v{vLO}, {LO}, v{vLO}")
    I(f"v_add_u32 v{vLGU}, {LGU}, v{vROW}")
    I(f"v_lshlrev_b32 v{vLQ}, 5, v{J16}")
    I(f"v_and_b32 v{vHST}, 4, v{vROW}")
    I(f"v_and_b32 v{vT+4}, 3, v{vLANE}")
    I(f"v_mov_b32 v{vT+5}, 0xffff")
    I(f"v_mov_b32 v{vT+6}, 0xffff0000")
    I(f"v_mov_b32 v{vM0}, 0")
    I(f"v_mov_b32 v{vM1}, 0")
    for val, dst, src in ((0, vM0, vT+5), (1, vM0, vT+6), (2, vM1, vT+5), (3, vM1, vT+6)):
        I(f"v_cmp_eq_u32 vcc, {val}, v{vT+4}")
        I(f"v_cndmask_b32 v{dst}, v{dst}, v{src}, vcc")
    I(f"s_mov_b32 s{sODD}, 0xaaaaaaaa"); I(f"s_mov_b32 s{sODD+1}, 0xaaaaaaaa")
    I(f"s_mov_b32 s{sBIT1}, 0xcccccccc"); I(f"s_mov_b32 s{sBIT1+1}, 0xcccccccc")
    I(f"s_mov_b32 s{sL2E}, {f32(1.4426950408889634)}")
    I(f"s_mov_b32 s{sSCALE}, {f32(128 ** -0.5)}")
    I(f"s_mov_b32 s{sFFFF}, 0xffff")
    I(f"s_mov_b32 s{sP2}, {P2OFF}")
    I(f"s_lshl_b32 s{sTMP}, s{sTB}, 10")
    I(f"s_lshl_b32 s{sTMP2}, s{sTC}, 5")
    I(f"s_add_u32 s{sOUTO}, s{sTMP}, s{sTMP2}")
    I(f"s_lshl_b32 s{sTMP2}, s{sW}, 3")
    I(f"s_add_u32 s{sOUTO}, s{sOUTO}, s{sTMP2}")
    I(f"s_lshl_b32 s{sHST}, s{sOUTO}, 2")
    I(f"s_add_u32 s{sHST}, s{sHST}, {HOFF}")
    I(f"s_lshl_b32 s{sTMP}, s{sTB}, 12")
    I(f"s_lshl_b32 s{sROT}, s{sW}, 10")
    I(f"s_add_u32 s{sROT}, s{sROT}, s{sTMP}")
    I(f"s_add_u32 s{sROT}, s{sROT}, {HOFF}")
    I(f"s_add_u32 s{sHSTA}, s{sHST}, {HAOFF - HOFF}")
    I(f"s_add_u32 s{sROTA}, s{sROT}, {HAOFF - HOFF}")
    I(f"s_mov_b32 s{sP2A}, {P2AOFF}")
    I(f"v_mov_b32 v{vMAX}, 0xff800000")
    I("s_waitcnt lgkmcnt(0)")
    for tg in (sTAG, sTAGP):
        I(f"s_mul_i32 s{tg}, s{tg}, 1664525")
        I(f"s_add_u32 s{tg}, s{tg}, 1013904223")
        I(f"s_mul_i32 s{tg+1}, s{tg+1}, 22695477")
        I(f"s_add_u32 s{tg+1}, s{tg+1}, 1")
    I(f"v_mov_b32 v{vPB+2}, s{sTAGP}")
    I(f"v_mov_b32 v{vPB+3}, s{sTAGP+1}")
    if fixref:
        mk(sDBG if False else 40, 80, None, 256) if False else None
        I(f"s_or_b32 s{sTMP}, s2, s{sW}")
        I(f"s_cmp_lg_u32 s{sTMP}, 0")
        I("s_cbranch_scc1 L_noref")
        I(f"v_mov_b32 v{vT+4}, s{sT0}")
        I(f"v_mov_b32 v{vT+5}, 0")
        I("s_mov_b64 exec, 1")
        a.X(f"global_store_dword v{vT+5}, v{vT+4}, s[80:81] sc1")
        I("s_mov_b64 exec, -1")
        I("L_noref:")
        I(f"s_mov_b64 s[76:77], s[80:81]")
    pstamp(2)
    a.wait_vm(xl[3])
    pstamp(3)
    X0, X1 = vT, vT + 1
    ln([vT + 8 + i for i in range(4)], vP, vP + 1, vS)
    pstamp(4)
    for u in range(4):
        for r in range(2):
            afrag(vA + 4 * u + 2 * r, vP + r, u)
    base = xl[3] + 1
    fdone = 0
    def do_wq_upto(idx):
        nonlocal fdone
        while fdone < len(wqid) and wqid[fdone] <= idx:
            f = fdone; fdone += 1
            aa, u, r = f >> 3, (f >> 1) & 3, f & 1
            mfma2(vA + 4 * u + 2 * r, "a", 4 * f, aa, f == 0)
    while seqpos < len(seq):
        idx = seqid[seqpos - M]
        a.wait_vm(idx)
        issue_seq(seqpos); seqpos += 1
        do_wq_upto(idx)
    kleft = qextra
    while fdone < NWQ:
        idx = wqid[fdone]
        a.wait_vm(idx)
        while issued[0] - sum(1 for g in kvid if kvid[g] <= idx) < N: issue_kv()
        do_wq_upto(idx)
    for _ in range(qdelay):
        a.wait_vm(kvid[issued[0] - N]); issue_kv()
    pstamp(8)
    swap_reduce(vT)
    I(f"ds_write_b64 v{vLW}, v[{vT}:{vT+1}] offset:{LQ}")
    if qextra > 0: issue_kv()
    I("s_waitcnt lgkmcnt(0)")
    I("s_barrier")
    if qextra > 1: issue_kv()
    pstamp(9)
    for w in range(4):
        I(f"ds_read_b128 v[{vS+8*(w&1)}:{vS+8*(w&1)+3}], v{vLQ} offset:{LQ+w*512}" if w < 2 else f"ds_read_b128 v[{vA+8*(w&1)}:{vA+8*(w&1)+3}], v{vLQ} offset:{LQ+w*512}")
        I(f"ds_read_b128 v[{vS+8*(w&1)+4}:{vS+8*(w&1)+7}], v{vLQ} offset:{LQ+w*512+16}" if w < 2 else f"ds_read_b128 v[{vA+8*(w&1)+4}:{vA+8*(w&1)+7}], v{vLQ} offset:{LQ+w*512+16}")
    I("s_waitcnt lgkmcnt(0)")
    for i in range(8): I(f"v_add_f32 v{vS+i}, v{vS+i}, v{vS+8+i}")
    for i in range(8): I(f"v_add_f32 v{vA+i}, v{vA+i}, v{vA+8+i}")
    for i in range(8): I(f"v_add_f32 v{vS+i}, v{vS+i}, v{vA+i}")
    if qextra > 2: issue_kv()
    for i in range(4): I(f"v_cvt_pk_bf16_f32 v{vQ+i}, v{vS+2*i}, v{vS+2*i+1}")
    stamp()

    side = []
    side_last = [0]
    def mkside():
        def clr():
            I(f"s_and_b32 s{sTMP}, s{sOUTO}, 1023")
            I(f"buffer_load_dword v{vXRES}, v{vHST}, {srd(sXT)}, s{sTMP} offen")
        side.append(clr)
        def wo(f):
            def g():
                assert 128 + 4 * f not in busy_a
                I(f"s_mov_b32 s{sWOFF}, {(f>>2)*4096}")
                I(f"buffer_load_dwordx4 a[{128+4*f}:{128+4*f+3}], v{vWO}, {srd(sWO)}, s{sWOFF} offen offset:{(f&3)*1024}{wp}")
            return g
        def gu(f):
            def g():
                side_last[0] = I(f"global_load_dwordx4 a[{4*f}:{4*f+3}], v[{vGU}:{vGU+1}], off offset:{(f&1)*3584}{fp}")
                if f & 1: I(f"v_lshl_add_u64 v[{vGU}:{vGU+1}], v[{vGU}:{vGU+1}], 0, s[{sGUSTEP}:{sGUSTEP+1}]")
            return g
        def wd(f):
            def g():
                I(f"s_mov_b32 s{sWOFF}, {(f>>2)*4096}")
                I(f"buffer_load_dwordx4 v[{vWDF+4*f}:{vWDF+4*f+3}], v{vWD}, {srd(sWD)}, s{sWOFF} offen offset:{(f&3)*1024}{fp}")
            return g
        for f in range(32): side.append(wo(f))
        for f in range(32): side.append(gu(f))
        for f in range(16): side.append(wd(f))
    mkside()
    if noside: side = side[:1]
    deferred = side[len(side) - ND:] if ND else []
    side = side[:len(side) - ND]
    late_cs = ND > 16
    side_steps = {}
    for k in range(len(side)):
        pos = wstart + (wend - wstart) * k // len(side)
        side_steps.setdefault(pos, []).append(side[k])

    work = []
    def push_group(g4):
        B, aa = g4 >> 2, g4 & 3
        def D(e):
            def f():
                src = []
                for c in range(4):
                    g = 4 * g4 + c
                    if slot_of[g][0] == "a":
                        I(f"v_accvgpr_read_b32 v{vA+c}, a{slot(g)+e}"); src.append(vA + c)
                    else: src.append(slot(g) + e)
                for c in range(4):
                    I(f"v_dot2_f32_bf16 v{vP+c}, v{src[c]}, v{vQ+e}, " + ("0" if e == 0 else f"v{vP+c}"))
                if e == 3:
                    for c in range(4): release(4 * g4 + c)
            return f
        def Rd():
            I(f"v_add_f32_dpp v{vP}, v{vP}, v{vP} row_ror:8 row_mask:0xf bank_mask:0x3")
            I(f"v_add_f32_dpp v{vP+1}, v{vP+1}, v{vP+1} row_ror:8 row_mask:0xf bank_mask:0x3")
            I(f"v_add_f32_dpp v{vP}, v{vP+2}, v{vP+2} row_ror:8 row_mask:0xf bank_mask:0xc")
            I(f"v_add_f32_dpp v{vP+1}, v{vP+3}, v{vP+3} row_ror:8 row_mask:0xf bank_mask:0xc")
            I(f"v_add_f32_dpp v{vG+aa}, v{vP}, v{vP} row_half_mirror row_mask:0xf bank_mask:0x5")
            I(f"v_add_f32_dpp v{vG+aa}, v{vP+1}, v{vP+1} row_half_mirror row_mask:0xf bank_mask:0xa")
        def F1():
            for q in range(4):
                I(f"v_add_f32_dpp v{vG+q}, v{vG+q}, v{vG+q} quad_perm:[1,0,3,2] row_mask:0xf bank_mask:0xf")
            I(f"v_cndmask_b32 v{vG}, v{vG}, v{vG+1}, s[{sODD}:{sODD+1}]")
            I(f"v_cndmask_b32 v{vG+2}, v{vG+2}, v{vG+3}, s[{sODD}:{sODD+1}]")
            I(f"v_add_f32_dpp v{vG}, v{vG}, v{vG} quad_perm:[2,3,0,1] row_mask:0xf bank_mask:0xf")
            I(f"v_add_f32_dpp v{vG+2}, v{vG+2}, v{vG+2} quad_perm:[2,3,0,1] row_mask:0xf bank_mask:0xf")
            I(f"v_cndmask_b32 v{vS+B}, v{vG}, v{vG+2}, s[{sBIT1}:{sBIT1+1}]")
        def F2():
            I(f"v_cvt_pk_bf16_f32 v{vS+B}, v{vS+B}, v{vS+B}")
            I(f"v_and_b32 v{vS+B}, 0xffff0000, v{vS+B}")
            I(f"v_mul_f32 v{vS+B}, s{sSCALE}, v{vS+B}")
            I(f"v_cvt_pk_bf16_f32 v{vS+B}, v{vS+B}, v{vS+B}")
            I(f"v_and_b32 v{vS+B}, 0xffff0000, v{vS+B}")
            I(f"v_max_f32 v{vMAX}, v{vMAX}, v{vS+B}")
        work.extend([D(0), D(1), D(2), D(3), Rd])
        if aa == 3: work.extend([F1, F2])
    if pf or pft:
        I(f"s_getpc_b64 s[{sPC}:{sPC+1}]")
        I("L_pc:")
        I(f"s_lshl_b32 s{sTMP}, s{sW}, 7")
        I(f"s_add_u32 s{sPC}, s{sPC}, s{sTMP}")
        I(f"s_addc_u32 s{sPC+1}, s{sPC+1}, 0")
    def codepf(i):
        if i % 16 == 0: I(f"L_blk{i // 16}:")
        if pf and i % 16 == 3 and i // 16 + pfd < 32:
            I(f"s_mov_b32 s{sPFD-1}, L_blk{i // 16 + pfd}-L_pc")
            for k in range(pf if i // 16 + pfd < 17 else (pf + 1) // 2 + 1):
                I(f"s_load_dword s{sPFD}, s[{sPC}:{sPC+1}], s{sPFD-1} offset:{512 * k}")
        if pft and i == 451:
            I(f"s_mov_b32 s{sPFD-1}, L_tail-L_pc")
            for k in range(6):
                I(f"s_load_dword s{sPFD}, s[{sPC}:{sPC+1}], s{sPFD-1} offset:{512 * k}")
    I1 = issued[0]
    boost = fB or fC or ctl
    I(f"s_mov_b32 s{sLVL}, 0")
    def nominal(i):
        ns = sum(len(v) for k, v in side_steps.items() if k <= i)
        return T0 + Ts * (i + 1) + Tside * ns
    def control(i):
        if not ctl or i < ustart: return
        if i % U == 0: I(f"s_memrealtime s[{sNOW}:{sNOW+1}]")
        if i % U == 2:
            I("s_waitcnt lgkmcnt(0)")
            I(f"s_sub_u32 s{sLVL}, s{sNOW}, s{sT0}")
            I(f"s_sub_i32 s{sLVL}, s{sLVL}, {int(nominal(i - 3) / 10)}")
            I(f"s_mul_i32 s{sLVL}, s{sLVL}, {int(65536 * 10 / dl)}")
            I(f"s_ashr_i32 s{sLVL}, s{sLVL}, 16")
    if fB:
        I(f"s_getreg_b32 s{sTMP}, hwreg(HW_REG_XCC_ID, 0, 1)")
        I(f"s_cmp_eq_u32 s{sTMP}, 0")
        I("s_cselect_b64 vcc, -1, 0")
    accs = [0.0, 0.0]
    def paced1(i, n):
        tgt = min(i + 2 + n, 512)
        if issued[0] >= tgt: return
        if issued[0] == tgt - 1 and i + 1 in kvid:
            accs[1] += fC; accs[0] += fB
            if ctl and i > ustart and i % cands == 0:
                j = (i // cands) % nl
                th = int(format(j, f"0{nl.bit_length()-1}b")[::-1], 2) + 1
                I(f"s_cmp_ge_i32 s{sLVL}, {th}")
                I(f"s_cbranch_scc1 L_b{i}")
                I(f"s_waitcnt vmcnt({a.vm - 1 - kvid[i+1]})")
                I(f"L_b{i}:")
            elif accs[1] >= 1: accs[1] -= 1
            elif accs[0] >= 1:
                accs[0] -= 1
                I(f"s_cbranch_vccnz L_b{i}")
                I(f"s_waitcnt vmcnt({a.vm - 1 - kvid[i+1]})")
                I(f"L_b{i}:")
            else: a.wait_vm(kvid[i + 1])
        while issued[0] < tgt: issue_kv()
    def paced2(i, n):
        tgt = min(i + 3 + n, 512)
        if issued[0] >= tgt: return
        while issued[0] < tgt - 1:
            a.wait_vm(kvid[issued[0] - n]); issue_kv()
        if i <= ustart:
            a.wait_vm(kvid[i + 2])
        else:
            k = i & 15
            ta = 1 if k == 0 else 2 if k == 8 else 3 if k % 4 == 0 else 4 if k % 2 == 0 else 5
            tb = 6 if k % 4 == 0 else 7 if k % 2 == 0 else 8
            if kvid[i + 1] >= a.vm_done:
                I(f"s_cmp_ge_i32 s{sLVL}, {tb}")
                I(f"s_cbranch_scc1 L_b{i}")
                I(f"s_waitcnt vmcnt({a.vm - 1 - kvid[i+1]})")
            I(f"s_cmp_ge_i32 s{sLVL}, {ta}")
            I(f"s_cbranch_scc1 L_b{i}")
            I(f"s_waitcnt vmcnt({a.vm - 1 - kvid[i+2]})")
            I(f"L_b{i}:")
        issue_kv()
    paced = paced2 if two else paced1
    for i in range(256):
        a.wait_vm(kvid[i])
        control(i)
        codepf(i)
        if boost and i + 1 + N >= I1 + i // cu: paced(i, N)
        tgt = max(i + 1 + N, I1 + i // cu)
        while issued[0] < tgt: issue_kv()
        for fn in side_steps.get(i, []): fn()
        if kstamps and i % 32 == 31: pstamp(i // 32, True)
        if (i & 3) == 3:
            if nokc and i > 64:
                for c in range(4): release(i - 3 + c)
            else: push_group(i >> 2)
        n = 1 if len(work) <= 4 - (i & 3) + 0 else 2
        for _ in range(min(n, len(work))): work.pop(0)()
    nV = NV or N
    xleft = [Tx]
    def xissue():
        if xleft[0] > 0:
            xleft[0] -= 1; issue_kv()
    while work: work.pop(0)()
    stamp()
    xissue()
    wave_reduce(vMAX, vT, "v_max_f32")
    I(f"v_mul_f32 v{vT}, s{sL2E}, v{vMAX}")
    for B in range(16): I(f"v_fma_f32 v{vS+B}, v{vS+B}, s{sL2E}, -v{vT}")
    for B in range(16): I(f"v_exp_f32 v{vS+B}, v{vS+B}")
    xissue()
    for k in range(8): I(f"v_add_f32 v{vA+k}, v{vS+2*k}, v{vS+2*k+1}")
    for k in range(4): I(f"v_add_f32 v{vA+k}, v{vA+k}, v{vA+4+k}")
    for k in range(2): I(f"v_add_f32 v{vA+k}, v{vA+k}, v{vA+2+k}")
    I(f"v_add_f32 v{vT+3}, v{vA}, v{vA+1}")
    wave_reduce(vT + 3, vT + 1, "v_add_f32")
    I(f"v_mov_b32 v{vT+2}, v{vT}")
    I(f"s_lshl_b32 s{sTMP}, s{sW}, 3")
    I(f"v_mov_b32 v{vT+1}, s{sTMP}")
    I("s_mov_b64 exec, 1")
    I(f"ds_write_b64 v{vT+1}, v[{vT+2}:{vT+3}] offset:{LML}")
    I("s_mov_b64 exec, -1")
    I(f"v_mov_b32 v{vT+1}, 0")
    xissue()
    I("s_waitcnt lgkmcnt(0)")
    I("s_barrier")
    xissue()
    I(f"ds_read_b128 v[{vA}:{vA+3}], v{vT+1} offset:{LML}")
    I(f"ds_read_b128 v[{vA+4}:{vA+7}], v{vT+1} offset:{LML+16}")
    I("s_waitcnt lgkmcnt(0)")
    I(f"v_max3_f32 v{vT+5}, v{vA}, v{vA+2}, v{vA+4}")
    I(f"v_max_f32 v{vT+5}, v{vT+5}, v{vA+6}")
    for k in range(4): I(f"v_sub_f32 v{vA+2*k}, v{vA+2*k}, v{vT+5}")
    I(f"v_sub_f32 v{vT}, v{vT}, v{vT+5}")
    for k in range(4): I(f"v_exp_f32 v{vA+2*k}, v{vA+2*k}")
    I(f"v_exp_f32 v{vT}, v{vT}")
    I(f"v_mul_f32 v{vA}, v{vA}, v{vA+1}")
    I(f"v_mul_f32 v{vA+4}, v{vA+4}, v{vA+5}")
    I(f"v_fmac_f32 v{vA}, v{vA+2}, v{vA+3}")
    I(f"v_fmac_f32 v{vA+4}, v{vA+6}, v{vA+7}")
    I(f"v_add_f32 v{vA}, v{vA}, v{vA+4}")
    I(f"v_rcp_f32 v{vA}, v{vA}")
    I(f"v_mul_f32 v{vT}, v{vT}, v{vA}")
    while xleft[0] > 0: xissue()
    for B in range(16): I(f"v_mul_f32 v{vS+B}, v{vS+B}, v{vT}")
    for B in range(16): I(f"v_cvt_pk_bf16_f32 v{vS+B}, v{vS+B}, v{vS+B}")
    stamp()
    cnt_id = None
    for i in range(256, 512):
        B, t = (i - 256) >> 4, i & 15
        u, c = t >> 2, t & 3
        A = vA + 2 * ((i >> 2) & 1)
        if i == 256: afrag(A, vS, 0)
        a.wait_vm(kvid[i])
        if not (NE and i >= 512 - E): control(i)
        codepf(i)
        if boost and not (NE and i >= 512 - E): paced(i, nV)
        tgt = min(i + 1 + (NE if (NE and i >= 512 - E) else nV), 512)
        while issued[0] < tgt: issue_kv()
        for fn in side_steps.get(i, []): fn()
        if issued[0] == 512:
            for _ in range(min(dper, len(deferred))): deferred.pop(0)()
        mfma2(A, "v", slot(i), c, i == 256)
        release(i)
        if kstamps and i % 32 == 31: pstamp(i // 32, True)
        if fast and i == pretouch:
            I(f"buffer_load_dwordx4 v[{vT+4}:{vT+7}], v{vHROW}, {srd(sWS)}, s{sROTA} offen sc1")
        if fast and i == pretouch + 4:
            I(f"buffer_load_dwordx4 v[{vT+4}:{vT+7}], v{vGAT}, {srd(sWS)}, s{sP2A} offen sc1")
        if late_cs: pass
        elif i == cs_start - 1:
            assert side_last[0] < a.vm_done
            I(f"v_and_b32 v{vA+4}, 0x3f803f80, v{vM0}")
            I(f"v_and_b32 v{vA+5}, 0x3f803f80, v{vM1}")
        if not late_cs and cs_start <= i < cs_start + 32:
            mfma2(vA + 4, "a", 4 * (i - cs_start), 0, i == cs_start, acc=vT + 8)
        if not late_cs and i == cs_start + 33:
            swap_reduce(vT, acc=vT + 8)
            I(f"ds_write_b64 v{vLW}, v[{vT}:{vT+1}] offset:{LCS}")
        if c == 0 and i + 4 < 512:
            j = i + 4
            afrag(vA + 2 * ((j >> 2) & 1), vS + ((j - 256) >> 4), (j & 15) >> 2)
    stamp()
    I("L_tail:")
    tstamp()
    swap_reduce(vT)
    I(f"ds_write_b64 v{vLW}, v[{vT}:{vT+1}] offset:{LO}")
    for _ in range(min(3, len(deferred))): deferred.pop(0)()
    I("s_waitcnt lgkmcnt(0)")
    tstamp()
    I("s_barrier")
    tstamp()
    I(f"ds_read2_b64 v[{vT}:{vT+3}], v{vLO} offset0:0 offset1:64")
    I(f"ds_read2_b64 v[{vT+4}:{vT+7}], v{vLO} offset0:128 offset1:192")
    vCS = vS
    def read_cs():
        for w in range(4):
            I(f"ds_read2st64_b32 v[{vCS+2*w}:{vCS+2*w+1}], v{vLGU} offset0:{(LCS-LGU)//256+2*w} offset1:{(LCS-LGU)//256+2*w+1}")
    if not late_cs: read_cs()
    for _ in range(min(3, len(deferred))): deferred.pop(0)()
    I("s_waitcnt lgkmcnt(0)" if (tstamps or late_cs) else "s_waitcnt lgkmcnt(4)")
    tstamp()
    I(f"v_add_f32 v{vT}, v{vT}, v{vT+2}")
    I(f"v_add_f32 v{vT+1}, v{vT+1}, v{vT+3}")
    I(f"v_add_f32 v{vT+4}, v{vT+4}, v{vT+6}")
    I(f"v_add_f32 v{vT+5}, v{vT+5}, v{vT+7}")
    I(f"v_add_f32 v{vT}, v{vT}, v{vT+4}")
    I(f"v_add_f32 v{vT+1}, v{vT+1}, v{vT+5}")
    I(f"v_cvt_pk_bf16_f32 v{vP}, v{vT}, v{vT}")
    I(f"v_cvt_pk_bf16_f32 v{vP+1}, v{vT+1}, v{vT+1}")
    gemv_il([vP, vP + 1], "a", 128, deferred)
    tstamp()
    swap_reduce(vPB)
    tstamp()
    I(f"buffer_store_dwordx4 v[{vPB}:{vPB+3}], v{vPUB}, {srd(sWS)}, s{sGOFF} offen {spol}")
    stamp()
    vR = vG
    vPUB2 = vWQ

    def poll(label, S, voff, soff, nres, pre=None, th=0, soffA=None, lazy=None, delay=0):
        ld = lambda so: f"buffer_load_dwordx4 v[{S}:{S+3}], v{voff}, {srd(sWS)}, s{so} offen {lpol}"
        def check():
            I("s_waitcnt vmcnt(0)")
            I(f"v_cmp_eq_u64 vcc, s[{sTAG}:{sTAG+1}], v[{S+2}:{S+3}]")
            for r in range(nres): I(f"v_cndmask_b32 v{vR+r}, v{vR+r}, v{S+r}, vcc")
            I("s_andn2_b64 exec, exec, vcc")
            I(f"s_cbranch_scc0 {label}_ok")
        if delay:
            if pre: pre()
            I(f"s_sleep {delay}")
        a.X(ld(soffA if soffA else soff))
        if pre and not delay: pre()
        I(f"s_mov_b32 s{sCNT}, {SPIN}")
        I(f"{label}:")
        check()
        if th:
            I(f"s_bcnt1_i32_b64 s{sTMP}, exec")
            I(f"s_cmp_le_u32 s{sTMP}, {th}")
            I(f"s_cbranch_scc1 {label}_f")
            I(f"s_sleep {slow}")
            I(f"{label}_f:")
        if psl and not th: I(f"s_sleep {psl}")
        I(f"s_sub_u32 s{sCNT}, s{sCNT}, 1")
        if soffA:
            I(f"s_and_b32 s{sTMP}, s{sCNT}, {NA-1}")
            I(f"s_cselect_b32 s{sTMP}, s{soffA}, s{soff}")
            if lazy:
                I(f"s_cbranch_scc1 {label}_n")
                I("s_mov_b64 s[8:9], exec")
                I("s_mov_b64 exec, 3")
                a.X(lazy)
                I("s_mov_b64 exec, s[8:9]")
                I(f"{label}_n:")
            a.X(ld(sTMP))
        else:
            a.X(ld(soff))
        I(f"s_cmp_lg_u32 s{sCNT}, 0")
        I(f"s_cbranch_scc1 {label}")
        I(f"{label}_ok:")
        I("s_mov_b64 exec, -1")

    def colsum():
        x0, x1, t0, t1 = vR, vR + 1, vT + 2, vT + 3
        for r in (8, 4, 2):
            I(f"v_add_f32_dpp v{x0}, v{x0}, v{x0} row_ror:{r} row_mask:0xf bank_mask:0xf")
            I(f"v_add_f32_dpp v{x1}, v{x1}, v{x1} row_ror:{r} row_mask:0xf bank_mask:0xf")
        for sw in ("v_permlane16_swap_b32", "v_permlane32_swap_b32"):
            I(f"v_mov_b32 v{t0}, v{x0}")
            I(f"v_mov_b32 v{t1}, v{x1}")
            I(f"{sw} v{x0}, v{t0}")
            I(f"{sw} v{x1}, v{t1}")
            I(f"v_add_f32 v{x0}, v{x0}, v{t0}")
            I(f"v_add_f32 v{x1}, v{x1}, v{t1}")
        I(f"v_cvt_pk_bf16_f32 v{x0}, v{x0}, v{x1}")
        I(f"v_lshlrev_b32 v{t0}, 16, v{x0}")
        I(f"v_and_b32 v{t1}, 0xffff0000, v{x0}")

    def pre1():
        I(f"s_lshl_b32 s{sTMP}, s{sTB}, 5")
        I(f"s_add_u32 s{sTMP}, s{sTMP}, s{sTC}")
        I(f"s_lshl_b32 s{sTMP}, s{sTMP}, 12")
        I(f"v_lshl_add_u32 v{vPUB2}, v{vLW}, 1, s{sTMP}")
        I(f"v_mov_b32 v{vPB+2}, s{sTAG}")
        I(f"v_mov_b32 v{vPB+3}, s{sTAG+1}")
        I(f"s_getreg_b32 s{sXCC}, hwreg(HW_REG_XCC_ID, 0, 4)")
        I(f"v_mov_b32 v{vPB+1}, s{sXCC}")
        I(f"v_lshlrev_b32 v{vH}, 16, v{vXRES}")
        I(f"v_and_b32 v{vH+1}, 0xffff0000, v{vXRES}")
        if late_cs:
            I(f"v_and_b32 v{vA+4}, 0x3f803f80, v{vM0}")
            I(f"v_and_b32 v{vA+5}, 0x3f803f80, v{vM1}")
            I(f"s_waitcnt vmcnt({a.vm - 1 - side_last[0] + 1})")
            for f in range(32): mfma2(vA + 4, "a", 4 * f, 0, f == 0)
            swap_reduce(vT)
            I(f"ds_write_b64 v{vLW}, v[{vT}:{vT+1}] offset:{LCS}")
            I("s_waitcnt lgkmcnt(0)")
            I("s_barrier")
            read_cs()
        I("s_waitcnt lgkmcnt(0)")
        I(f"v_add_f32 v{vCS}, v{vCS}, v{vCS+2}")
        I(f"v_add_f32 v{vCS+1}, v{vCS+1}, v{vCS+3}")
        I(f"v_add_f32 v{vCS+4}, v{vCS+4}, v{vCS+6}")
        I(f"v_add_f32 v{vCS+5}, v{vCS+5}, v{vCS+7}")
        I(f"v_add_f32 v{vCS}, v{vCS}, v{vCS+4}")
        I(f"v_add_f32 v{vCS+1}, v{vCS+1}, v{vCS+5}")
    poll("L_p1", RING0, vGAT, sGOFF, 2, pre1, TH, delay=d1)
    colsum()
    I(f"v_add_f32 v{vT+2}, v{vT+2}, v{vH}")
    I(f"v_add_f32 v{vT+3}, v{vT+3}, v{vH+1}")
    I(f"v_cvt_pk_bf16_f32 v{vPB}, v{vT+2}, v{vT+3}")
    I("s_mov_b64 exec, 3")
    if fast: I(f"buffer_store_dwordx4 v[{vPB}:{vPB+3}], v{vHROW}, {srd(sWS)}, s{sHSTA} offen")
    HB = f"buffer_store_dwordx4 v[{vPB}:{vPB+3}], v{vHROW}, {srd(sWS)}, s{sHST} offen {spol}"
    if not fast: I(HB)
    I("s_mov_b64 exec, -1")
    stamp()
    if not align:
        I(f"s_cmp_ge_u32 s{sTC}, 28")
        I("s_cbranch_scc1 L_noffn")
    def pre2():
        I(f"v_lshlrev_b32 v{vH}, 16, v{vPB}")
        I(f"v_and_b32 v{vH+1}, 0xffff0000, v{vPB}")
    poll("L_h", RING0 + 16, vHROW, sROT, 2 if fast else 1, pre2, soffA=sROTA if fast else None, lazy=HB if fast else None, delay=dH)
    if fast:
        I("s_mov_b64 exec, 3")
        I(HB)
        I("s_mov_b64 exec, -1")
        I(f"v_cmp_ne_u32 s[8:9], s{sXCC}, v{vR+1}")
    stamp()
    tstamp()
    f0, f1, s1, t = vS + 8, vS + 9, vS + 10, vS + 11
    I(f"v_lshlrev_b32 v{f0}, 16, v{vR}")
    I(f"v_and_b32 v{f1}, 0xffff0000, v{vR}")
    I(f"v_and_b32 v{vP}, 0xffff, v{vR}")
    I(f"v_lshrrev_b32 v{vP+1}, 16, v{vR}")
    I(f"v_or_b32 v{vP}, v{vP}, v{f0}")
    I(f"v_or_b32 v{vP+1}, v{vP+1}, v{f1}")
    I(f"v_add_f32 v{s1}, v{f0}, v{f1}")
    stats = []
    def red(x):
        for r in (8, 4, 2, 1):
            stats.append(f"v_add_f32_dpp v{x}, v{x}, v{x} row_ror:{r} row_mask:0xf bank_mask:0xf")
        for sw in ("v_permlane16_swap_b32", "v_permlane32_swap_b32"):
            stats.append(f"v_mov_b32 v{t}, v{x}")
            stats.append(f"{sw} v{x}, v{t}")
            stats.append(f"v_add_f32 v{x}, v{x}, v{t}")
    red(s1)
    stats.append(f"v_mul_f32 v{s1}, {f32(1/128)}, v{s1}")
    stats.append(f"v_sub_f32 v{f0}, v{f0}, v{s1}")
    stats.append(f"v_sub_f32 v{f1}, v{f1}, v{s1}")
    stats.append(f"v_mul_f32 v{f0}, v{f0}, v{f0}")
    stats.append(f"v_fmac_f32 v{f0}, v{f1}, v{f1}")
    red(f0)
    stats.append(f"v_mov_b32 v{f1}, v{s1}")
    gemv_il([vP, vP + 1], "a", 0, stats)
    tstamp()
    I(f"s_lshl_b32 s{sTMP}, s{sW}, 3")
    I(f"v_mov_b32 v{t}, s{sTMP}")
    I("s_mov_b64 exec, 1")
    I(f"ds_write_b64 v{t}, v[{f0}:{f1}] offset:{LST}")
    if fast:
        I("s_or_b32 s8, s8, s9")
        I(f"v_mov_b32 v{s1}, s8")
        I(f"v_lshrrev_b32 v{t}, 1, v{t}")
        I(f"ds_write_b32 v{t}, v{s1} offset:{LFL}")
    I("s_mov_b64 exec, -1")
    I(f"v_mov_b32 v{t}, 0")
    swap_reduce(vT)
    I(f"ds_write_b64 v{vLW}, v[{vT}:{vT+1}] offset:{LGU}")
    I("s_waitcnt lgkmcnt(0)")
    I("s_barrier")
    tstamp()
    Z = vA
    I(f"ds_read_b128 v[{Z}:{Z+3}], v{t} offset:{LST}")
    I(f"ds_read_b128 v[{Z+4}:{Z+7}], v{t} offset:{LST+16}")
    for w in range(4):
        I(f"ds_read2st64_b32 v[{vT+2*w}:{vT+2*w+1}], v{vLGU} offset0:{2*w} offset1:{2*w+1}")
    if fast: I(f"ds_read_b128 v[{vS+12}:{vS+15}], v{t} offset:{LFL}")
    I("s_waitcnt lgkmcnt(0)" if tstamps else "s_waitcnt lgkmcnt(5)" if fast else "s_waitcnt lgkmcnt(4)")
    m, q = Z + 8, Z + 9
    I(f"v_add_f32 v{m}, v{Z+1}, v{Z+3}")
    I(f"v_add_f32 v{q}, v{Z+5}, v{Z+7}")
    I(f"v_add_f32 v{Z}, v{Z}, v{Z+2}")
    I(f"v_add_f32 v{m}, v{m}, v{q}")
    I(f"v_add_f32 v{Z+4}, v{Z+4}, v{Z+6}")
    I(f"v_mul_f32 v{m}, 0.25, v{m}" if False else f"v_mul_f32 v{m}, {f32(0.25)}, v{m}")
    I(f"v_add_f32 v{Z}, v{Z}, v{Z+4}")
    for k in (1, 3, 5, 7): I(f"v_sub_f32 v{Z+k}, v{Z+k}, v{m}")
    I(f"v_mul_f32 v{Z+1}, v{Z+1}, v{Z+1}")
    I(f"v_mul_f32 v{Z+5}, v{Z+5}, v{Z+5}")
    I(f"v_fmac_f32 v{Z+1}, v{Z+3}, v{Z+3}")
    I(f"v_fmac_f32 v{Z+5}, v{Z+7}, v{Z+7}")
    I(f"v_mul_f32 v{Z}, {f32(1/512)}, v{Z}")
    I(f"v_add_f32 v{Z+1}, v{Z+1}, v{Z+5}")
    I(f"v_fmac_f32 v{Z}, {f32(0.25)}, v{Z+1}")
    I(f"v_cvt_pk_bf16_f32 v{q}, v{m}, v{Z}")
    I("s_waitcnt lgkmcnt(0)")
    I(f"v_add_f32 v{vT}, v{vT}, v{vT+2}")
    I(f"v_lshlrev_b32 v{m}, 16, v{q}")
    I(f"v_and_b32 v{q}, 0xffff0000, v{q}")
    I(f"v_add_f32 v{vT+1}, v{vT+1}, v{vT+3}")
    I(f"v_add_f32 v{q}, {f32(1e-5)}, v{q}")
    I(f"v_add_f32 v{vT+4}, v{vT+4}, v{vT+6}")
    I(f"v_cvt_pk_bf16_f32 v{q}, v{q}, v{q}")
    I(f"v_add_f32 v{vT+5}, v{vT+5}, v{vT+7}")
    I(f"v_and_b32 v{q}, 0xffff0000, v{q}")
    I(f"v_add_f32 v{vT}, v{vT}, v{vT+4}")
    I(f"v_sqrt_f32 v{q}, v{q}")
    I(f"v_add_f32 v{vT+1}, v{vT+1}, v{vT+5}")
    I(f"v_cvt_pk_bf16_f32 v{q}, v{q}, v{q}")
    I(f"v_fma_f32 v{vT}, -v{m}, v{vCS}, v{vT}")
    I(f"v_and_b32 v{q}, 0xffff0000, v{q}")
    I(f"v_fma_f32 v{vT+1}, -v{m}, v{vCS+1}, v{vT+1}")
    I(f"v_rcp_f32 v{q}, v{q}")
    I(f"v_mul_f32 v{vT}, v{vT}, v{q}")
    I(f"v_mul_f32 v{vT+1}, v{vT+1}, v{q}")
    I(f"v_cvt_pk_bf16_f32 v{vT}, v{vT}, v{vT+1}")
    I(f"v_and_b32 v{vT+1}, 0xffff0000, v{vT}")
    I(f"v_lshlrev_b32 v{vT}, 16, v{vT}")
    I(f"v_max_f32 v{vT}, 0, v{vT}")
    I(f"v_mul_f32 v{vT}, v{vT}, v{vT+1}")
    I(f"v_cvt_pk_bf16_f32 v{vP}, v{vT}, v{vT}")
    tstamp()
    gemv_il([vP], "v", vWDF)
    tstamp()
    if fast:
        I(f"v_or3_b32 v{vS+12}, v{vS+12}, v{vS+13}, v{vS+14}")
        I(f"v_or_b32 v{vS+12}, v{vS+12}, v{vS+15}")
        I(f"v_readfirstlane_b32 s8, v{vS+12}")
    swap_reduce(vPB)
    tstamp()
    if align:
        I(f"s_cmp_ge_u32 s{sTC}, 28")
        I("s_cbranch_scc1 L_local")
    if fast:
        I(f"buffer_store_dwordx4 v[{vPB}:{vPB+3}], v{vPUB2}, {srd(sWS)}, s{sP2A} offen")
        I("s_cmp_eq_u32 s8, 0")
        I("s_cbranch_scc1 L_local")
    I(f"buffer_store_dwordx4 v[{vPB}:{vPB+3}], v{vPUB2}, {srd(sWS)}, s{sP2} offen {spol}")
    I("L_local:")
    I(f"s_lshl_b32 s{sTMP}, s{sTC}, 2")
    I(f"s_add_u32 s{sTMP}, s{sTMP}, s{sW}")
    I(f"s_cmp_lg_u32 s{sTMP}, 0")
    I("s_cbranch_scc1 L_noep")
    I(f"s_lshl_b32 s{sTMP}, s{sTB}, 7")
    I("s_mov_b64 exec, 1")
    I(f"buffer_store_dwordx2 v[{vPB+2}:{vPB+3}], v{vHROW}, {srd(sWS)}, s{sTMP} offen")
    I("s_mov_b64 exec, -1")
    I("L_noep:")
    stamp()
    if not align: I("s_branch L_final")
    I("L_noffn:")
    if fast and not align:
        I("s_mov_b64 exec, 3")
        I(HB)
        I("s_mov_b64 exec, -1")
    if not align:
        I(f"v_lshlrev_b32 v{vH}, 16, v{vPB}")
        I(f"v_and_b32 v{vH+1}, 0xffff0000, v{vPB}")
    I("L_final:")
    I(f"v_mov_b32 v{vR}, 0")
    I(f"v_mov_b32 v{vR+1}, 0")
    I(f"s_mov_b32 exec_hi, 0x00ffffff")
    poll("L_p2", RING0 + 32, vGAT, sP2, 2, soffA=sP2A if fast else None, delay=dP)
    colsum()
    I(f"v_add_f32 v{vT+2}, v{vT+2}, v{vH}")
    I(f"v_add_f32 v{vT+3}, v{vT+3}, v{vH+1}")
    I(f"v_cvt_pk_bf16_f32 v{vT}, v{vT+2}, v{vT+3}")
    if fixref:
        I(f"v_mov_b32 v{vT+5}, 0")
        I(f"global_load_dword v{vT+4}, v{vT+5}, s[76:77] sc1")
        I(f"s_memrealtime s[{sNOW}:{sNOW+1}]")
        I("s_waitcnt vmcnt(0) lgkmcnt(0)")
        I(f"v_readfirstlane_b32 s{sLVL}, v{vT+4}")
        I(f"s_sub_u32 s{sTMP}, s{sT0}, s{sLVL}")
        I(f"s_add_u32 s{sTMP}, s{sTMP}, 1000")
        I(f"s_sub_u32 s{sTMP2}, s{sNOW}, s{sLVL}")
        I(f"s_mov_b32 s{sT0}, s{sLVL}")
        I(f"v_mov_b32 v{vT+6}, s{sTMP}")
        I(f"v_mov_b32 v{vT+7}, s{sTMP2}")
        I("s_mov_b64 exec, 1")
        I(f"global_atomic_umax v{vT+5}, v{vT+6}, s[76:77] offset:4 sc1")
        I(f"global_atomic_umax v{vT+5}, v{vT+7}, s[76:77] offset:8 sc1")
        I(f"v_sub_u32 v{vT+6}, 2000, v{vT+6}")
        I(f"global_atomic_umax v{vT+5}, v{vT+6}, s[76:77] offset:12 sc1")
        I("s_mov_b64 exec, -1")
    if fixt:
        I("L_fix:")
        I(f"s_memrealtime s[{sNOW}:{sNOW+1}]")
        I("s_waitcnt lgkmcnt(0)")
        I(f"s_sub_u32 s{sLVL}, s{sNOW}, s{sT0}")
        I(f"s_cmp_lt_u32 s{sLVL}, {fixt * 100}")
        I("s_cbranch_scc1 L_fix")
    I("s_mov_b64 exec, 3")
    I(f"buffer_store_dword v{vT}, v{vHST}, {srd(sOUT)}, s{sOUTO} offen")
    I("s_mov_b64 exec, -1")
    if stamps:
        stamp()
        I(f"s_cmp_lg_u32 s{sW}, 0")
        I("s_cbranch_scc1 L_end")
        I("s_waitcnt lgkmcnt(0)")
        I(f"s_lshl_b32 s{sTMP}, s2, 6")
        I(f"s_add_u32 s{sTMP}, s{sTMP}, {STAMPOFF}")
        I(f"v_mov_b32 v{vT+2}, 0")
        I("s_mov_b64 exec, 1")
        for k in range(stamp_n[0]):
            r = 84 if k == 0 else 60 + 2 * (k - 1)
            I(f"v_mov_b32 v{vT+3}, s{r}")
            I(f"buffer_store_dword v{vT+3}, v{vT+2}, {srd(sWS)}, s{sTMP} offen offset:{4*k}")
        if tstamps:
            for k in range(tn[0]):
                r = 10 + 2 * k if k < 9 else [32, 34, 40, 42][k - 9]
                I(f"v_writelane_b32 v91, s{r}, {k}")
        if pstamps:
            I("s_mov_b64 exec, 0xffff")
            I(f"s_add_u32 s60, s{sTMP}, 0x10000")
            I(f"buffer_store_dword v91, v{vROW}, {srd(sWS)}, s60 offen")
            I("s_mov_b64 exec, 1")
        I("s_getreg_b32 s60, hwreg(HW_REG_XCC_ID)")
        I(f"v_mov_b32 v{vT+3}, s60")
        I(f"buffer_store_dword v{vT+3}, v{vT+2}, {srd(sWS)}, s{sTMP} offen offset:60")
    I("L_end:")
    I("s_endpgm")
    body = a.finish()
    out = HEADER + "; @launch grid=(256,1,1) block=(256,1,1) lds=10368\n"
    out += '.amdgcn_target "amdgcn-amd-amdhsa--gfx950"\n.text\n'
    out += f".globl {KNAME}\n.p2align 8\n.type {KNAME},@function\n{KNAME}:\n"
    out += body
    out += f'''.section .rodata,"a"
.p2align 6
.amdhsa_kernel {KNAME}
  .amdhsa_next_free_vgpr 512
  .amdhsa_next_free_sgpr 102
  .amdhsa_accum_offset 256
  .amdhsa_group_segment_fixed_size 0
  .amdhsa_kernarg_size 96
  .amdhsa_user_sgpr_count 2
  .amdhsa_user_sgpr_kernarg_segment_ptr 1
  .amdhsa_system_sgpr_workgroup_id_x 1
.end_amdhsa_kernel
'''
    return out

if __name__ == "__main__":
    import json
    cfg = json.loads(sys.argv[2]) if len(sys.argv) > 2 else {}
    open(sys.argv[1], "w").write(gen(**cfg))
```

```python
import sys
sys.path.insert(0, "gen")
from asmlib import Asm
import struct

KNAME = "sequential_preLN__mha_block_cached__glu_gated_reglu__decode_kernel"
HEADER = open("sequential_preLN__mha_block_cached__glu_gated_reglu__decode.s.ref").read().split("; Override launch")[0]

def f32(x):
    return "0x%08x" % struct.unpack("<I", struct.pack("<f", x))[0]

vLANE, vKV, vWQ, vWO, vWD = 1, 2, 3, 4, 5
vGU = 6
vPUB, vGAT, vROW, vLW, vM0, vM1, vXRES, vMAX = 8, 9, 10, 11, 12, 13, 14, 15
vQ, vP, vG, vS, vA, vACC, vT = 16, 20, 24, 28, 44, 60, 68
vLO, vLGU, vLQ, vHST, vHROW, vH = 84, 85, 86, 87, 88, 89
vPB = 92
RING0 = 96
vWDF = 192
sW, sB, sH, sJF = 3, 4, 5, 6
sK, sV, sWQ, sWO, sWD, sWS, sX, sOUT, sDBG = 8, 12, 16, 20, 24, 28, 32, 36, 40
sISS, sWOFF, sTMP, sTMP2 = 48, 49, 50, 51
sODD, sBIT1 = 52, 54
sCNT, sL2E = 58, 59
sSCALE, sFFFF, sP2, sHST = 44, 45, 46, 47
sGOFF = 86
sROT = 94
sGUSTEP = 98
sOUTO = 100
sTAG = 56
sTAGP = 88
sTB, sTC = 90, 91
sHSTA, sROTA, sP2A = 92, 93, 87
sXCC = 95
sRQ = 7
sFL, sC1, sC2 = 76, 77, 82
vFLG = 91
vKV2 = 0
sNOW, sLVL, sT0 = 80, 101, 84
sPC, sPFD = 78, 83
sXT = 40
LQ, LML, LO, LGU, LCS, LST, LFL = 0, 2048, 4096, 6144, 8192, 10240, 10304
P1OFF, P2OFF, HOFF, STAMPOFF = 0x10000, 0x110000, 0x210000, 0x400000
P2AOFF, HAOFF = 0x220000, 0x218000
FLOFF, P1B, P1C, P2B, P2C, HC = 0x8000, 0x500000, 0x600000, 0x700000, 0x800000, 0x900000
SPIN = 200000

DESC = '''; Design (generated by my own script; one workgroup of 4 waves per (batch, head), one per CU):
;   * hand-off granule = 16 bytes {payload, 64-bit tag}; the tag is derived from an epoch word found in
'''

def srd(b): return f"s[{b}:{b+3}]"

def gen(N=5, NV=None, R=24, wpol="nt", kvpol="nt", stamps=False, pstamps=False, sleep=4, wstart=40, wend=250, M=11, kfirst=1, ratio=(5, 6), qextra=3, cu=5, Tx=5, noside=False, vpol=None, lpol="sc1", spol="sc1", K=4, gap=1, TH=0, slow=16, cs_start=300, remap=False, fast=False, NA=32, fpol=None, pretouch=470, rawh=True, dH=20, dP=12, psl=0, align=True, NE=8, E=24, hmap=False, kstamps=False, nokc=False, fB=0, fC=0, KC=1, dS=5, rotq=0, tstamps=False, ND=0, dper=2, fakeq=0, qpol=None, qdelay=0, ctl=True, Ts=137.0, T0=2200, Tside=17.5, dl=350, U=16, cands=2, nl=8, ustart=48, d1=16, two=True, pf=4, pft=True, pfd=3, fixt=0, fixref=False, hu=False, halfx=False, aX=6, aY=11, bS=9, KP=1, bP=5, hcopy=False, opol="", epol="", swp=32):
    a = Asm(); I = a.I
    wp = (" " + wpol) if wpol else ""
    kp = (" " + kvpol) if kvpol else ""
    fp = wp if fpol is None else ((" " + fpol) if fpol else "")
    qp = wp if qpol is None else ((" " + qpol) if qpol else "")
    NWQ = fakeq or 32
    vp = kp if vpol is None else ((" " + vpol) if vpol else "")
    stamp_n = [0]
    def stamp():
        if stamps:
            k = stamp_n[0]; stamp_n[0] += 1
            r = 84 if k == 0 else 60 + 2 * (k - 1)
            I(f"s_memrealtime s[{r}:{r+1}]")
    def pstamp(k, force=False):
        if (pstamps and not kstamps and not tstamps) or force:
            I(f"s_memrealtime s[96:97]")
            I("s_waitcnt lgkmcnt(0)")
            I(f"v_writelane_b32 v91, s96, {k}")
    free = [("v", RING0 + 4 * k) for k in range(R)]
    extra = [("v", vWDF + 4 * k) for k in range(16)] + [("a", 252 - 4 * k) for k in range(28)]
    slot_of = {}
    busy_a = set()
    tn = [0]
    def tstamp():
        if tstamps:
            k = tn[0]; tn[0] += 1
            r = 10 + 2 * k if k < 9 else [32, 34, 40, 42][k - 9]
            I(f"s_memtime s[{r}:{r+1}]")
    def slot(g): return slot_of[g][1]
    def alloc(g):
        if free: r = free.pop(0)
        else:
            assert g < 100 and extra, f"out of slots at {g}"
            r = extra.pop(0)
        if r[0] == "a": busy_a.add(r[1])
        slot_of[g] = r
    def release(g):
        r = slot_of[g]
        if r[0] == "v" and r[1] < vWDF: free.append(r)
        if r[0] == "a": busy_a.discard(r[1])

    def wave_reduce(x, t, op):
        for r in (8, 4, 2, 1):
            I(f"{op}_dpp v{x}, v{x}, v{x} row_ror:{r} row_mask:0xf bank_mask:0xf")
        I(f"v_mov_b32 v{t}, v{x}")
        I(f"v_permlane16_swap_b32 v{x}, v{t}")
        I(f"{op} v{x}, v{x}, v{t}")
        I(f"v_mov_b32 v{t}, v{x}")
        I(f"v_permlane32_swap_b32 v{x}, v{t}")
        I(f"{op} v{x}, v{x}, v{t}")

    def ln(Dl, X0, X1, F):
        f = [F + i for i in range(8)]
        c = [F + 8 + i for i in range(4)]
        s, t = F + 12, F + 13
        for i in range(4):
            I(f"v_lshlrev_b32 v{f[2*i]}, 16, v{Dl[i]}")
            I(f"v_and_b32 v{f[2*i+1]}, 0xffff0000, v{Dl[i]}")
        for i in range(4):
            I(f"v_add_f32 v{c[i]}, v{f[2*i]}, v{f[2*i+1]}")
        I(f"v_add_f32 v{c[0]}, v{c[0]}, v{c[2]}")
        I(f"v_add_f32 v{c[1]}, v{c[1]}, v{c[3]}")
        I(f"v_add_f32 v{s}, v{c[0]}, v{c[1]}")
        wave_reduce(s, t, "v_add_f32")
        I(f"v_mul_f32 v{s}, {f32(1/512)}, v{s}")
        for i in range(4):
            I(f"v_sub_f32 v{Dl[i]}, v{f[2*i]}, v{s}")
            I(f"v_sub_f32 v{c[i]}, v{f[2*i+1]}, v{s}")
        for i in range(4):
            I(f"v_mul_f32 v{Dl[i]}, v{Dl[i]}, v{Dl[i]}")
        for i in range(4):
            I(f"v_fmac_f32 v{Dl[i]}, v{c[i]}, v{c[i]}")
        I(f"v_add_f32 v{Dl[0]}, v{Dl[0]}, v{Dl[2]}")
        I(f"v_add_f32 v{Dl[1]}, v{Dl[1]}, v{Dl[3]}")
        I(f"v_add_f32 v{Dl[0]}, v{Dl[0]}, v{Dl[1]}")
        wave_reduce(Dl[0], t, "v_add_f32")
        I(f"v_mul_f32 v{Dl[0]}, {f32(1/512)}, v{Dl[0]}")
        I(f"v_cvt_pk_bf16_f32 v{t}, v{s}, v{Dl[0]}")
        I(f"v_lshlrev_b32 v{s}, 16, v{t}")
        I(f"v_and_b32 v{t}, 0xffff0000, v{t}")
        I(f"v_add_f32 v{t}, {f32(1e-5)}, v{t}")
        I(f"v_sub_f32 v{f[0]}, v{f[0]}, v{s}")
        I(f"v_cvt_pk_bf16_f32 v{t}, v{t}, v{t}")
        I(f"v_sub_f32 v{f[1]}, v{f[1]}, v{s}")
        I(f"v_and_b32 v{t}, 0xffff0000, v{t}")
        I(f"v_cvt_pk_bf16_f32 v{f[0]}, v{f[0]}, v{f[1]}")
        I(f"v_sqrt_f32 v{t}, v{t}")
        I(f"v_and_b32 v{f[1]}, 0xffff0000, v{f[0]}")
        I(f"v_lshlrev_b32 v{f[0]}, 16, v{f[0]}")
        I(f"v_cvt_pk_bf16_f32 v{t}, v{t}, v{t}")
        I(f"v_and_b32 v{t}, 0xffff0000, v{t}")
        I(f"v_rcp_f32 v{s}, v{t}")
        I(f"v_mul_f32 v{f[2]}, v{f[0]}, v{s}")
        I(f"v_mul_f32 v{f[3]}, v{f[1]}, v{s}")
        I(f"v_fma_f32 v{f[4]}, -v{f[2]}, v{t}, v{f[0]}")
        I(f"v_fma_f32 v{f[5]}, -v{f[3]}, v{t}, v{f[1]}")
        I(f"v_fmac_f32 v{f[2]}, v{f[4]}, v{s}")
        I(f"v_fmac_f32 v{f[3]}, v{f[5]}, v{s}")
        I(f"v_cvt_pk_bf16_f32 v{X0}, v{f[2]}, v{f[2]}")
        I(f"v_cvt_pk_bf16_f32 v{X1}, v{f[3]}, v{f[3]}")

    def afrag(dst, src, u):
        I(f"v_and_b32_dpp v{dst}, v{src}, v{vM0} quad_perm:[{u},{u},{u},{u}] row_mask:0xf bank_mask:0xf")
        I(f"v_and_b32_dpp v{dst+1}, v{src}, v{vM1} quad_perm:[{u},{u},{u},{u}] row_mask:0xf bank_mask:0xf")

    def mfma2(A, bfile, b, abid, first, acc=vACC):
        lo, hi = acc, acc + 4
        c0 = "0" if first else f"v[{lo}:{lo+3}]"
        c1 = "0" if first else f"v[{hi}:{hi+3}]"
        I(f"v_mfma_f32_4x4x4_16b_bf16 v[{lo}:{lo+3}], v[{A}:{A+1}], {bfile}[{b}:{b+1}], {c0} cbsz:2 abid:{abid}")
        I(f"v_mfma_f32_4x4x4_16b_bf16 v[{hi}:{hi+3}], v[{A}:{A+1}], {bfile}[{b+2}:{b+3}], {c1} cbsz:2 abid:{abid}")

    def swap_reduce(dst, acc=vACC):
        lo, hi = acc, acc + 4
        for i in range(4): I(f"v_permlane32_swap_b32 v{lo+i}, v{hi+i}")
        for i in range(4): I(f"v_add_f32 v{lo+i}, v{lo+i}, v{hi+i}")
        I(f"v_permlane16_swap_b32 v{lo}, v{lo+2}")
        I(f"v_permlane16_swap_b32 v{lo+1}, v{lo+3}")
        I(f"v_add_f32 v{dst}, v{lo}, v{lo+2}")
        I(f"v_add_f32 v{dst+1}, v{lo+1}, v{lo+3}")

    def afrag1(dst, src, u, half):
        I(f"v_and_b32_dpp v{dst+half}, v{src}, v{vM0 if half == 0 else vM1} quad_perm:[{u},{u},{u},{u}] row_mask:0xf bank_mask:0xf")

    def gemv_il(Xs, bfile, b0, fill=None):
        nr = len(Xs)
        combos = [(u, r) for u in range(4) for r in range(nr)]
        fill = fill if fill is not None else []
        dbl = len(fill) > 18
        def put():
            x = fill.pop(0)
            if callable(x): x()
            else: I(x)
        afrag(vA, Xs[combos[0][1]], combos[0][0])
        first = True
        for ci, (u, r) in enumerate(combos):
            A = vA + 2 * (ci & 1)
            for aa in range(4):
                f = (8 * aa + 2 * u + r) if nr == 2 else (4 * aa + u)
                mfma2(A, bfile, b0 + 4 * f, aa, first); first = False
                if aa < 2 and ci + 1 < len(combos):
                    afrag1(vA + 2 * ((ci + 1) & 1), Xs[combos[ci + 1][1]], combos[ci + 1][0], aa)
                    if fill and aa == 0 and dbl: put()
                elif fill:
                    put()
                    if fill and aa == 2 and dbl: put()
        while fill: put()

    I(f"s_cmp_ge_u32 s2, 256")
    I("s_cbranch_scc1 L_end")
    stamp()
    if ctl and not stamps: I(f"s_memrealtime s[{sT0}:{sT0+1}]")
    a.C("kernarg pointers; lane/wave decomposition")
    I("s_load_dwordx16 s[60:75], s[0:1], 0")
    I("s_load_dwordx8 s[76:83], s[0:1], 64")
    I(f"v_lshrrev_b32 v{vT}, 6, v0")
    I(f"v_and_b32 v{vLANE}, 63, v0")
    I(f"v_readfirstlane_b32 s{sW}, v{vT}")
    I(f"s_lshr_b32 s{sB}, s2, 5")
    if hmap:
        I(f"s_and_b32 s{sH}, s2, 7")
        I(f"s_lshl_b32 s{sH}, s{sH}, 2")
        I(f"s_bfe_u32 s{sTMP}, s2, 0x20003")
        I(f"s_or_b32 s{sH}, s{sH}, s{sTMP}")
        I(f"s_andn2_b32 s2, s2, 31")
        I(f"s_or_b32 s2, s2, s{sH}")
    else:
        I(f"s_and_b32 s{sH}, s2, 31")
    if remap:
        I(f"s_and_b32 s{sTB}, s2, 7")
        I(f"s_lshr_b32 s{sTC}, s2, 3")
    else:
        I(f"s_mov_b32 s{sTB}, s{sB}")
        I(f"s_mov_b32 s{sTC}, s{sH}")
    I(f"s_min_u32 s{sJF}, s{sTC}, 27")
    J16, SS = vT + 1, vT + 2
    I(f"v_and_b32 v{J16}, 15, v{vLANE}")
    I(f"v_lshrrev_b32 v{SS}, 4, v{vLANE}")
    I(f"v_lshlrev_b32 v{vROW}, 2, v{vLANE}")
    I(f"v_lshlrev_b32 v{vKV}, 4, v{vLANE}")
    I(f"s_lshl_b32 s{sTMP}, s{sW}, 12")
    I(f"v_add_u32 v{vKV}, s{sTMP}, v{vKV}")
    if swp: I(f"v_xor_b32 v{vKV2}, 0x2000, v{vKV}")
    for i in range(4):
        I(f"s_add_u32 s{sROT+i}, s{sW}, {i}")
        I(f"s_and_b32 s{sROT+i}, s{sROT+i}, 3")
        I(f"s_lshl_b32 s{sROT+i}, s{sROT+i}, 8")
    I(f"v_lshlrev_b32 v{vT+3}, 4, v{J16}")
    I(f"s_lshl_b32 s{sTMP}, s{sW}, 20" if not fakeq else f"s_lshl_b32 s{sTMP}, s{sB}, 19")
    I(f"s_lshl_b32 s{sTMP2}, s{sH}, 8")
    I(f"s_add_u32 s{sTMP}, s{sTMP}, s{sTMP2}")
    I(f"v_lshlrev_b32 v{vWQ}, {17 if fakeq else 18}, v{SS}")
    I(f"v_add3_u32 v{vWQ}, v{vWQ}, v{vT+3}, s{sTMP}")
    if rotq:
        I(f"s_mul_i32 s{sRQ}, s{sB}, {rotq // 2}")
        I(f"v_add_u32 v{vT+7}, s{sRQ}, v{vLANE}")
        I(f"v_and_b32 v{vT+7}, 15, v{vT+7}")
        I(f"v_and_or_b32 v{vT+7}, v{vLANE}, 48, v{vT+7}")
        I(f"v_lshlrev_b32 v{vT+7}, 2, v{vT+7}")
        I(f"s_lshl_b32 s{sRQ}, s{sRQ}, 14")
    I("s_waitcnt lgkmcnt(0)")
    pstamp(0)
    def mk(b, plo, offlo, size, offhi=None):
        if offlo is None:
            I(f"s_mov_b32 s{b}, s{plo}"); I(f"s_mov_b32 s{b+1}, s{plo+1}")
        else:
            I(f"s_add_u32 s{b}, s{plo}, {offlo}"); I(f"s_addc_u32 s{b+1}, s{plo+1}, 0")
        I(f"s_mov_b32 s{b+2}, {size}"); I(f"s_mov_b32 s{b+3}, 0x20000")
    I(f"s_lshl_b32 s{sTMP}, s{sB}, 10")
    mk(sX, 60, f"s{sTMP}", 1024)
    I(f"s_lshl_b32 s{sTMP}, s2, 20")
    mk(sK, 62, f"s{sTMP}", 1 << 20)
    xl = [I(f"buffer_load_dword v{vT+8+i}, v{vT+7 if rotq else vROW}, {srd(sX)}, s{sROT+i} offen") for i in range(4)]
    I(f"s_mov_b32 s{sISS}, 0")
    issued = [0]
    kvid = {}
    def issue_kv():
        g = issued[0]; issued[0] += 1
        alloc(g)
        s = sK if g < 256 else sV
        if g == 256: I(f"s_mov_b32 s{sISS}, 0")
        kvid[g] = I(f"buffer_load_dwordx4 {slot_of[g][0]}[{slot(g)}:{slot(g)+3}], v{vKV2 if (swp and ((g & 255) // swp) & 1) else vKV}, {srd(s)}, s{sISS} offen offset:{(g&3)*1024}{kp if g < 256 else vp}")
        if (g & 3) == 3 and g != 255 and g != 511: I(f"s_add_u32 s{sISS}, s{sISS}, 16384")
    wqid = []
    def issue_wq():
        f = len(wqid)
        if rotq:
            I(f"s_add_u32 s{sWOFF}, s{sRQ}, {f*8192}")
            I(f"s_and_b32 s{sWOFF}, s{sWOFF}, 0x3ffff")
        else: I(f"s_mov_b32 s{sWOFF}, {f*8192}")
        wqid.append(I(f"buffer_load_dwordx4 a[{4*f}:{4*f+3}], v{vWQ}, {srd(sWQ)}, s{sWOFF} offen{qp}"))
    mk(sWQ, 66, None, 4 << 20)
    seq = ['K'] * kfirst
    acc = 0
    nwq = 0
    while nwq < NWQ:
        seq.append('W'); nwq += 1
        acc += ratio[0]
        while acc >= ratio[1] and nwq < NWQ:
            seq.append('K'); acc -= ratio[1]
    seqid = []
    def issue_seq(n):
        if seq[n] == 'K': issue_kv()
        else: issue_wq()
        seqid.append(a.vm - 1)
    seqpos = 0
    while seqpos < min(M, len(seq)):
        issue_seq(seqpos); seqpos += 1
    I(f"s_lshl_b32 s{sTMP2}, s{sTB}, 7")
    I(f"s_load_dwordx2 s[{sTAG}:{sTAG+1}], s[82:83], s{sTMP2}")
    I(f"s_lshl_b32 s{sTMP2}, s{sB}, 7")
    I(f"s_load_dwordx2 s[{sTAGP}:{sTAGP+1}], s[82:83], s{sTMP2}")
    mk(sV, 64, f"s{sTMP}", 1 << 20)
    I(f"s_lshl_b32 s{sTMP}, s{sH}, 17")
    mk(sWO, 68, f"s{sTMP}", 1 << 17)
    I(f"s_lshl_b32 s{sTMP}, s{sJF}, 16")
    mk(sWD, 76, f"s{sTMP}", 1 << 16)
    I(f"s_cmp_ge_u32 s{sTC}, 28")
    I(f"s_cselect_b32 s{sWD+2}, 0, s{sWD+2}")
    I(f"s_lshl_b32 s{sTMP}, s{sTB}, 10")
    mk(sXT, 60, f"s{sTMP}", 1024)
    mk(sOUT, 78, None, 8192)
    mk(sWS, 82, None, 0xa00000)
    I(f"s_lshl_b32 s{sTMP}, s{sW}, 8")
    I(f"v_lshlrev_b32 v{vWO}, 15, v{SS}")
    I(f"v_add3_u32 v{vWO}, v{vWO}, v{vT+3}, s{sTMP}")
    I(f"v_lshlrev_b32 v{vWD}, 14, v{SS}")
    I(f"v_add3_u32 v{vWD}, v{vWD}, v{vT+3}, s{sTMP}")
    I(f"v_cmp_gt_u32 vcc, 8, v{J16}")
    I(f"v_mov_b32 v{vT+4}, s74")
    I(f"v_mov_b32 v{vT+5}, s72")
    I(f"v_cndmask_b32 v{vGU}, v{vT+4}, v{vT+5}, vcc")
    I(f"v_mov_b32 v{vT+4}, s75")
    I(f"v_mov_b32 v{vT+5}, s73")
    I(f"v_cndmask_b32 v{vGU+1}, v{vT+4}, v{vT+5}, vcc")
    I(f"s_mul_i32 s{sTMP}, s{sW}, {128*3584}")
    I(f"s_lshl_b32 s{sTMP2}, s{sJF}, 7")
    I(f"s_add_u32 s{sTMP}, s{sTMP}, s{sTMP2}")
    I(f"v_mul_u32_u24 v{vT+4}, {32*3584}, v{SS}")
    I(f"v_and_b32 v{vT+5}, 0x70, v{vT+3}")
    I(f"v_add3_u32 v{vT+4}, v{vT+4}, v{vT+5}, s{sTMP}")
    I(f"s_cmp_ge_u32 s{sTC}, 28")
    I(f"s_cselect_b32 s{sTMP}, 0, -1")
    I(f"s_cselect_b32 s{sGUSTEP}, 0, 7168")
    I(f"v_and_b32 v{vT+4}, s{sTMP}, v{vT+4}")
    I(f"v_mov_b32 v{vT+5}, 0")
    I(f"v_lshl_add_u64 v[{vGU}:{vGU+1}], v[{vT+4}:{vT+5}], 0, v[{vGU}:{vGU+1}]")
    I(f"s_mov_b32 s{sGUSTEP+1}, 0")
    I(f"s_lshl_b32 s{sTMP}, s{sW}, 9")
    I(f"v_lshlrev_b32 v{vLW}, 5, v{J16}")
    I(f"v_lshlrev_b32 v{vT+4}, 3, v{SS}")
    I(f"v_add3_u32 v{vLW}, v{vLW}, v{vT+4}, s{sTMP}")
    I(f"s_lshl_b32 s{sTMP}, s2, 12")
    I(f"v_lshl_add_u32 v{vPUB}, v{vLW}, 1, s{sTMP}")
    I(f"s_lshl_b32 s{sTMP}, s{sTB}, 17")
    I(f"s_lshl_b32 s{sTMP2}, s{sTC}, 7")
    I(f"s_add_u32 s{sTMP}, s{sTMP}, s{sTMP2}")
    I(f"s_lshl_b32 s{sTMP2}, s{sW}, 5")
    I(f"s_add_u32 s{sTMP}, s{sTMP}, s{sTMP2}")
    I(f"v_lshrrev_b32 v{vGAT}, 1, v{vLANE}")
    I(f"v_lshlrev_b32 v{vGAT}, 12, v{vGAT}")
    I(f"v_and_b32 v{vT+4}, 16, v{vT+3}")
    I(f"v_add3_u32 v{vGAT}, v{vGAT}, v{vT+4}, s{sTMP}")
    if halfx:
        I(f"s_lshl_b32 s{sTMP}, s{sTB}, 17")
        I(f"s_lshl_b32 s{sTMP2}, s{sTC}, 6")
        I(f"s_add_u32 s{sTMP}, s{sTMP}, s{sTMP2}")
        I(f"s_lshr_b32 s{sTMP2}, s{sW}, 1")
        I(f"s_lshl_b32 s{sTMP2}, s{sTMP2}, 5")
        I(f"s_add_u32 s{sTMP}, s{sTMP}, s{sTMP2}")
        I(f"v_lshrrev_b32 v{vGAT}, 1, v{vLANE}")
        I(f"v_lshlrev_b32 v{vGAT}, 12, v{vGAT}")
        I(f"v_add3_u32 v{vGAT}, v{vGAT}, v{vT+4}, s{sTMP}")
        I(f"s_lshl_b32 s{sTMP}, s2, 12")
        I(f"v_lshlrev_b32 v{vT+4}, 3, v{SS}")
        I(f"v_add3_u32 v{vPUB}, v{vLW}, v{vT+4}, s{sTMP}")
    I(f"s_mov_b32 s{sGOFF}, {P1OFF}")
    I(f"v_lshlrev_b32 v{vHROW}, 4, v{vLANE}")
    I(f"v_lshlrev_b32 v{vLO}, 3, v{vLANE}")
    I(f"v_add_u32 v{vLO}, {LO}, v{vLO}")
    I(f"v_add_u32 v{vLGU}, {LGU}, v{vROW}")
    I(f"v_lshlrev_b32 v{vLQ}, 5, v{J16}")
    I(f"v_and_b32 v{vHST}, 4, v{vROW}")
    I(f"v_and_b32 v{vT+4}, 3, v{vLANE}")
    I(f"v_mov_b32 v{vT+5}, 0xffff")
    I(f"v_mov_b32 v{vT+6}, 0xffff0000")
    I(f"v_mov_b32 v{vM0}, 0")
    I(f"v_mov_b32 v{vM1}, 0")
    for val, dst, src in ((0, vM0, vT+5), (1, vM0, vT+6), (2, vM1, vT+5), (3, vM1, vT+6)):
        I(f"v_cmp_eq_u32 vcc, {val}, v{vT+4}")
        I(f"v_cndmask_b32 v{dst}, v{dst}, v{src}, vcc")
    I(f"s_mov_b32 s{sODD}, 0xaaaaaaaa"); I(f"s_mov_b32 s{sODD+1}, 0xaaaaaaaa")
    I(f"s_mov_b32 s{sBIT1}, 0xcccccccc"); I(f"s_mov_b32 s{sBIT1+1}, 0xcccccccc")
    I(f"s_mov_b32 s{sL2E}, {f32(1.4426950408889634)}")
    I(f"s_mov_b32 s{sSCALE}, {f32(128 ** -0.5)}")
    I(f"s_mov_b32 s{sFFFF}, 0xffff")
    I(f"s_mov_b32 s{sP2}, {P2OFF}")
    I(f"s_lshl_b32 s{sTMP}, s{sTB}, 10")
    I(f"s_lshl_b32 s{sTMP2}, s{sTC}, 5")
    I(f"s_add_u32 s{sOUTO}, s{sTMP}, s{sTMP2}")
    I(f"s_lshl_b32 s{sTMP2}, s{sW}, 3")
    I(f"s_add_u32 s{sOUTO}, s{sOUTO}, s{sTMP2}")
    I(f"s_lshl_b32 s{sHST}, s{sOUTO}, 2")
    I(f"s_add_u32 s{sHST}, s{sHST}, {HOFF}")
    I(f"s_lshl_b32 s{sTMP}, s{sTB}, 12")
    I(f"s_lshl_b32 s{sROT}, s{sW}, 10")
    I(f"s_add_u32 s{sROT}, s{sROT}, s{sTMP}")
    I(f"s_add_u32 s{sROT}, s{sROT}, {HOFF}")
    I(f"s_add_u32 s{sHSTA}, s{sHST}, {HAOFF - HOFF}")
    I(f"s_add_u32 s{sROTA}, s{sROT}, {HAOFF - HOFF}")
    I(f"s_mov_b32 s{sP2A}, {P2AOFF}")
    I(f"v_mov_b32 v{vMAX}, 0xff800000")
    I("s_waitcnt lgkmcnt(0)")
    for tg in (sTAG, sTAGP):
        I(f"s_mul_i32 s{tg}, s{tg}, 1664525")
        I(f"s_add_u32 s{tg}, s{tg}, 1013904223")
        I(f"s_mul_i32 s{tg+1}, s{tg+1}, 22695477")
        I(f"s_add_u32 s{tg+1}, s{tg+1}, 1")
    I(f"v_mov_b32 v{vPB+2}, s{sTAGP}")
    I(f"v_mov_b32 v{vPB+3}, s{sTAGP+1}")
    if fixref:
        mk(sDBG if False else 40, 80, None, 256) if False else None
        I(f"s_or_b32 s{sTMP}, s2, s{sW}")
        I(f"s_cmp_lg_u32 s{sTMP}, 0")
        I("s_cbranch_scc1 L_noref")
        I(f"v_mov_b32 v{vT+4}, s{sT0}")
        I(f"v_mov_b32 v{vT+5}, 0")
        I("s_mov_b64 exec, 1")
        a.X(f"global_store_dword v{vT+5}, v{vT+4}, s[80:81] sc1")
        I("s_mov_b64 exec, -1")
        I("L_noref:")
        I(f"s_mov_b64 s[76:77], s[80:81]")
    pstamp(2)
    a.C("LayerNorm(x[b]) with the reference's bf16 roundings, then q = xn @ wq[:, head]")
    a.wait_vm(xl[3])
    pstamp(3)
    X0, X1 = vT, vT + 1
    ln([vT + 8 + i for i in range(4)], vP, vP + 1, vS)
    pstamp(4)
    for u in range(4):
        for r in range(2):
            afrag(vA + 4 * u + 2 * r, vP + r, u)
    base = xl[3] + 1
    fdone = 0
    def do_wq_upto(idx):
        nonlocal fdone
        while fdone < len(wqid) and wqid[fdone] <= idx:
            f = fdone; fdone += 1
            aa, u, r = f >> 3, (f >> 1) & 3, f & 1
            mfma2(vA + 4 * u + 2 * r, "a", 4 * f, aa, f == 0)
    while seqpos < len(seq):
        idx = seqid[seqpos - M]
        a.wait_vm(idx)
        issue_seq(seqpos); seqpos += 1
        do_wq_upto(idx)
    kleft = qextra
    while fdone < NWQ:
        idx = wqid[fdone]
        a.wait_vm(idx)
        while issued[0] - sum(1 for g in kvid if kvid[g] <= idx) < N: issue_kv()
        do_wq_upto(idx)
    for _ in range(qdelay):
        a.wait_vm(kvid[issued[0] - N]); issue_kv()
    pstamp(8)
    swap_reduce(vT)
    I(f"ds_write_b64 v{vLW}, v[{vT}:{vT+1}] offset:{LQ}")
    if qextra > 0: issue_kv()
    I("s_waitcnt lgkmcnt(0)")
    I("s_barrier")
    if qextra > 1: issue_kv()
    pstamp(9)
    for w in range(4):
        I(f"ds_read_b128 v[{vS+8*(w&1)}:{vS+8*(w&1)+3}], v{vLQ} offset:{LQ+w*512}" if w < 2 else f"ds_read_b128 v[{vA+8*(w&1)}:{vA+8*(w&1)+3}], v{vLQ} offset:{LQ+w*512}")
        I(f"ds_read_b128 v[{vS+8*(w&1)+4}:{vS+8*(w&1)+7}], v{vLQ} offset:{LQ+w*512+16}" if w < 2 else f"ds_read_b128 v[{vA+8*(w&1)+4}:{vA+8*(w&1)+7}], v{vLQ} offset:{LQ+w*512+16}")
    I("s_waitcnt lgkmcnt(0)")
    for i in range(8): I(f"v_add_f32 v{vS+i}, v{vS+i}, v{vS+8+i}")
    for i in range(8): I(f"v_add_f32 v{vA+i}, v{vA+i}, v{vA+8+i}")
    for i in range(8): I(f"v_add_f32 v{vS+i}, v{vS+i}, v{vA+i}")
    if qextra > 2: issue_kv()
    for i in range(4): I(f"v_cvt_pk_bf16_f32 v{vQ+i}, v{vS+2*i}, v{vS+2*i+1}")
    stamp()

    side = []
    side_last = [0]
    def mkside():
        def clr():
            I(f"s_and_b32 s{sTMP}, s{sOUTO}, 1023")
            I(f"buffer_load_dword v{vXRES}, v{vHST}, {srd(sXT)}, s{sTMP} offen")
        side.append(clr)
        def wo(f):
            def g():
                assert 128 + 4 * f not in busy_a
                I(f"s_mov_b32 s{sWOFF}, {(f>>2)*4096}")
                I(f"buffer_load_dwordx4 a[{128+4*f}:{128+4*f+3}], v{vWO}, {srd(sWO)}, s{sWOFF} offen offset:{(f&3)*1024}{wp}")
            return g
        def gu(f):
            def g():
                side_last[0] = I(f"global_load_dwordx4 a[{4*f}:{4*f+3}], v[{vGU}:{vGU+1}], off offset:{(f&1)*3584}{fp}")
                if f & 1: I(f"v_lshl_add_u64 v[{vGU}:{vGU+1}], v[{vGU}:{vGU+1}], 0, s[{sGUSTEP}:{sGUSTEP+1}]")
            return g
        def wd(f):
            def g():
                I(f"s_mov_b32 s{sWOFF}, {(f>>2)*4096}")
                I(f"buffer_load_dwordx4 v[{vWDF+4*f}:{vWDF+4*f+3}], v{vWD}, {srd(sWD)}, s{sWOFF} offen offset:{(f&3)*1024}{fp}")
            return g
        for f in range(32): side.append(wo(f))
        for f in range(32): side.append(gu(f))
        for f in range(16): side.append(wd(f))
    mkside()
    if noside: side = side[:1]
    deferred = side[len(side) - ND:] if ND else []
    side = side[:len(side) - ND]
    late_cs = ND > 16
    side_steps = {}
    for k in range(len(side)):
        pos = wstart + (wend - wstart) * k // len(side)
        side_steps.setdefault(pos, []).append(side[k])

    work = []
    def push_group(g4):
        B, aa = g4 >> 2, g4 & 3
        def D(e):
            def f():
                src = []
                for c in range(4):
                    g = 4 * g4 + c
                    if slot_of[g][0] == "a":
                        I(f"v_accvgpr_read_b32 v{vA+c}, a{slot(g)+e}"); src.append(vA + c)
                    else: src.append(slot(g) + e)
                for c in range(4):
                    I(f"v_dot2_f32_bf16 v{vP+c}, v{src[c]}, v{vQ+e}, " + ("0" if e == 0 else f"v{vP+c}"))
                if e == 3:
                    for c in range(4): release(4 * g4 + c)
            return f
        def Rd():
            I(f"v_add_f32_dpp v{vP}, v{vP}, v{vP} row_ror:8 row_mask:0xf bank_mask:0x3")
            I(f"v_add_f32_dpp v{vP+1}, v{vP+1}, v{vP+1} row_ror:8 row_mask:0xf bank_mask:0x3")
            I(f"v_add_f32_dpp v{vP}, v{vP+2}, v{vP+2} row_ror:8 row_mask:0xf bank_mask:0xc")
            I(f"v_add_f32_dpp v{vP+1}, v{vP+3}, v{vP+3} row_ror:8 row_mask:0xf bank_mask:0xc")
            I(f"v_add_f32_dpp v{vG+aa}, v{vP}, v{vP} row_half_mirror row_mask:0xf bank_mask:0x5")
            I(f"v_add_f32_dpp v{vG+aa}, v{vP+1}, v{vP+1} row_half_mirror row_mask:0xf bank_mask:0xa")
        def F1():
            for q in range(4):
                I(f"v_add_f32_dpp v{vG+q}, v{vG+q}, v{vG+q} quad_perm:[1,0,3,2] row_mask:0xf bank_mask:0xf")
            I(f"v_cndmask_b32 v{vG}, v{vG}, v{vG+1}, s[{sODD}:{sODD+1}]")
            I(f"v_cndmask_b32 v{vG+2}, v{vG+2}, v{vG+3}, s[{sODD}:{sODD+1}]")
            I(f"v_add_f32_dpp v{vG}, v{vG}, v{vG} quad_perm:[2,3,0,1] row_mask:0xf bank_mask:0xf")
            I(f"v_add_f32_dpp v{vG+2}, v{vG+2}, v{vG+2} quad_perm:[2,3,0,1] row_mask:0xf bank_mask:0xf")
            I(f"v_cndmask_b32 v{vS+B}, v{vG}, v{vG+2}, s[{sBIT1}:{sBIT1+1}]")
        def F2():
            I(f"v_cvt_pk_bf16_f32 v{vS+B}, v{vS+B}, v{vS+B}")
            I(f"v_and_b32 v{vS+B}, 0xffff0000, v{vS+B}")
            I(f"v_mul_f32 v{vS+B}, s{sSCALE}, v{vS+B}")
            I(f"v_cvt_pk_bf16_f32 v{vS+B}, v{vS+B}, v{vS+B}")
            I(f"v_and_b32 v{vS+B}, 0xffff0000, v{vS+B}")
            I(f"v_max_f32 v{vMAX}, v{vMAX}, v{vS+B}")
        work.extend([D(0), D(1), D(2), D(3), Rd])
        if aa == 3: work.extend([F1, F2])
    if pf or pft:
        I(f"s_getpc_b64 s[{sPC}:{sPC+1}]")
        I("L_pc:")
        I(f"s_lshl_b32 s{sTMP}, s{sW}, 7")
        I(f"s_add_u32 s{sPC}, s{sPC}, s{sTMP}")
        I(f"s_addc_u32 s{sPC+1}, s{sPC+1}, 0")
    def codepf(i):
        if i % 16 == 0: I(f"L_blk{i // 16}:")
        if pf and i % 16 == 3 and i // 16 + pfd < 32:
            I(f"s_mov_b32 s{sPFD-1}, L_blk{i // 16 + pfd}-L_pc")
            for k in range(pf if i // 16 + pfd < 17 else (pf + 1) // 2 + 1):
                I(f"s_load_dword s{sPFD}, s[{sPC}:{sPC+1}], s{sPFD-1} offset:{512 * k}")
        if pft and i == 451:
            I(f"s_mov_b32 s{sPFD-1}, L_tail-L_pc")
            for k in range(6):
                I(f"s_load_dword s{sPFD}, s[{sPC}:{sPC+1}], s{sPFD-1} offset:{512 * k}")
    a.C("K phase: 16 blocks of 64 keys per wave; weight slices for the tail are loaded in between")
    I1 = issued[0]
    boost = fB or fC or ctl
    I(f"s_mov_b32 s{sLVL}, 0")
    def nominal(i):
        ns = sum(len(v) for k, v in side_steps.items() if k <= i)
        return T0 + Ts * (i + 1) + Tside * ns
    def control(i):
        if not ctl or i < ustart: return
        if i % U == 0: I(f"s_memrealtime s[{sNOW}:{sNOW+1}]")
        if i % U == 2:
            a.C("window level = how far this wave is behind the expected stream position")
            I("s_waitcnt lgkmcnt(0)")
            I(f"s_sub_u32 s{sLVL}, s{sNOW}, s{sT0}")
            I(f"s_sub_i32 s{sLVL}, s{sLVL}, {int(nominal(i - 3) / 10)}")
            I(f"s_mul_i32 s{sLVL}, s{sLVL}, {int(65536 * 10 / dl)}")
            I(f"s_ashr_i32 s{sLVL}, s{sLVL}, 16")
    if fB:
        I(f"s_getreg_b32 s{sTMP}, hwreg(HW_REG_XCC_ID, 0, 1)")
        I(f"s_cmp_eq_u32 s{sTMP}, 0")
        I("s_cselect_b64 vcc, -1, 0")
    accs = [0.0, 0.0]
    def paced1(i, n):
        tgt = min(i + 2 + n, 512)
        if issued[0] >= tgt: return
        if issued[0] == tgt - 1 and i + 1 in kvid:
            accs[1] += fC; accs[0] += fB
            if ctl and i > ustart and i % cands == 0:
                j = (i // cands) % nl
                th = int(format(j, f"0{nl.bit_length()-1}b")[::-1], 2) + 1
                I(f"s_cmp_ge_i32 s{sLVL}, {th}")
                I(f"s_cbranch_scc1 L_b{i}")
                I(f"s_waitcnt vmcnt({a.vm - 1 - kvid[i+1]})")
                I(f"L_b{i}:")
            elif accs[1] >= 1: accs[1] -= 1
            elif accs[0] >= 1:
                accs[0] -= 1
                I(f"s_cbranch_vccnz L_b{i}")
                I(f"s_waitcnt vmcnt({a.vm - 1 - kvid[i+1]})")
                I(f"L_b{i}:")
            else: a.wait_vm(kvid[i + 1])
        while issued[0] < tgt: issue_kv()
    def paced2(i, n):
        tgt = min(i + 3 + n, 512)
        if issued[0] >= tgt: return
        while issued[0] < tgt - 1:
            a.wait_vm(kvid[issued[0] - n]); issue_kv()
        if i <= ustart:
            a.wait_vm(kvid[i + 2])
        else:
            k = i & 15
            ta = 1 if k == 0 else 2 if k == 8 else 3 if k % 4 == 0 else 4 if k % 2 == 0 else 5
            tb = 6 if k % 4 == 0 else 7 if k % 2 == 0 else 8
            if kvid[i + 1] >= a.vm_done:
                I(f"s_cmp_ge_i32 s{sLVL}, {tb}")
                I(f"s_cbranch_scc1 L_b{i}")
                I(f"s_waitcnt vmcnt({a.vm - 1 - kvid[i+1]})")
            I(f"s_cmp_ge_i32 s{sLVL}, {ta}")
            I(f"s_cbranch_scc1 L_b{i}")
            I(f"s_waitcnt vmcnt({a.vm - 1 - kvid[i+2]})")
            I(f"L_b{i}:")
        issue_kv()
    paced = paced2 if two else paced1
    for i in range(256):
        a.wait_vm(kvid[i])
        control(i)
        codepf(i)
        if boost and i + 1 + N >= I1 + i // cu: paced(i, N)
        tgt = max(i + 1 + N, I1 + i // cu)
        while issued[0] < tgt: issue_kv()
        for fn in side_steps.get(i, []): fn()
        if kstamps and i % 32 == 31: pstamp(i // 32, True)
        if (i & 3) == 3:
            if nokc and i > 64:
                for c in range(4): release(i - 3 + c)
            else: push_group(i >> 2)
        n = 1 if len(work) <= 4 - (i & 3) + 0 else 2
        for _ in range(min(n, len(work))): work.pop(0)()
    nV = NV or N
    xleft = [Tx]
    def xissue():
        if xleft[0] > 0:
            xleft[0] -= 1; issue_kv()
    while work: work.pop(0)()
    stamp()
    a.C("softmax: wave max/sum, exchange (max, sum) through LDS, p = bf16(exp(s - max) / sum)")
    xissue()
    wave_reduce(vMAX, vT, "v_max_f32")
    I(f"v_mul_f32 v{vT}, s{sL2E}, v{vMAX}")
    for B in range(16): I(f"v_fma_f32 v{vS+B}, v{vS+B}, s{sL2E}, -v{vT}")
    for B in range(16): I(f"v_exp_f32 v{vS+B}, v{vS+B}")
    xissue()
    for k in range(8): I(f"v_add_f32 v{vA+k}, v{vS+2*k}, v{vS+2*k+1}")
    for k in range(4): I(f"v_add_f32 v{vA+k}, v{vA+k}, v{vA+4+k}")
    for k in range(2): I(f"v_add_f32 v{vA+k}, v{vA+k}, v{vA+2+k}")
    I(f"v_add_f32 v{vT+3}, v{vA}, v{vA+1}")
    wave_reduce(vT + 3, vT + 1, "v_add_f32")
    I(f"v_mov_b32 v{vT+2}, v{vT}")
    I(f"s_lshl_b32 s{sTMP}, s{sW}, 3")
    I(f"v_mov_b32 v{vT+1}, s{sTMP}")
    I("s_mov_b64 exec, 1")
    I(f"ds_write_b64 v{vT+1}, v[{vT+2}:{vT+3}] offset:{LML}")
    I("s_mov_b64 exec, -1")
    I(f"v_mov_b32 v{vT+1}, 0")
    xissue()
    I("s_waitcnt lgkmcnt(0)")
    I("s_barrier")
    xissue()
    I(f"ds_read_b128 v[{vA}:{vA+3}], v{vT+1} offset:{LML}")
    I(f"ds_read_b128 v[{vA+4}:{vA+7}], v{vT+1} offset:{LML+16}")
    I("s_waitcnt lgkmcnt(0)")
    I(f"v_max3_f32 v{vT+5}, v{vA}, v{vA+2}, v{vA+4}")
    I(f"v_max_f32 v{vT+5}, v{vT+5}, v{vA+6}")
    for k in range(4): I(f"v_sub_f32 v{vA+2*k}, v{vA+2*k}, v{vT+5}")
    I(f"v_sub_f32 v{vT}, v{vT}, v{vT+5}")
    for k in range(4): I(f"v_exp_f32 v{vA+2*k}, v{vA+2*k}")
    I(f"v_exp_f32 v{vT}, v{vT}")
    I(f"v_mul_f32 v{vA}, v{vA}, v{vA+1}")
    I(f"v_mul_f32 v{vA+4}, v{vA+4}, v{vA+5}")
    I(f"v_fmac_f32 v{vA}, v{vA+2}, v{vA+3}")
    I(f"v_fmac_f32 v{vA+4}, v{vA+6}, v{vA+7}")
    I(f"v_add_f32 v{vA}, v{vA}, v{vA+4}")
    I(f"v_rcp_f32 v{vA}, v{vA}")
    I(f"v_mul_f32 v{vT}, v{vT}, v{vA}")
    while xleft[0] > 0: xissue()
    for B in range(16): I(f"v_mul_f32 v{vS+B}, v{vS+B}, v{vT}")
    for B in range(16): I(f"v_cvt_pk_bf16_f32 v{vS+B}, v{vS+B}, v{vS+B}")
    stamp()
    a.C("V phase: o += p * V")
    hu_done = []
    cnt_id = None
    for i in range(256, 512):
        B, t = (i - 256) >> 4, i & 15
        u, c = t >> 2, t & 3
        A = vA + 2 * ((i >> 2) & 1)
        if i == 256: afrag(A, vS, 0)
        a.wait_vm(kvid[i])
        if not (NE and i >= 512 - E): control(i)
        codepf(i)
        if boost and not (NE and i >= 512 - E): paced(i, nV)
        tgt = min(i + 1 + (NE if (NE and i >= 512 - E) else nV), 512)
        while issued[0] < tgt: issue_kv()
        for fn in side_steps.get(i, []): fn()
        if issued[0] == 512:
            for _ in range(min(dper, len(deferred))): deferred.pop(0)()
            if hu and not hu_done:
                hu_done.append(1)
                I(f"s_lshl_b32 s{sFL}, s2, 7")
                I(f"s_add_u32 s{sFL}, s{sFL}, {FLOFF}")
                I(f"s_cmp_lg_u32 s{sW}, 0")
                I("s_cbranch_scc1 L_nohu")
                I("s_mov_b64 exec, 1")
                a.X(f"buffer_store_dwordx4 v[{vPB}:{vPB+3}], v{vHROW}, {srd(sWS)}, s{sFL} offen {spol}")
                I("s_mov_b64 exec, -1")
                I("L_nohu:")
                I(f"s_lshl_b32 s{sFL}, s{sTB}, 12")
                I(f"s_add_u32 s{sFL}, s{sFL}, {FLOFF}")
                I(f"v_lshrrev_b32 v{vMAX}, 1, v{vLANE}")
                I(f"v_lshlrev_b32 v{vMAX}, 7, v{vMAX}")
                I(f"s_mov_b32 s{sC1}, {P1B}")
                I(f"s_mov_b32 s{sC2}, {P1C}")
        mfma2(A, "v", slot(i), c, i == 256)
        release(i)
        if kstamps and i % 32 == 31: pstamp(i // 32, True)
        if fast and i == pretouch:
            I(f"buffer_load_dwordx4 v[{vT+4}:{vT+7}], v{vHROW}, {srd(sWS)}, s{sROTA} offen sc1")
        if fast and i == pretouch + 4:
            I(f"buffer_load_dwordx4 v[{vT+4}:{vT+7}], v{vGAT}, {srd(sWS)}, s{sP2A} offen sc1")
        if late_cs: pass
        elif i == cs_start - 1:
            assert side_last[0] < a.vm_done
            I(f"v_and_b32 v{vA+4}, 0x3f803f80, v{vM0}")
            I(f"v_and_b32 v{vA+5}, 0x3f803f80, v{vM1}")
        if not late_cs and cs_start <= i < cs_start + 32:
            mfma2(vA + 4, "a", 4 * (i - cs_start), 0, i == cs_start, acc=vT + 8)
        if not late_cs and i == cs_start + 33:
            swap_reduce(vT, acc=vT + 8)
            I(f"ds_write_b64 v{vLW}, v[{vT}:{vT+1}] offset:{LCS}")
        if c == 0 and i + 4 < 512:
            j = i + 4
            afrag(vA + 2 * ((j >> 2) & 1), vS + ((j - 256) >> 4), (j & 15) >> 2)
    stamp()
    a.C("tail: reduce o over the waves, o @ wo slice, publish, then the three hand-offs")
    I("L_tail:")
    tstamp()
    FS = RING0 + 48
    if hu: a.X(f"buffer_load_dwordx4 v[{FS}:{FS+3}], v{vMAX}, {srd(sWS)}, s{sFL} offen {lpol}")
    swap_reduce(vT)
    I(f"ds_write_b64 v{vLW}, v[{vT}:{vT+1}] offset:{LO}")
    for _ in range(min(3, len(deferred))): deferred.pop(0)()
    I("s_waitcnt lgkmcnt(0)")
    tstamp()
    I("s_barrier")
    tstamp()
    I(f"ds_read2_b64 v[{vT}:{vT+3}], v{vLO} offset0:0 offset1:64")
    I(f"ds_read2_b64 v[{vT+4}:{vT+7}], v{vLO} offset0:128 offset1:192")
    vCS = vS
    def read_cs():
        for w in range(4):
            I(f"ds_read2st64_b32 v[{vCS+2*w}:{vCS+2*w+1}], v{vLGU} offset0:{(LCS-LGU)//256+2*w} offset1:{(LCS-LGU)//256+2*w+1}")
    if not late_cs: read_cs()
    for _ in range(min(3, len(deferred))): deferred.pop(0)()
    I("s_waitcnt lgkmcnt(0)" if (tstamps or late_cs) else "s_waitcnt lgkmcnt(4)")
    tstamp()
    I(f"v_add_f32 v{vT}, v{vT}, v{vT+2}")
    I(f"v_add_f32 v{vT+1}, v{vT+1}, v{vT+3}")
    I(f"v_add_f32 v{vT+4}, v{vT+4}, v{vT+6}")
    I(f"v_add_f32 v{vT+5}, v{vT+5}, v{vT+7}")
    I(f"v_add_f32 v{vT}, v{vT}, v{vT+4}")
    I(f"v_add_f32 v{vT+1}, v{vT+1}, v{vT+5}")
    I(f"v_cvt_pk_bf16_f32 v{vP}, v{vT}, v{vT}")
    I(f"v_cvt_pk_bf16_f32 v{vP+1}, v{vT+1}, v{vT+1}")
    gemv_il([vP, vP + 1], "a", 128, deferred)
    tstamp()
    swap_reduce(vPB)
    tstamp()
    if halfx: I("s_mov_b32 exec_hi, 0")
    I(f"buffer_store_dwordx4 v[{vPB}:{vPB+3}], v{vPUB}, {srd(sWS)}, s{sGOFF} offen {spol}")
    if halfx: I("s_mov_b64 exec, -1")
    if hu:
        I(f"buffer_store_dwordx4 v[{vPB}:{vPB+3}], v{vPUB}, {srd(sWS)}, s{sC1} offen {spol}")
        I(f"buffer_store_dwordx4 v[{vPB}:{vPB+3}], v{vPUB}, {srd(sWS)}, s{sC2} offen {spol}")
    stamp()
    vR = vG
    vPUB2 = vWQ

    def poll(label, S, voff, soff, nres, pre=None, th=0, soffA=None, lazy=None, delay=0):
        ld = lambda so: f"buffer_load_dwordx4 v[{S}:{S+3}], v{voff}, {srd(sWS)}, s{so} offen {lpol}"
        def check():
            I("s_waitcnt vmcnt(0)")
            I(f"v_cmp_eq_u64 vcc, s[{sTAG}:{sTAG+1}], v[{S+2}:{S+3}]")
            for r in range(nres): I(f"v_cndmask_b32 v{vR+r}, v{vR+r}, v{S+r}, vcc")
            I("s_andn2_b64 exec, exec, vcc")
            I(f"s_cbranch_scc0 {label}_ok")
        if delay:
            if pre: pre()
            a.C("back off before the first poll: reading a line before it is written slows the write down")
            I(f"s_sleep {delay}")
        a.X(ld(soffA if soffA else soff))
        if pre and not delay: pre()
        I(f"s_mov_b32 s{sCNT}, {SPIN}")
        I(f"{label}:")
        check()
        if th:
            I(f"s_bcnt1_i32_b64 s{sTMP}, exec")
            I(f"s_cmp_le_u32 s{sTMP}, {th}")
            I(f"s_cbranch_scc1 {label}_f")
            I(f"s_sleep {slow}")
            I(f"{label}_f:")
        if psl and not th: I(f"s_sleep {psl}")
        I(f"s_sub_u32 s{sCNT}, s{sCNT}, 1")
        if soffA:
            I(f"s_and_b32 s{sTMP}, s{sCNT}, {NA-1}")
            I(f"s_cselect_b32 s{sTMP}, s{soffA}, s{soff}")
            if lazy:
                I(f"s_cbranch_scc1 {label}_n")
                I("s_mov_b64 s[8:9], exec")
                I("s_mov_b64 exec, 3")
                a.X(lazy)
                I("s_mov_b64 exec, s[8:9]")
                I(f"{label}_n:")
            a.X(ld(sTMP))
        else:
            a.X(ld(soff))
        I(f"s_cmp_lg_u32 s{sCNT}, 0")
        I(f"s_cbranch_scc1 {label}")
        I(f"{label}_ok:")
        I("s_mov_b64 exec, -1")

    def sample(label, S, voff, soffs, nres, gap):
        ld = lambda k: f"buffer_load_dwordx4 v[{S+4*k}:{S+4*k+3}], v{voff}, {srd(sWS)}, s{soffs[k]} offen {lpol}"
        def check(k, cnt):
            I(f"s_waitcnt vmcnt({cnt})")
            I(f"v_cmp_eq_u64 vcc, s[{sTAG}:{sTAG+1}], v[{S+4*k+2}:{S+4*k+3}]")
            for r in range(nres): I(f"v_cndmask_b32 v{vR+r}, v{vR+r}, v{S+4*k+r}, vcc")
            I("s_andn2_b64 exec, exec, vcc")
            I(f"s_cbranch_scc0 {label}_ok")
        n = len(soffs)
        a.X(ld(0))
        for k in range(1, n):
            I(f"s_sleep {gap}")
            a.X(ld(k))
            check(k - 1, 1)
        I(f"s_mov_b32 s{sCNT}, {SPIN}")
        I(f"{label}:")
        check(n - 1, 0)
        I(f"s_sub_u32 s{sCNT}, s{sCNT}, 1")
        a.X(ld(n - 1))
        I(f"s_cmp_lg_u32 s{sCNT}, 0")
        I(f"s_cbranch_scc1 {label}")
        I(f"{label}_ok:")
        I("s_mov_b64 exec, -1")

    def colsum():
        x0, x1, t0, t1 = vR, vR + 1, vT + 2, vT + 3
        for r in (8, 4, 2):
            I(f"v_add_f32_dpp v{x0}, v{x0}, v{x0} row_ror:{r} row_mask:0xf bank_mask:0xf")
            I(f"v_add_f32_dpp v{x1}, v{x1}, v{x1} row_ror:{r} row_mask:0xf bank_mask:0xf")
        for sw in ("v_permlane16_swap_b32", "v_permlane32_swap_b32"):
            I(f"v_mov_b32 v{t0}, v{x0}")
            I(f"v_mov_b32 v{t1}, v{x1}")
            I(f"{sw} v{x0}, v{t0}")
            I(f"{sw} v{x1}, v{t1}")
            I(f"v_add_f32 v{x0}, v{x0}, v{t0}")
            I(f"v_add_f32 v{x1}, v{x1}, v{t1}")
        I(f"v_cvt_pk_bf16_f32 v{x0}, v{x0}, v{x1}")
        I(f"v_lshlrev_b32 v{t0}, 16, v{x0}")
        I(f"v_and_b32 v{t1}, 0xffff0000, v{x0}")

    def pre1():
        I(f"s_lshl_b32 s{sTMP}, s{sTB}, 5")
        I(f"s_add_u32 s{sTMP}, s{sTMP}, s{sTC}")
        I(f"s_lshl_b32 s{sTMP}, s{sTMP}, 12")
        I(f"v_lshl_add_u32 v{vPUB2}, v{vLW}, 1, s{sTMP}")
        I(f"v_mov_b32 v{vPB+2}, s{sTAG}")
        I(f"v_mov_b32 v{vPB+3}, s{sTAG+1}")
        I(f"s_getreg_b32 s{sXCC}, hwreg(HW_REG_XCC_ID, 0, 4)")
        I(f"v_mov_b32 v{vPB+1}, s{sXCC}")
        I(f"v_lshlrev_b32 v{vH}, 16, v{vXRES}")
        I(f"v_and_b32 v{vH+1}, 0xffff0000, v{vXRES}")
        if late_cs:
            I(f"v_and_b32 v{vA+4}, 0x3f803f80, v{vM0}")
            I(f"v_and_b32 v{vA+5}, 0x3f803f80, v{vM1}")
            I(f"s_waitcnt vmcnt({a.vm - 1 - side_last[0] + 1})")
            for f in range(32): mfma2(vA + 4, "a", 4 * f, 0, f == 0)
            swap_reduce(vT)
            I(f"ds_write_b64 v{vLW}, v[{vT}:{vT+1}] offset:{LCS}")
            I("s_waitcnt lgkmcnt(0)")
            I("s_barrier")
            read_cs()
        I("s_waitcnt lgkmcnt(0)")
        I(f"v_add_f32 v{vCS}, v{vCS}, v{vCS+2}")
        I(f"v_add_f32 v{vCS+1}, v{vCS+1}, v{vCS+3}")
        I(f"v_add_f32 v{vCS+4}, v{vCS+4}, v{vCS+6}")
        I(f"v_add_f32 v{vCS+5}, v{vCS+5}, v{vCS+7}")
        I(f"v_add_f32 v{vCS}, v{vCS}, v{vCS+4}")
        I(f"v_add_f32 v{vCS+1}, v{vCS+1}, v{vCS+5}")
    if hu:
        I("s_waitcnt vmcnt(3)")
        I(f"v_cmp_ne_u64 vcc, s[{sTAG}:{sTAG+1}], v[{FS+2}:{FS+3}]")
        I("s_mov_b64 s[8:9], vcc")
        pre1()
        I("s_mov_b64 exec, s[8:9]")
        I("s_cbranch_execz L_flx")
        poll("L_fl", FS, vMAX, sFL, 0)
        I(f"s_sleep {aY}")
        I("s_branch L_fly")
        I("L_flx:")
        I("s_mov_b64 exec, -1")
        if aX: I(f"s_sleep {aX}")
        I("L_fly:")
        sample("L_p1", RING0, vGAT, [sGOFF, sC1, sC2], 2, bS)
    else:
        poll("L_p1", RING0, vGAT, sGOFF, 2, pre1, TH, delay=d1)
    colsum()
    I(f"v_add_f32 v{vT+2}, v{vT+2}, v{vH}")
    I(f"v_add_f32 v{vT+3}, v{vT+3}, v{vH+1}")
    I(f"v_cvt_pk_bf16_f32 v{vPB}, v{vT+2}, v{vT+3}")
    I("s_mov_b64 exec, 3")
    if fast: I(f"buffer_store_dwordx4 v[{vPB}:{vPB+3}], v{vHROW}, {srd(sWS)}, s{sHSTA} offen")
    HB = f"buffer_store_dwordx4 v[{vPB}:{vPB+3}], v{vHROW}, {srd(sWS)}, s{sHST} offen {spol}"
    if not fast: I(HB)
    I("s_mov_b64 exec, -1")
    stamp()
    if not align:
        I(f"s_cmp_ge_u32 s{sTC}, 28")
        I("s_cbranch_scc1 L_noffn")
    def pre2():
        I(f"s_mov_b32 s{sC1}, {P2B}")
        I(f"s_mov_b32 s{sC2}, {P2C}")
        I(f"v_lshlrev_b32 v{vH}, 16, v{vPB}")
        I(f"v_and_b32 v{vH+1}, 0xffff0000, v{vPB}")
    poll("L_h", RING0 + 16, vHROW, sROT, 2 if fast else 1, pre2, soffA=sROTA if fast else None, lazy=HB if fast else None, delay=dH)
    if fast:
        I("s_mov_b64 exec, 3")
        I(HB)
        I("s_mov_b64 exec, -1")
        I(f"v_cmp_ne_u32 s[8:9], s{sXCC}, v{vR+1}")
    stamp()
    tstamp()
    f0, f1, s1, t = vS + 8, vS + 9, vS + 10, vS + 11
    I(f"v_lshlrev_b32 v{f0}, 16, v{vR}")
    I(f"v_and_b32 v{f1}, 0xffff0000, v{vR}")
    I(f"v_and_b32 v{vP}, 0xffff, v{vR}")
    I(f"v_lshrrev_b32 v{vP+1}, 16, v{vR}")
    I(f"v_or_b32 v{vP}, v{vP}, v{f0}")
    I(f"v_or_b32 v{vP+1}, v{vP+1}, v{f1}")
    I(f"v_add_f32 v{s1}, v{f0}, v{f1}")
    stats = []
    def red(x):
        for r in (8, 4, 2, 1):
            stats.append(f"v_add_f32_dpp v{x}, v{x}, v{x} row_ror:{r} row_mask:0xf bank_mask:0xf")
        for sw in ("v_permlane16_swap_b32", "v_permlane32_swap_b32"):
            stats.append(f"v_mov_b32 v{t}, v{x}")
            stats.append(f"{sw} v{x}, v{t}")
            stats.append(f"v_add_f32 v{x}, v{x}, v{t}")
    red(s1)
    stats.append(f"v_mul_f32 v{s1}, {f32(1/128)}, v{s1}")
    stats.append(f"v_sub_f32 v{f0}, v{f0}, v{s1}")
    stats.append(f"v_sub_f32 v{f1}, v{f1}, v{s1}")
    stats.append(f"v_mul_f32 v{f0}, v{f0}, v{f0}")
    stats.append(f"v_fmac_f32 v{f0}, v{f1}, v{f1}")
    red(f0)
    stats.append(f"v_mov_b32 v{f1}, v{s1}")
    gemv_il([vP, vP + 1], "a", 0, stats)
    tstamp()
    I(f"s_lshl_b32 s{sTMP}, s{sW}, 3")
    I(f"v_mov_b32 v{t}, s{sTMP}")
    I("s_mov_b64 exec, 1")
    I(f"ds_write_b64 v{t}, v[{f0}:{f1}] offset:{LST}")
    if fast:
        I("s_or_b32 s8, s8, s9")
        I(f"v_mov_b32 v{s1}, s8")
        I(f"v_lshrrev_b32 v{t}, 1, v{t}")
        I(f"ds_write_b32 v{t}, v{s1} offset:{LFL}")
    I("s_mov_b64 exec, -1")
    I(f"v_mov_b32 v{t}, 0")
    swap_reduce(vT)
    I(f"ds_write_b64 v{vLW}, v[{vT}:{vT+1}] offset:{LGU}")
    I("s_waitcnt lgkmcnt(0)")
    I("s_barrier")
    tstamp()
    Z = vA
    I(f"ds_read_b128 v[{Z}:{Z+3}], v{t} offset:{LST}")
    I(f"ds_read_b128 v[{Z+4}:{Z+7}], v{t} offset:{LST+16}")
    for w in range(4):
        I(f"ds_read2st64_b32 v[{vT+2*w}:{vT+2*w+1}], v{vLGU} offset0:{2*w} offset1:{2*w+1}")
    if fast: I(f"ds_read_b128 v[{vS+12}:{vS+15}], v{t} offset:{LFL}")
    I("s_waitcnt lgkmcnt(0)" if tstamps else "s_waitcnt lgkmcnt(5)" if fast else "s_waitcnt lgkmcnt(4)")
    m, q = Z + 8, Z + 9
    I(f"v_add_f32 v{m}, v{Z+1}, v{Z+3}")
    I(f"v_add_f32 v{q}, v{Z+5}, v{Z+7}")
    I(f"v_add_f32 v{Z}, v{Z}, v{Z+2}")
    I(f"v_add_f32 v{m}, v{m}, v{q}")
    I(f"v_add_f32 v{Z+4}, v{Z+4}, v{Z+6}")
    I(f"v_mul_f32 v{m}, 0.25, v{m}" if False else f"v_mul_f32 v{m}, {f32(0.25)}, v{m}")
    I(f"v_add_f32 v{Z}, v{Z}, v{Z+4}")
    for k in (1, 3, 5, 7): I(f"v_sub_f32 v{Z+k}, v{Z+k}, v{m}")
    I(f"v_mul_f32 v{Z+1}, v{Z+1}, v{Z+1}")
    I(f"v_mul_f32 v{Z+5}, v{Z+5}, v{Z+5}")
    I(f"v_fmac_f32 v{Z+1}, v{Z+3}, v{Z+3}")
    I(f"v_fmac_f32 v{Z+5}, v{Z+7}, v{Z+7}")
    I(f"v_mul_f32 v{Z}, {f32(1/512)}, v{Z}")
    I(f"v_add_f32 v{Z+1}, v{Z+1}, v{Z+5}")
    I(f"v_fmac_f32 v{Z}, {f32(0.25)}, v{Z+1}")
    I(f"v_cvt_pk_bf16_f32 v{q}, v{m}, v{Z}")
    I("s_waitcnt lgkmcnt(0)")
    I(f"v_add_f32 v{vT}, v{vT}, v{vT+2}")
    I(f"v_lshlrev_b32 v{m}, 16, v{q}")
    I(f"v_and_b32 v{q}, 0xffff0000, v{q}")
    I(f"v_add_f32 v{vT+1}, v{vT+1}, v{vT+3}")
    I(f"v_add_f32 v{q}, {f32(1e-5)}, v{q}")
    I(f"v_add_f32 v{vT+4}, v{vT+4}, v{vT+6}")
    I(f"v_cvt_pk_bf16_f32 v{q}, v{q}, v{q}")
    I(f"v_add_f32 v{vT+5}, v{vT+5}, v{vT+7}")
    I(f"v_and_b32 v{q}, 0xffff0000, v{q}")
    I(f"v_add_f32 v{vT}, v{vT}, v{vT+4}")
    I(f"v_sqrt_f32 v{q}, v{q}")
    I(f"v_add_f32 v{vT+1}, v{vT+1}, v{vT+5}")
    I(f"v_cvt_pk_bf16_f32 v{q}, v{q}, v{q}")
    I(f"v_fma_f32 v{vT}, -v{m}, v{vCS}, v{vT}")
    I(f"v_and_b32 v{q}, 0xffff0000, v{q}")
    I(f"v_fma_f32 v{vT+1}, -v{m}, v{vCS+1}, v{vT+1}")
    I(f"v_rcp_f32 v{q}, v{q}")
    I(f"v_mul_f32 v{vT}, v{vT}, v{q}")
    I(f"v_mul_f32 v{vT+1}, v{vT+1}, v{q}")
    I(f"v_cvt_pk_bf16_f32 v{vT}, v{vT}, v{vT+1}")
    I(f"v_and_b32 v{vT+1}, 0xffff0000, v{vT}")
    I(f"v_lshlrev_b32 v{vT}, 16, v{vT}")
    I(f"v_max_f32 v{vT}, 0, v{vT}")
    I(f"v_mul_f32 v{vT}, v{vT}, v{vT+1}")
    I(f"v_cvt_pk_bf16_f32 v{vP}, v{vT}, v{vT}")
    tstamp()
    gemv_il([vP], "v", vWDF)
    tstamp()
    if fast:
        I(f"v_or3_b32 v{vS+12}, v{vS+12}, v{vS+13}, v{vS+14}")
        I(f"v_or_b32 v{vS+12}, v{vS+12}, v{vS+15}")
        I(f"v_readfirstlane_b32 s8, v{vS+12}")
    swap_reduce(vPB)
    tstamp()
    if align:
        I(f"s_cmp_ge_u32 s{sTC}, 28")
        I("s_cbranch_scc1 L_local")
    if fast:
        I(f"buffer_store_dwordx4 v[{vPB}:{vPB+3}], v{vPUB2}, {srd(sWS)}, s{sP2A} offen")
        I("s_cmp_eq_u32 s8, 0")
        I("s_cbranch_scc1 L_local")
    if halfx: I("s_mov_b32 exec_hi, 0")
    I(f"buffer_store_dwordx4 v[{vPB}:{vPB+3}], v{vPUB if halfx else vPUB2}, {srd(sWS)}, s{sP2} offen {spol}")
    if halfx: I("s_mov_b64 exec, -1")
    if KP > 1: I(f"buffer_store_dwordx4 v[{vPB}:{vPB+3}], v{vPUB2}, {srd(sWS)}, s{sC1} offen {spol}")
    if KP > 2: I(f"buffer_store_dwordx4 v[{vPB}:{vPB+3}], v{vPUB2}, {srd(sWS)}, s{sC2} offen {spol}")
    I("L_local:")
    I(f"s_lshl_b32 s{sTMP}, s{sTC}, 2")
    I(f"s_add_u32 s{sTMP}, s{sTMP}, s{sW}")
    I(f"s_cmp_lg_u32 s{sTMP}, 0")
    I("s_cbranch_scc1 L_noep")
    I(f"s_lshl_b32 s{sTMP}, s{sTB}, 7")
    I("s_mov_b64 exec, 1")
    I(f"buffer_store_dwordx2 v[{vPB+2}:{vPB+3}], v{vHROW}, {srd(sWS)}, s{sTMP} offen {epol}")
    I("s_mov_b64 exec, -1")
    I("L_noep:")
    stamp()
    if not align: I("s_branch L_final")
    I("L_noffn:")
    if fast and not align:
        I("s_mov_b64 exec, 3")
        I(HB)
        I("s_mov_b64 exec, -1")
    if not align:
        I(f"v_lshlrev_b32 v{vH}, 16, v{vPB}")
        I(f"v_and_b32 v{vH+1}, 0xffff0000, v{vPB}")
    I("L_final:")
    I(f"v_mov_b32 v{vR}, 0")
    I(f"v_mov_b32 v{vR+1}, 0")
    I(f"s_mov_b32 exec_hi, 0x00ffffff")
    if KP > 1:
        I(f"s_sleep {dP}")
        sample("L_p2", RING0 + 32, vGAT, [sP2, sC1, sC2][:KP], 2, bP)
    else:
        poll("L_p2", RING0 + 32, vGAT, sP2, 2, soffA=sP2A if fast else None, delay=dP)
    colsum()
    I(f"v_add_f32 v{vT+2}, v{vT+2}, v{vH}")
    I(f"v_add_f32 v{vT+3}, v{vT+3}, v{vH+1}")
    I(f"v_cvt_pk_bf16_f32 v{vT}, v{vT+2}, v{vT+3}")
    if fixref:
        I(f"v_mov_b32 v{vT+5}, 0")
        I(f"global_load_dword v{vT+4}, v{vT+5}, s[76:77] sc1")
        I(f"s_memrealtime s[{sNOW}:{sNOW+1}]")
        I("s_waitcnt vmcnt(0) lgkmcnt(0)")
        I(f"v_readfirstlane_b32 s{sLVL}, v{vT+4}")
        I(f"s_sub_u32 s{sTMP}, s{sT0}, s{sLVL}")
        I(f"s_add_u32 s{sTMP}, s{sTMP}, 1000")
        I(f"s_sub_u32 s{sTMP2}, s{sNOW}, s{sLVL}")
        I(f"s_mov_b32 s{sT0}, s{sLVL}")
        I(f"v_mov_b32 v{vT+6}, s{sTMP}")
        I(f"v_mov_b32 v{vT+7}, s{sTMP2}")
        I("s_mov_b64 exec, 1")
        if fixref == 2:
            I(f"global_atomic_umax v{vT+5}, v{vT+6}, s[76:77] offset:4 sc1")
            I(f"global_atomic_umax v{vT+5}, v{vT+7}, s[76:77] offset:8 sc1")
            I(f"v_sub_u32 v{vT+6}, 2000, v{vT+6}")
            I(f"global_atomic_umax v{vT+5}, v{vT+6}, s[76:77] offset:12 sc1")
        I("s_mov_b64 exec, -1")
    if fixt:
        I("L_fix:")
        I(f"s_memrealtime s[{sNOW}:{sNOW+1}]")
        I("s_waitcnt lgkmcnt(0)")
        I(f"s_sub_u32 s{sLVL}, s{sNOW}, s{sT0}")
        I(f"s_cmp_lt_u32 s{sLVL}, {fixt * 100}")
        I("s_cbranch_scc1 L_fix")
    I("s_mov_b64 exec, 3")
    I(f"buffer_store_dword v{vT}, v{vHST}, {srd(sOUT)}, s{sOUTO} offen {opol}")
    I("s_mov_b64 exec, -1")
    if stamps:
        stamp()
        I(f"s_cmp_lg_u32 s{sW}, 0")
        I("s_cbranch_scc1 L_end")
        I("s_waitcnt lgkmcnt(0)")
        I(f"s_lshl_b32 s{sTMP}, s2, 6")
        I(f"s_add_u32 s{sTMP}, s{sTMP}, {STAMPOFF}")
        I(f"v_mov_b32 v{vT+2}, 0")
        I("s_mov_b64 exec, 1")
        for k in range(stamp_n[0]):
            r = 84 if k == 0 else 60 + 2 * (k - 1)
            I(f"v_mov_b32 v{vT+3}, s{r}")
            I(f"buffer_store_dword v{vT+3}, v{vT+2}, {srd(sWS)}, s{sTMP} offen offset:{4*k}")
        if tstamps:
            for k in range(tn[0]):
                r = 10 + 2 * k if k < 9 else [32, 34, 40, 42][k - 9]
                I(f"v_writelane_b32 v91, s{r}, {k}")
        if pstamps:
            I("s_mov_b64 exec, 0xffff")
            I(f"s_add_u32 s60, s{sTMP}, 0x10000")
            I(f"buffer_store_dword v91, v{vROW}, {srd(sWS)}, s60 offen")
            I("s_mov_b64 exec, 1")
        I("s_getreg_b32 s60, hwreg(HW_REG_XCC_ID)")
        I(f"v_mov_b32 v{vT+3}, s60")
        I(f"buffer_store_dword v{vT+3}, v{vT+2}, {srd(sWS)}, s{sTMP} offen offset:60")
    I("L_end:")
    I("s_endpgm")
    body = a.finish()
    out = HEADER + DESC + "; @launch grid=(256,1,1) block=(256,1,1) lds=10368\n"
    out += '.amdgcn_target "amdgcn-amd-amdhsa--gfx950"\n.text\n'
    out += f".globl {KNAME}\n.p2align 8\n.type {KNAME},@function\n{KNAME}:\n"
    out += body
    out += f'''.section .rodata,"a"
.p2align 6
.amdhsa_kernel {KNAME}
  .amdhsa_next_free_vgpr 512
  .amdhsa_next_free_sgpr 102
  .amdhsa_accum_offset 256
  .amdhsa_group_segment_fixed_size 0
  .amdhsa_kernarg_size 96
  .amdhsa_user_sgpr_count 2
  .amdhsa_user_sgpr_kernarg_segment_ptr 1
  .amdhsa_system_sgpr_workgroup_id_x 1
.end_amdhsa_kernel
'''
    return out

if __name__ == "__main__":
    import json
    cfg = json.loads(sys.argv[2]) if len(sys.argv) > 2 else {}
    open(sys.argv[1], "w").write(gen(**cfg))
```

```python
import sys
sys.path.insert(0, "gen")
from asmlib import Asm
import struct

KNAME = "sequential_preLN__mha_block_cached__glu_gated_reglu__decode_kernel"
HEADER = open("sequential_preLN__mha_block_cached__glu_gated_reglu__decode.s.ref").read().split("; Override launch")[0]

def f32(x):
    return "0x%08x" % struct.unpack("<I", struct.pack("<f", x))[0]

vLANE, vKV, vWQ, vWO, vWD = 1, 2, 3, 4, 5
vGU = 6
vPUB, vGAT, vROW, vLW, vM0, vM1, vXRES, vMAX = 8, 9, 10, 11, 12, 13, 14, 15
vQ, vP, vG, vS, vA, vACC, vT = 16, 20, 24, 28, 44, 60, 68
vLO, vLGU, vLQ, vHST, vHROW, vH = 84, 85, 86, 87, 88, 89
vPB = 92
RING0 = 96
vWDF = 192
sW, sB, sH, sJF = 3, 4, 5, 6
sK, sV, sWQ, sWO, sWD, sWS, sX, sOUT, sDBG = 8, 12, 16, 20, 24, 28, 32, 36, 40
sISS, sWOFF, sTMP, sTMP2 = 48, 49, 50, 51
sODD, sBIT1 = 52, 54
sCNT, sL2E = 58, 59
sSCALE, sFFFF, sP2, sHST = 44, 45, 46, 47
sGOFF = 86
sROT = 94
sGUSTEP = 98
sOUTO = 100
sTAG = 56
sTAGP = 88
sTB, sTC = 90, 91
sHSTA, sROTA, sP2A = 92, 93, 87
sXCC = 95
sRQ = 7
sFL, sC1, sC2 = 76, 77, 82
vFLG = 91
vKV2 = 0
sNOW, sLVL, sT0 = 80, 101, 84
sPC, sPFD = 78, 83
sXT = 40
LQ, LML, LO, LGU, LCS, LST, LFL = 0, 2048, 4096, 6144, 8192, 10240, 10304
P1OFF, P2OFF, HOFF, STAMPOFF = 0x10000, 0x110000, 0x210000, 0x400000
P2AOFF, HAOFF = 0x220000, 0x218000
FLOFF, P1B, P1C, P2B, P2C, HC = 0x8000, 0x500000, 0x600000, 0x700000, 0x800000, 0x900000
SPIN = 200000

DESC = '''; Design (generated by my own script; one workgroup of 4 waves per (batch, head), one per CU):
;   * hand-off granule = 16 bytes {payload, 64-bit tag}; the tag is derived from an epoch word found in
'''

def srd(b): return f"s[{b}:{b+3}]"

def gen(N=5, NV=None, R=24, wpol="nt", kvpol="nt", stamps=False, pstamps=False, sleep=4, wstart=40, wend=250, M=11, kfirst=1, ratio=(5, 6), qextra=3, cu=5, Tx=5, noside=False, vpol=None, lpol="sc1", spol="sc1", K=4, gap=1, TH=0, slow=16, cs_start=300, remap=False, fast=False, NA=32, fpol=None, pretouch=470, rawh=True, dH=20, dP=12, psl=0, align=True, NE=8, E=24, hmap=False, kstamps=False, nokc=False, fB=0, fC=0, KC=1, dS=5, rotq=0, tstamps=False, ND=0, dper=2, fakeq=0, qpol=None, qdelay=0, ctl=True, Ts=137.0, T0=2200, Tside=17.5, dl=350, U=16, cands=2, nl=8, ustart=48, d1=16, two=True, pf=4, pft=True, pfd=3, fixt=0, fixref=False, hu=False, halfx=False, aX=6, aY=11, bS=9, KP=1, bP=5, hcopy=False, opol="", epol="", swp=32, K1=1, hlead=0, stg=True):
    a = Asm(); I = a.I
    wp = (" " + wpol) if wpol else ""
    kp = (" " + kvpol) if kvpol else ""
    fp = wp if fpol is None else ((" " + fpol) if fpol else "")
    qp = wp if qpol is None else ((" " + qpol) if qpol else "")
    NWQ = fakeq or 32
    vp = kp if vpol is None else ((" " + vpol) if vpol else "")
    stamp_n = [0]
    def stamp():
        if stamps:
            k = stamp_n[0]; stamp_n[0] += 1
            r = 84 if k == 0 else 60 + 2 * (k - 1)
            I(f"s_memrealtime s[{r}:{r+1}]")
    def pstamp(k, force=False):
        if (pstamps and not kstamps and not tstamps) or force:
            I(f"s_memrealtime s[96:97]")
            I("s_waitcnt lgkmcnt(0)")
            I(f"v_writelane_b32 v91, s96, {k}")
    free = [("v", RING0 + 4 * k) for k in range(R)]
    extra = [("v", vWDF + 4 * k) for k in range(16)] + [("a", 252 - 4 * k) for k in range(28)]
    slot_of = {}
    busy_a = set()
    tn = [0]
    def tstamp():
        if tstamps:
            k = tn[0]; tn[0] += 1
            r = 10 + 2 * k if k < 9 else [32, 34, 40, 42][k - 9]
            I(f"s_memtime s[{r}:{r+1}]")
    def slot(g): return slot_of[g][1]
    def alloc(g):
        if free: r = free.pop(0)
        else:
            assert g < 100 and extra, f"out of slots at {g}"
            r = extra.pop(0)
        if r[0] == "a": busy_a.add(r[1])
        slot_of[g] = r
    def release(g):
        r = slot_of[g]
        if r[0] == "v" and r[1] < vWDF: free.append(r)
        if r[0] == "a": busy_a.discard(r[1])

    def wave_reduce(x, t, op):
        for r in (8, 4, 2, 1):
            I(f"{op}_dpp v{x}, v{x}, v{x} row_ror:{r} row_mask:0xf bank_mask:0xf")
        I(f"v_mov_b32 v{t}, v{x}")
        I(f"v_permlane16_swap_b32 v{x}, v{t}")
        I(f"{op} v{x}, v{x}, v{t}")
        I(f"v_mov_b32 v{t}, v{x}")
        I(f"v_permlane32_swap_b32 v{x}, v{t}")
        I(f"{op} v{x}, v{x}, v{t}")

    def ln(Dl, X0, X1, F):
        f = [F + i for i in range(8)]
        c = [F + 8 + i for i in range(4)]
        s, t = F + 12, F + 13
        for i in range(4):
            I(f"v_lshlrev_b32 v{f[2*i]}, 16, v{Dl[i]}")
            I(f"v_and_b32 v{f[2*i+1]}, 0xffff0000, v{Dl[i]}")
        for i in range(4):
            I(f"v_add_f32 v{c[i]}, v{f[2*i]}, v{f[2*i+1]}")
        I(f"v_add_f32 v{c[0]}, v{c[0]}, v{c[2]}")
        I(f"v_add_f32 v{c[1]}, v{c[1]}, v{c[3]}")
        I(f"v_add_f32 v{s}, v{c[0]}, v{c[1]}")
        wave_reduce(s, t, "v_add_f32")
        I(f"v_mul_f32 v{s}, {f32(1/512)}, v{s}")
        for i in range(4):
            I(f"v_sub_f32 v{Dl[i]}, v{f[2*i]}, v{s}")
            I(f"v_sub_f32 v{c[i]}, v{f[2*i+1]}, v{s}")
        for i in range(4):
            I(f"v_mul_f32 v{Dl[i]}, v{Dl[i]}, v{Dl[i]}")
        for i in range(4):
            I(f"v_fmac_f32 v{Dl[i]}, v{c[i]}, v{c[i]}")
        I(f"v_add_f32 v{Dl[0]}, v{Dl[0]}, v{Dl[2]}")
        I(f"v_add_f32 v{Dl[1]}, v{Dl[1]}, v{Dl[3]}")
        I(f"v_add_f32 v{Dl[0]}, v{Dl[0]}, v{Dl[1]}")
        wave_reduce(Dl[0], t, "v_add_f32")
        I(f"v_mul_f32 v{Dl[0]}, {f32(1/512)}, v{Dl[0]}")
        I(f"v_cvt_pk_bf16_f32 v{t}, v{s}, v{Dl[0]}")
        I(f"v_lshlrev_b32 v{s}, 16, v{t}")
        I(f"v_and_b32 v{t}, 0xffff0000, v{t}")
        I(f"v_add_f32 v{t}, {f32(1e-5)}, v{t}")
        I(f"v_sub_f32 v{f[0]}, v{f[0]}, v{s}")
        I(f"v_cvt_pk_bf16_f32 v{t}, v{t}, v{t}")
        I(f"v_sub_f32 v{f[1]}, v{f[1]}, v{s}")
        I(f"v_and_b32 v{t}, 0xffff0000, v{t}")
        I(f"v_cvt_pk_bf16_f32 v{f[0]}, v{f[0]}, v{f[1]}")
        I(f"v_sqrt_f32 v{t}, v{t}")
        I(f"v_and_b32 v{f[1]}, 0xffff0000, v{f[0]}")
        I(f"v_lshlrev_b32 v{f[0]}, 16, v{f[0]}")
        I(f"v_cvt_pk_bf16_f32 v{t}, v{t}, v{t}")
        I(f"v_and_b32 v{t}, 0xffff0000, v{t}")
        I(f"v_rcp_f32 v{s}, v{t}")
        I(f"v_mul_f32 v{f[2]}, v{f[0]}, v{s}")
        I(f"v_mul_f32 v{f[3]}, v{f[1]}, v{s}")
        I(f"v_fma_f32 v{f[4]}, -v{f[2]}, v{t}, v{f[0]}")
        I(f"v_fma_f32 v{f[5]}, -v{f[3]}, v{t}, v{f[1]}")
        I(f"v_fmac_f32 v{f[2]}, v{f[4]}, v{s}")
        I(f"v_fmac_f32 v{f[3]}, v{f[5]}, v{s}")
        I(f"v_cvt_pk_bf16_f32 v{X0}, v{f[2]}, v{f[2]}")
        I(f"v_cvt_pk_bf16_f32 v{X1}, v{f[3]}, v{f[3]}")

    def afrag(dst, src, u):
        I(f"v_and_b32_dpp v{dst}, v{src}, v{vM0} quad_perm:[{u},{u},{u},{u}] row_mask:0xf bank_mask:0xf")
        I(f"v_and_b32_dpp v{dst+1}, v{src}, v{vM1} quad_perm:[{u},{u},{u},{u}] row_mask:0xf bank_mask:0xf")

    def mfma2(A, bfile, b, abid, first, acc=vACC):
        lo, hi = acc, acc + 4
        c0 = "0" if first else f"v[{lo}:{lo+3}]"
        c1 = "0" if first else f"v[{hi}:{hi+3}]"
        I(f"v_mfma_f32_4x4x4_16b_bf16 v[{lo}:{lo+3}], v[{A}:{A+1}], {bfile}[{b}:{b+1}], {c0} cbsz:2 abid:{abid}")
        I(f"v_mfma_f32_4x4x4_16b_bf16 v[{hi}:{hi+3}], v[{A}:{A+1}], {bfile}[{b+2}:{b+3}], {c1} cbsz:2 abid:{abid}")

    def swap_reduce(dst, acc=vACC):
        lo, hi = acc, acc + 4
        for i in range(4): I(f"v_permlane32_swap_b32 v{lo+i}, v{hi+i}")
        for i in range(4): I(f"v_add_f32 v{lo+i}, v{lo+i}, v{hi+i}")
        I(f"v_permlane16_swap_b32 v{lo}, v{lo+2}")
        I(f"v_permlane16_swap_b32 v{lo+1}, v{lo+3}")
        I(f"v_add_f32 v{dst}, v{lo}, v{lo+2}")
        I(f"v_add_f32 v{dst+1}, v{lo+1}, v{lo+3}")

    def afrag1(dst, src, u, half):
        I(f"v_and_b32_dpp v{dst+half}, v{src}, v{vM0 if half == 0 else vM1} quad_perm:[{u},{u},{u},{u}] row_mask:0xf bank_mask:0xf")

    def gemv_il(Xs, bfile, b0, fill=None):
        nr = len(Xs)
        combos = [(u, r) for u in range(4) for r in range(nr)]
        fill = fill if fill is not None else []
        dbl = len(fill) > 18
        def put():
            x = fill.pop(0)
            if callable(x): x()
            else: I(x)
        afrag(vA, Xs[combos[0][1]], combos[0][0])
        first = True
        for ci, (u, r) in enumerate(combos):
            A = vA + 2 * (ci & 1)
            for aa in range(4):
                f = (8 * aa + 2 * u + r) if nr == 2 else (4 * aa + u)
                mfma2(A, bfile, b0 + 4 * f, aa, first); first = False
                if aa < 2 and ci + 1 < len(combos):
                    afrag1(vA + 2 * ((ci + 1) & 1), Xs[combos[ci + 1][1]], combos[ci + 1][0], aa)
                    if fill and aa == 0 and dbl: put()
                elif fill:
                    put()
                    if fill and aa == 2 and dbl: put()
        while fill: put()

    I(f"s_cmp_ge_u32 s2, 256")
    I("s_cbranch_scc1 L_end")
    stamp()
    if ctl and not stamps: I(f"s_memrealtime s[{sT0}:{sT0+1}]")
    a.C("kernarg pointers; lane/wave decomposition")
    I("s_load_dwordx16 s[60:75], s[0:1], 0")
    I("s_load_dwordx8 s[76:83], s[0:1], 64")
    I(f"v_lshrrev_b32 v{vT}, 6, v0")
    I(f"v_and_b32 v{vLANE}, 63, v0")
    I(f"v_readfirstlane_b32 s{sW}, v{vT}")
    I(f"s_lshr_b32 s{sB}, s2, 5")
    if hmap:
        I(f"s_and_b32 s{sH}, s2, 7")
        I(f"s_lshl_b32 s{sH}, s{sH}, 2")
        I(f"s_bfe_u32 s{sTMP}, s2, 0x20003")
        I(f"s_or_b32 s{sH}, s{sH}, s{sTMP}")
        I(f"s_andn2_b32 s2, s2, 31")
        I(f"s_or_b32 s2, s2, s{sH}")
    else:
        I(f"s_and_b32 s{sH}, s2, 31")
    if remap:
        I(f"s_and_b32 s{sTB}, s2, 7")
        I(f"s_lshr_b32 s{sTC}, s2, 3")
    else:
        I(f"s_mov_b32 s{sTB}, s{sB}")
        I(f"s_mov_b32 s{sTC}, s{sH}")
    I(f"s_min_u32 s{sJF}, s{sTC}, 27")
    J16, SS = vT + 1, vT + 2
    I(f"v_and_b32 v{J16}, 15, v{vLANE}")
    I(f"v_lshrrev_b32 v{SS}, 4, v{vLANE}")
    I(f"v_lshlrev_b32 v{vROW}, 2, v{vLANE}")
    I(f"v_lshlrev_b32 v{vKV}, 4, v{vLANE}")
    I(f"s_lshl_b32 s{sTMP}, s{sW}, 12")
    I(f"v_add_u32 v{vKV}, s{sTMP}, v{vKV}")
    if swp: I(f"v_xor_b32 v{vKV2}, 0x2000, v{vKV}")
    for i in range(4):
        I(f"s_add_u32 s{sROT+i}, s{sW}, {i}")
        I(f"s_and_b32 s{sROT+i}, s{sROT+i}, 3")
        I(f"s_lshl_b32 s{sROT+i}, s{sROT+i}, 8")
    I(f"v_lshlrev_b32 v{vT+3}, 4, v{J16}")
    I(f"s_lshl_b32 s{sTMP}, s{sW}, 20" if not fakeq else f"s_lshl_b32 s{sTMP}, s{sB}, 19")
    I(f"s_lshl_b32 s{sTMP2}, s{sH}, 8")
    I(f"s_add_u32 s{sTMP}, s{sTMP}, s{sTMP2}")
    I(f"v_lshlrev_b32 v{vWQ}, {17 if fakeq else 18}, v{SS}")
    I(f"v_add3_u32 v{vWQ}, v{vWQ}, v{vT+3}, s{sTMP}")
    if rotq:
        I(f"s_mul_i32 s{sRQ}, s{sB}, {rotq // 2}")
        I(f"v_add_u32 v{vT+7}, s{sRQ}, v{vLANE}")
        I(f"v_and_b32 v{vT+7}, 15, v{vT+7}")
        I(f"v_and_or_b32 v{vT+7}, v{vLANE}, 48, v{vT+7}")
        I(f"v_lshlrev_b32 v{vT+7}, 2, v{vT+7}")
        I(f"s_lshl_b32 s{sRQ}, s{sRQ}, 14")
    I("s_waitcnt lgkmcnt(0)")
    pstamp(0)
    def mk(b, plo, offlo, size, offhi=None):
        if offlo is None:
            I(f"s_mov_b32 s{b}, s{plo}"); I(f"s_mov_b32 s{b+1}, s{plo+1}")
        else:
            I(f"s_add_u32 s{b}, s{plo}, {offlo}"); I(f"s_addc_u32 s{b+1}, s{plo+1}, 0")
        I(f"s_mov_b32 s{b+2}, {size}"); I(f"s_mov_b32 s{b+3}, 0x20000")
    I(f"s_lshl_b32 s{sTMP}, s{sB}, 10")
    mk(sX, 60, f"s{sTMP}", 1024)
    I(f"s_lshl_b32 s{sTMP}, s2, 20")
    mk(sK, 62, f"s{sTMP}", 1 << 20)
    xl = [I(f"buffer_load_dword v{vT+8+i}, v{vT+7 if rotq else vROW}, {srd(sX)}, s{sROT+i} offen") for i in range(4)]
    a.C("each head starts its sweep at a different 16 KiB step (spreads workgroups over DRAM channels/banks)")
    I(f"s_lshl_b32 s{sISS}, s{sH}, 14" if stg else f"s_mov_b32 s{sISS}, 0")
    issued = [0]
    kvid = {}
    def issue_kv():
        g = issued[0]; issued[0] += 1
        alloc(g)
        s = sK if g < 256 else sV
        if g == 256 and not stg: I(f"s_mov_b32 s{sISS}, 0")
        kvid[g] = I(f"buffer_load_dwordx4 {slot_of[g][0]}[{slot(g)}:{slot(g)+3}], v{vKV2 if (swp and ((g & 255) // swp) & 1) else vKV}, {srd(s)}, s{sISS} offen offset:{(g&3)*1024}{kp if g < 256 else vp}")
        if (g & 3) == 3 and (stg or g != 255) and g != 511:
            I(f"s_add_u32 s{sISS}, s{sISS}, 16384")
            if stg: I(f"s_and_b32 s{sISS}, s{sISS}, 0xfffff")
    wqid = []
    def issue_wq():
        f = len(wqid)
        if rotq:
            I(f"s_add_u32 s{sWOFF}, s{sRQ}, {f*8192}")
            I(f"s_and_b32 s{sWOFF}, s{sWOFF}, 0x3ffff")
        else: I(f"s_mov_b32 s{sWOFF}, {f*8192}")
        wqid.append(I(f"buffer_load_dwordx4 a[{4*f}:{4*f+3}], v{vWQ}, {srd(sWQ)}, s{sWOFF} offen{qp}"))
    mk(sWQ, 66, None, 4 << 20)
    seq = ['K'] * kfirst
    acc = 0
    nwq = 0
    while nwq < NWQ:
        seq.append('W'); nwq += 1
        acc += ratio[0]
        while acc >= ratio[1] and nwq < NWQ:
            seq.append('K'); acc -= ratio[1]
    seqid = []
    def issue_seq(n):
        if seq[n] == 'K': issue_kv()
        else: issue_wq()
        seqid.append(a.vm - 1)
    seqpos = 0
    while seqpos < min(M, len(seq)):
        issue_seq(seqpos); seqpos += 1
    I(f"s_lshl_b32 s{sTMP2}, s{sTB}, 7")
    I(f"s_load_dwordx2 s[{sTAG}:{sTAG+1}], s[82:83], s{sTMP2}")
    I(f"s_lshl_b32 s{sTMP2}, s{sB}, 7")
    I(f"s_load_dwordx2 s[{sTAGP}:{sTAGP+1}], s[82:83], s{sTMP2}")
    mk(sV, 64, f"s{sTMP}", 1 << 20)
    I(f"s_lshl_b32 s{sTMP}, s{sH}, 17")
    mk(sWO, 68, f"s{sTMP}", 1 << 17)
    I(f"s_lshl_b32 s{sTMP}, s{sJF}, 16")
    mk(sWD, 76, f"s{sTMP}", 1 << 16)
    I(f"s_cmp_ge_u32 s{sTC}, 28")
    I(f"s_cselect_b32 s{sWD+2}, 0, s{sWD+2}")
    I(f"s_lshl_b32 s{sTMP}, s{sTB}, 10")
    mk(sXT, 60, f"s{sTMP}", 1024)
    mk(sOUT, 78, None, 8192)
    mk(sWS, 82, None, 0xa00000)
    I(f"s_lshl_b32 s{sTMP}, s{sW}, 8")
    I(f"v_lshlrev_b32 v{vWO}, 15, v{SS}")
    I(f"v_add3_u32 v{vWO}, v{vWO}, v{vT+3}, s{sTMP}")
    I(f"v_lshlrev_b32 v{vWD}, 14, v{SS}")
    I(f"v_add3_u32 v{vWD}, v{vWD}, v{vT+3}, s{sTMP}")
    I(f"v_cmp_gt_u32 vcc, 8, v{J16}")
    I(f"v_mov_b32 v{vT+4}, s74")
    I(f"v_mov_b32 v{vT+5}, s72")
    I(f"v_cndmask_b32 v{vGU}, v{vT+4}, v{vT+5}, vcc")
    I(f"v_mov_b32 v{vT+4}, s75")
    I(f"v_mov_b32 v{vT+5}, s73")
    I(f"v_cndmask_b32 v{vGU+1}, v{vT+4}, v{vT+5}, vcc")
    I(f"s_mul_i32 s{sTMP}, s{sW}, {128*3584}")
    I(f"s_lshl_b32 s{sTMP2}, s{sJF}, 7")
    I(f"s_add_u32 s{sTMP}, s{sTMP}, s{sTMP2}")
    I(f"v_mul_u32_u24 v{vT+4}, {32*3584}, v{SS}")
    I(f"v_and_b32 v{vT+5}, 0x70, v{vT+3}")
    I(f"v_add3_u32 v{vT+4}, v{vT+4}, v{vT+5}, s{sTMP}")
    I(f"s_cmp_ge_u32 s{sTC}, 28")
    I(f"s_cselect_b32 s{sTMP}, 0, -1")
    I(f"s_cselect_b32 s{sGUSTEP}, 0, 7168")
    I(f"v_and_b32 v{vT+4}, s{sTMP}, v{vT+4}")
    I(f"v_mov_b32 v{vT+5}, 0")
    I(f"v_lshl_add_u64 v[{vGU}:{vGU+1}], v[{vT+4}:{vT+5}], 0, v[{vGU}:{vGU+1}]")
    I(f"s_mov_b32 s{sGUSTEP+1}, 0")
    I(f"s_lshl_b32 s{sTMP}, s{sW}, 9")
    I(f"v_lshlrev_b32 v{vLW}, 5, v{J16}")
    I(f"v_lshlrev_b32 v{vT+4}, 3, v{SS}")
    I(f"v_add3_u32 v{vLW}, v{vLW}, v{vT+4}, s{sTMP}")
    I(f"s_lshl_b32 s{sTMP}, s2, 12")
    I(f"v_lshl_add_u32 v{vPUB}, v{vLW}, 1, s{sTMP}")
    I(f"s_lshl_b32 s{sTMP}, s{sTB}, 17")
    I(f"s_lshl_b32 s{sTMP2}, s{sTC}, 7")
    I(f"s_add_u32 s{sTMP}, s{sTMP}, s{sTMP2}")
    I(f"s_lshl_b32 s{sTMP2}, s{sW}, 5")
    I(f"s_add_u32 s{sTMP}, s{sTMP}, s{sTMP2}")
    I(f"v_lshrrev_b32 v{vGAT}, 1, v{vLANE}")
    I(f"v_lshlrev_b32 v{vGAT}, 12, v{vGAT}")
    I(f"v_and_b32 v{vT+4}, 16, v{vT+3}")
    I(f"v_add3_u32 v{vGAT}, v{vGAT}, v{vT+4}, s{sTMP}")
    if halfx:
        I(f"s_lshl_b32 s{sTMP}, s{sTB}, 17")
        I(f"s_lshl_b32 s{sTMP2}, s{sTC}, 6")
        I(f"s_add_u32 s{sTMP}, s{sTMP}, s{sTMP2}")
        I(f"s_lshr_b32 s{sTMP2}, s{sW}, 1")
        I(f"s_lshl_b32 s{sTMP2}, s{sTMP2}, 5")
        I(f"s_add_u32 s{sTMP}, s{sTMP}, s{sTMP2}")
        I(f"v_lshrrev_b32 v{vGAT}, 1, v{vLANE}")
        I(f"v_lshlrev_b32 v{vGAT}, 12, v{vGAT}")
        I(f"v_add3_u32 v{vGAT}, v{vGAT}, v{vT+4}, s{sTMP}")
        I(f"s_lshl_b32 s{sTMP}, s2, 12")
        I(f"v_lshlrev_b32 v{vT+4}, 3, v{SS}")
        I(f"v_add3_u32 v{vPUB}, v{vLW}, v{vT+4}, s{sTMP}")
    I(f"s_mov_b32 s{sGOFF}, {P1OFF}")
    I(f"v_lshlrev_b32 v{vHROW}, 4, v{vLANE}")
    I(f"v_lshlrev_b32 v{vLO}, 3, v{vLANE}")
    I(f"v_add_u32 v{vLO}, {LO}, v{vLO}")
    I(f"v_add_u32 v{vLGU}, {LGU}, v{vROW}")
    I(f"v_lshlrev_b32 v{vLQ}, 5, v{J16}")
    I(f"v_and_b32 v{vHST}, 4, v{vROW}")
    I(f"v_and_b32 v{vT+4}, 3, v{vLANE}")
    I(f"v_mov_b32 v{vT+5}, 0xffff")
    I(f"v_mov_b32 v{vT+6}, 0xffff0000")
    I(f"v_mov_b32 v{vM0}, 0")
    I(f"v_mov_b32 v{vM1}, 0")
    for val, dst, src in ((0, vM0, vT+5), (1, vM0, vT+6), (2, vM1, vT+5), (3, vM1, vT+6)):
        I(f"v_cmp_eq_u32 vcc, {val}, v{vT+4}")
        I(f"v_cndmask_b32 v{dst}, v{dst}, v{src}, vcc")
    I(f"s_mov_b32 s{sODD}, 0xaaaaaaaa"); I(f"s_mov_b32 s{sODD+1}, 0xaaaaaaaa")
    I(f"s_mov_b32 s{sBIT1}, 0xcccccccc"); I(f"s_mov_b32 s{sBIT1+1}, 0xcccccccc")
    I(f"s_mov_b32 s{sL2E}, {f32(1.4426950408889634)}")
    I(f"s_mov_b32 s{sSCALE}, {f32(128 ** -0.5)}")
    I(f"s_mov_b32 s{sFFFF}, 0xffff")
    I(f"s_mov_b32 s{sP2}, {P2OFF}")
    I(f"s_lshl_b32 s{sTMP}, s{sTB}, 10")
    I(f"s_lshl_b32 s{sTMP2}, s{sTC}, 5")
    I(f"s_add_u32 s{sOUTO}, s{sTMP}, s{sTMP2}")
    I(f"s_lshl_b32 s{sTMP2}, s{sW}, 3")
    I(f"s_add_u32 s{sOUTO}, s{sOUTO}, s{sTMP2}")
    I(f"s_lshl_b32 s{sHST}, s{sOUTO}, 2")
    I(f"s_add_u32 s{sHST}, s{sHST}, {HOFF}")
    I(f"s_lshl_b32 s{sTMP}, s{sTB}, 12")
    I(f"s_lshl_b32 s{sROT}, s{sW}, 10")
    I(f"s_add_u32 s{sROT}, s{sROT}, s{sTMP}")
    I(f"s_add_u32 s{sROT}, s{sROT}, {HOFF}")
    I(f"s_add_u32 s{sHSTA}, s{sHST}, {HAOFF - HOFF}")
    I(f"s_add_u32 s{sROTA}, s{sROT}, {HAOFF - HOFF}")
    I(f"s_mov_b32 s{sP2A}, {P2AOFF}")
    I(f"v_mov_b32 v{vMAX}, 0xff800000")
    I("s_waitcnt lgkmcnt(0)")
    for tg in (sTAG, sTAGP):
        I(f"s_mul_i32 s{tg}, s{tg}, 1664525")
        I(f"s_add_u32 s{tg}, s{tg}, 1013904223")
        I(f"s_mul_i32 s{tg+1}, s{tg+1}, 22695477")
        I(f"s_add_u32 s{tg+1}, s{tg+1}, 1")
    I(f"v_mov_b32 v{vPB+2}, s{sTAGP}")
    I(f"v_mov_b32 v{vPB+3}, s{sTAGP+1}")
    if fixref:
        mk(sDBG if False else 40, 80, None, 256) if False else None
        I(f"s_or_b32 s{sTMP}, s2, s{sW}")
        I(f"s_cmp_lg_u32 s{sTMP}, 0")
        I("s_cbranch_scc1 L_noref")
        I(f"v_mov_b32 v{vT+4}, s{sT0}")
        I(f"v_mov_b32 v{vT+5}, 0")
        I("s_mov_b64 exec, 1")
        a.X(f"global_store_dword v{vT+5}, v{vT+4}, s[80:81] sc1")
        I("s_mov_b64 exec, -1")
        I("L_noref:")
        I(f"s_mov_b64 s[76:77], s[80:81]")
    pstamp(2)
    a.C("LayerNorm(x[b]) with the reference's bf16 roundings, then q = xn @ wq[:, head]")
    a.wait_vm(xl[3])
    pstamp(3)
    X0, X1 = vT, vT + 1
    ln([vT + 8 + i for i in range(4)], vP, vP + 1, vS)
    pstamp(4)
    for u in range(4):
        for r in range(2):
            afrag(vA + 4 * u + 2 * r, vP + r, u)
    base = xl[3] + 1
    fdone = 0
    def do_wq_upto(idx):
        nonlocal fdone
        while fdone < len(wqid) and wqid[fdone] <= idx:
            f = fdone; fdone += 1
            aa, u, r = f >> 3, (f >> 1) & 3, f & 1
            mfma2(vA + 4 * u + 2 * r, "a", 4 * f, aa, f == 0)
    while seqpos < len(seq):
        idx = seqid[seqpos - M]
        a.wait_vm(idx)
        issue_seq(seqpos); seqpos += 1
        do_wq_upto(idx)
    kleft = qextra
    while fdone < NWQ:
        idx = wqid[fdone]
        a.wait_vm(idx)
        while issued[0] - sum(1 for g in kvid if kvid[g] <= idx) < N: issue_kv()
        do_wq_upto(idx)
    for _ in range(qdelay):
        a.wait_vm(kvid[issued[0] - N]); issue_kv()
    pstamp(8)
    swap_reduce(vT)
    I(f"ds_write_b64 v{vLW}, v[{vT}:{vT+1}] offset:{LQ}")
    if qextra > 0: issue_kv()
    I("s_waitcnt lgkmcnt(0)")
    I("s_barrier")
    if qextra > 1: issue_kv()
    pstamp(9)
    for w in range(4):
        I(f"ds_read_b128 v[{vS+8*(w&1)}:{vS+8*(w&1)+3}], v{vLQ} offset:{LQ+w*512}" if w < 2 else f"ds_read_b128 v[{vA+8*(w&1)}:{vA+8*(w&1)+3}], v{vLQ} offset:{LQ+w*512}")
        I(f"ds_read_b128 v[{vS+8*(w&1)+4}:{vS+8*(w&1)+7}], v{vLQ} offset:{LQ+w*512+16}" if w < 2 else f"ds_read_b128 v[{vA+8*(w&1)+4}:{vA+8*(w&1)+7}], v{vLQ} offset:{LQ+w*512+16}")
    I("s_waitcnt lgkmcnt(0)")
    for i in range(8): I(f"v_add_f32 v{vS+i}, v{vS+i}, v{vS+8+i}")
    for i in range(8): I(f"v_add_f32 v{vA+i}, v{vA+i}, v{vA+8+i}")
    for i in range(8): I(f"v_add_f32 v{vS+i}, v{vS+i}, v{vA+i}")
    if qextra > 2: issue_kv()
    for i in range(4): I(f"v_cvt_pk_bf16_f32 v{vQ+i}, v{vS+2*i}, v{vS+2*i+1}")
    stamp()

    side = []
    side_last = [0]
    def mkside():
        def clr():
            I(f"s_and_b32 s{sTMP}, s{sOUTO}, 1023")
            I(f"buffer_load_dword v{vXRES}, v{vHST}, {srd(sXT)}, s{sTMP} offen")
        side.append(clr)
        def wo(f):
            def g():
                assert 128 + 4 * f not in busy_a
                I(f"s_mov_b32 s{sWOFF}, {(f>>2)*4096}")
                I(f"buffer_load_dwordx4 a[{128+4*f}:{128+4*f+3}], v{vWO}, {srd(sWO)}, s{sWOFF} offen offset:{(f&3)*1024}{wp}")
            return g
        def gu(f):
            def g():
                side_last[0] = I(f"global_load_dwordx4 a[{4*f}:{4*f+3}], v[{vGU}:{vGU+1}], off offset:{(f&1)*3584}{fp}")
                if f & 1: I(f"v_lshl_add_u64 v[{vGU}:{vGU+1}], v[{vGU}:{vGU+1}], 0, s[{sGUSTEP}:{sGUSTEP+1}]")
            return g
        def wd(f):
            def g():
                I(f"s_mov_b32 s{sWOFF}, {(f>>2)*4096}")
                I(f"buffer_load_dwordx4 v[{vWDF+4*f}:{vWDF+4*f+3}], v{vWD}, {srd(sWD)}, s{sWOFF} offen offset:{(f&3)*1024}{fp}")
            return g
        for f in range(32): side.append(wo(f))
        for f in range(32): side.append(gu(f))
        for f in range(16): side.append(wd(f))
    mkside()
    if noside: side = side[:1]
    deferred = side[len(side) - ND:] if ND else []
    side = side[:len(side) - ND]
    late_cs = ND > 16
    side_steps = {}
    for k in range(len(side)):
        pos = wstart + (wend - wstart) * k // len(side)
        side_steps.setdefault(pos, []).append(side[k])

    work = []
    def push_group(g4):
        B, aa = g4 >> 2, g4 & 3
        def D(e):
            def f():
                src = []
                for c in range(4):
                    g = 4 * g4 + c
                    if slot_of[g][0] == "a":
                        I(f"v_accvgpr_read_b32 v{vA+c}, a{slot(g)+e}"); src.append(vA + c)
                    else: src.append(slot(g) + e)
                for c in range(4):
                    I(f"v_dot2_f32_bf16 v{vP+c}, v{src[c]}, v{vQ+e}, " + ("0" if e == 0 else f"v{vP+c}"))
                if e == 3:
                    for c in range(4): release(4 * g4 + c)
            return f
        def Rd():
            I(f"v_add_f32_dpp v{vP}, v{vP}, v{vP} row_ror:8 row_mask:0xf bank_mask:0x3")
            I(f"v_add_f32_dpp v{vP+1}, v{vP+1}, v{vP+1} row_ror:8 row_mask:0xf bank_mask:0x3")
            I(f"v_add_f32_dpp v{vP}, v{vP+2}, v{vP+2} row_ror:8 row_mask:0xf bank_mask:0xc")
            I(f"v_add_f32_dpp v{vP+1}, v{vP+3}, v{vP+3} row_ror:8 row_mask:0xf bank_mask:0xc")
            I(f"v_add_f32_dpp v{vG+aa}, v{vP}, v{vP} row_half_mirror row_mask:0xf bank_mask:0x5")
            I(f"v_add_f32_dpp v{vG+aa}, v{vP+1}, v{vP+1} row_half_mirror row_mask:0xf bank_mask:0xa")
        def F1():
            for q in range(4):
                I(f"v_add_f32_dpp v{vG+q}, v{vG+q}, v{vG+q} quad_perm:[1,0,3,2] row_mask:0xf bank_mask:0xf")
            I(f"v_cndmask_b32 v{vG}, v{vG}, v{vG+1}, s[{sODD}:{sODD+1}]")
            I(f"v_cndmask_b32 v{vG+2}, v{vG+2}, v{vG+3}, s[{sODD}:{sODD+1}]")
            I(f"v_add_f32_dpp v{vG}, v{vG}, v{vG} quad_perm:[2,3,0,1] row_mask:0xf bank_mask:0xf")
            I(f"v_add_f32_dpp v{vG+2}, v{vG+2}, v{vG+2} quad_perm:[2,3,0,1] row_mask:0xf bank_mask:0xf")
            I(f"v_cndmask_b32 v{vS+B}, v{vG}, v{vG+2}, s[{sBIT1}:{sBIT1+1}]")
        def F2():
            I(f"v_cvt_pk_bf16_f32 v{vS+B}, v{vS+B}, v{vS+B}")
            I(f"v_and_b32 v{vS+B}, 0xffff0000, v{vS+B}")
            I(f"v_mul_f32 v{vS+B}, s{sSCALE}, v{vS+B}")
            I(f"v_cvt_pk_bf16_f32 v{vS+B}, v{vS+B}, v{vS+B}")
            I(f"v_and_b32 v{vS+B}, 0xffff0000, v{vS+B}")
            I(f"v_max_f32 v{vMAX}, v{vMAX}, v{vS+B}")
        work.extend([D(0), D(1), D(2), D(3), Rd])
        if aa == 3: work.extend([F1, F2])
    if pf or pft:
        I(f"s_getpc_b64 s[{sPC}:{sPC+1}]")
        I("L_pc:")
        I(f"s_lshl_b32 s{sTMP}, s{sW}, 7")
        I(f"s_add_u32 s{sPC}, s{sPC}, s{sTMP}")
        I(f"s_addc_u32 s{sPC+1}, s{sPC+1}, 0")
    def codepf(i):
        if i % 16 == 0: I(f"L_blk{i // 16}:")
        if pf and i % 16 == 3 and i // 16 + pfd < 32:
            I(f"s_mov_b32 s{sPFD-1}, L_blk{i // 16 + pfd}-L_pc")
            for k in range(pf if i // 16 + pfd < 17 else (pf + 1) // 2 + 1):
                I(f"s_load_dword s{sPFD}, s[{sPC}:{sPC+1}], s{sPFD-1} offset:{512 * k}")
        if pft and i == 451:
            I(f"s_mov_b32 s{sPFD-1}, L_tail-L_pc")
            for k in range(6):
                I(f"s_load_dword s{sPFD}, s[{sPC}:{sPC+1}], s{sPFD-1} offset:{512 * k}")
    a.C("K phase: 16 blocks of 64 keys per wave; weight slices for the tail are loaded in between")
    I1 = issued[0]
    boost = fB or fC or ctl
    I(f"s_mov_b32 s{sLVL}, 0")
    def nominal(i):
        ns = sum(len(v) for k, v in side_steps.items() if k <= i)
        return T0 + Ts * (i + 1) + Tside * ns
    def control(i):
        if not ctl or i < ustart: return
        if i % U == 0: I(f"s_memrealtime s[{sNOW}:{sNOW+1}]")
        if i % U == 2:
            a.C("window level = how far this wave is behind the expected stream position")
            I("s_waitcnt lgkmcnt(0)")
            I(f"s_sub_u32 s{sLVL}, s{sNOW}, s{sT0}")
            I(f"s_sub_i32 s{sLVL}, s{sLVL}, {int(nominal(i - 3) / 10)}")
            I(f"s_mul_i32 s{sLVL}, s{sLVL}, {int(65536 * 10 / dl)}")
            I(f"s_ashr_i32 s{sLVL}, s{sLVL}, 16")
    if fB:
        I(f"s_getreg_b32 s{sTMP}, hwreg(HW_REG_XCC_ID, 0, 1)")
        I(f"s_cmp_eq_u32 s{sTMP}, 0")
        I("s_cselect_b64 vcc, -1, 0")
    accs = [0.0, 0.0]
    def paced1(i, n):
        tgt = min(i + 2 + n, 512)
        if issued[0] >= tgt: return
        if issued[0] == tgt - 1 and i + 1 in kvid:
            accs[1] += fC; accs[0] += fB
            if ctl and i > ustart and i % cands == 0:
                j = (i // cands) % nl
                th = int(format(j, f"0{nl.bit_length()-1}b")[::-1], 2) + 1
                I(f"s_cmp_ge_i32 s{sLVL}, {th}")
                I(f"s_cbranch_scc1 L_b{i}")
                I(f"s_waitcnt vmcnt({a.vm - 1 - kvid[i+1]})")
                I(f"L_b{i}:")
            elif accs[1] >= 1: accs[1] -= 1
            elif accs[0] >= 1:
                accs[0] -= 1
                I(f"s_cbranch_vccnz L_b{i}")
                I(f"s_waitcnt vmcnt({a.vm - 1 - kvid[i+1]})")
                I(f"L_b{i}:")
            else: a.wait_vm(kvid[i + 1])
        while issued[0] < tgt: issue_kv()
    def paced2(i, n):
        tgt = min(i + 3 + n, 512)
        if issued[0] >= tgt: return
        while issued[0] < tgt - 1:
            a.wait_vm(kvid[issued[0] - n]); issue_kv()
        if i <= ustart:
            a.wait_vm(kvid[i + 2])
        else:
            k = i & 15
            ta = 1 if k == 0 else 2 if k == 8 else 3 if k % 4 == 0 else 4 if k % 2 == 0 else 5
            tb = 6 if k % 4 == 0 else 7 if k % 2 == 0 else 8
            if kvid[i + 1] >= a.vm_done:
                I(f"s_cmp_ge_i32 s{sLVL}, {tb}")
                I(f"s_cbranch_scc1 L_b{i}")
                I(f"s_waitcnt vmcnt({a.vm - 1 - kvid[i+1]})")
            I(f"s_cmp_ge_i32 s{sLVL}, {ta}")
            I(f"s_cbranch_scc1 L_b{i}")
            I(f"s_waitcnt vmcnt({a.vm - 1 - kvid[i+2]})")
            I(f"L_b{i}:")
        issue_kv()
    paced = paced2 if two else paced1
    for i in range(256):
        a.wait_vm(kvid[i])
        control(i)
        codepf(i)
        if boost and i + 1 + N >= I1 + i // cu: paced(i, N)
        tgt = max(i + 1 + N, I1 + i // cu)
        while issued[0] < tgt: issue_kv()
        for fn in side_steps.get(i, []): fn()
        if kstamps and i % 32 == 31: pstamp(i // 32, True)
        if (i & 3) == 3:
            if nokc and i > 64:
                for c in range(4): release(i - 3 + c)
            else: push_group(i >> 2)
        n = 1 if len(work) <= 4 - (i & 3) + 0 else 2
        for _ in range(min(n, len(work))): work.pop(0)()
    nV = NV or N
    xleft = [Tx]
    def xissue():
        if xleft[0] > 0:
            xleft[0] -= 1; issue_kv()
    while work: work.pop(0)()
    stamp()
    a.C("softmax: wave max/sum, exchange (max, sum) through LDS, p = bf16(exp(s - max) / sum)")
    xissue()
    wave_reduce(vMAX, vT, "v_max_f32")
    I(f"v_mul_f32 v{vT}, s{sL2E}, v{vMAX}")
    for B in range(16): I(f"v_fma_f32 v{vS+B}, v{vS+B}, s{sL2E}, -v{vT}")
    for B in range(16): I(f"v_exp_f32 v{vS+B}, v{vS+B}")
    xissue()
    for k in range(8): I(f"v_add_f32 v{vA+k}, v{vS+2*k}, v{vS+2*k+1}")
    for k in range(4): I(f"v_add_f32 v{vA+k}, v{vA+k}, v{vA+4+k}")
    for k in range(2): I(f"v_add_f32 v{vA+k}, v{vA+k}, v{vA+2+k}")
    I(f"v_add_f32 v{vT+3}, v{vA}, v{vA+1}")
    wave_reduce(vT + 3, vT + 1, "v_add_f32")
    I(f"v_mov_b32 v{vT+2}, v{vT}")
    I(f"s_lshl_b32 s{sTMP}, s{sW}, 3")
    I(f"v_mov_b32 v{vT+1}, s{sTMP}")
    I("s_mov_b64 exec, 1")
    I(f"ds_write_b64 v{vT+1}, v[{vT+2}:{vT+3}] offset:{LML}")
    I("s_mov_b64 exec, -1")
    I(f"v_mov_b32 v{vT+1}, 0")
    xissue()
    I("s_waitcnt lgkmcnt(0)")
    I("s_barrier")
    xissue()
    I(f"ds_read_b128 v[{vA}:{vA+3}], v{vT+1} offset:{LML}")
    I(f"ds_read_b128 v[{vA+4}:{vA+7}], v{vT+1} offset:{LML+16}")
    I("s_waitcnt lgkmcnt(0)")
    I(f"v_max3_f32 v{vT+5}, v{vA}, v{vA+2}, v{vA+4}")
    I(f"v_max_f32 v{vT+5}, v{vT+5}, v{vA+6}")
    for k in range(4): I(f"v_sub_f32 v{vA+2*k}, v{vA+2*k}, v{vT+5}")
    I(f"v_sub_f32 v{vT}, v{vT}, v{vT+5}")
    for k in range(4): I(f"v_exp_f32 v{vA+2*k}, v{vA+2*k}")
    I(f"v_exp_f32 v{vT}, v{vT}")
    I(f"v_mul_f32 v{vA}, v{vA}, v{vA+1}")
    I(f"v_mul_f32 v{vA+4}, v{vA+4}, v{vA+5}")
    I(f"v_fmac_f32 v{vA}, v{vA+2}, v{vA+3}")
    I(f"v_fmac_f32 v{vA+4}, v{vA+6}, v{vA+7}")
    I(f"v_add_f32 v{vA}, v{vA}, v{vA+4}")
    I(f"v_rcp_f32 v{vA}, v{vA}")
    I(f"v_mul_f32 v{vT}, v{vT}, v{vA}")
    while xleft[0] > 0: xissue()
    for B in range(16): I(f"v_mul_f32 v{vS+B}, v{vS+B}, v{vT}")
    for B in range(16): I(f"v_cvt_pk_bf16_f32 v{vS+B}, v{vS+B}, v{vS+B}")
    stamp()
    a.C("V phase: o += p * V")
    hu_done = []
    cnt_id = None
    for i in range(256, 512):
        B, t = (i - 256) >> 4, i & 15
        u, c = t >> 2, t & 3
        A = vA + 2 * ((i >> 2) & 1)
        if i == 256: afrag(A, vS, 0)
        a.wait_vm(kvid[i])
        if not (NE and i >= 512 - E): control(i)
        codepf(i)
        if boost and not (NE and i >= 512 - E): paced(i, nV)
        tgt = min(i + 1 + (NE if (NE and i >= 512 - E) else nV), 512)
        while issued[0] < tgt: issue_kv()
        for fn in side_steps.get(i, []): fn()
        if issued[0] == 512:
            for _ in range(min(dper, len(deferred))): deferred.pop(0)()
            if hu and not hu_done and i >= 511 - 8 + hlead:
                hu_done.append(1)
                I(f"s_lshl_b32 s{sFL}, s2, 7")
                I(f"s_add_u32 s{sFL}, s{sFL}, {FLOFF}")
                I(f"s_cmp_lg_u32 s{sW}, 0")
                I("s_cbranch_scc1 L_nohu")
                I("s_mov_b64 exec, 1")
                a.X(f"buffer_store_dwordx4 v[{vPB}:{vPB+3}], v{vHROW}, {srd(sWS)}, s{sFL} offen {spol}")
                I("s_mov_b64 exec, -1")
                I("L_nohu:")
                I(f"s_lshl_b32 s{sFL}, s{sTB}, 12")
                I(f"s_add_u32 s{sFL}, s{sFL}, {FLOFF}")
                I(f"v_lshrrev_b32 v{vMAX}, 1, v{vLANE}")
                I(f"v_lshlrev_b32 v{vMAX}, 7, v{vMAX}")
                I(f"s_mov_b32 s{sC1}, {P1B}")
                I(f"s_mov_b32 s{sC2}, {P1C}")
        mfma2(A, "v", slot(i), c, i == 256)
        release(i)
        if kstamps and i % 32 == 31: pstamp(i // 32, True)
        if fast and i == pretouch:
            I(f"buffer_load_dwordx4 v[{vT+4}:{vT+7}], v{vHROW}, {srd(sWS)}, s{sROTA} offen sc1")
        if fast and i == pretouch + 4:
            I(f"buffer_load_dwordx4 v[{vT+4}:{vT+7}], v{vGAT}, {srd(sWS)}, s{sP2A} offen sc1")
        if late_cs: pass
        elif i == cs_start - 1:
            assert side_last[0] < a.vm_done
            I(f"v_and_b32 v{vA+4}, 0x3f803f80, v{vM0}")
            I(f"v_and_b32 v{vA+5}, 0x3f803f80, v{vM1}")
        if not late_cs and cs_start <= i < cs_start + 32:
            mfma2(vA + 4, "a", 4 * (i - cs_start), 0, i == cs_start, acc=vT + 8)
        if not late_cs and i == cs_start + 33:
            swap_reduce(vT, acc=vT + 8)
            I(f"ds_write_b64 v{vLW}, v[{vT}:{vT+1}] offset:{LCS}")
        if c == 0 and i + 4 < 512:
            j = i + 4
            afrag(vA + 2 * ((j >> 2) & 1), vS + ((j - 256) >> 4), (j & 15) >> 2)
    stamp()
    a.C("tail: reduce o over the waves, o @ wo slice, publish, then the three hand-offs")
    I("L_tail:")
    tstamp()
    FS = RING0 + 48
    if hu: a.X(f"buffer_load_dwordx4 v[{FS}:{FS+3}], v{vMAX}, {srd(sWS)}, s{sFL} offen {lpol}")
    swap_reduce(vT)
    I(f"ds_write_b64 v{vLW}, v[{vT}:{vT+1}] offset:{LO}")
    for _ in range(min(3, len(deferred))): deferred.pop(0)()
    I("s_waitcnt lgkmcnt(0)")
    tstamp()
    I("s_barrier")
    tstamp()
    I(f"ds_read2_b64 v[{vT}:{vT+3}], v{vLO} offset0:0 offset1:64")
    I(f"ds_read2_b64 v[{vT+4}:{vT+7}], v{vLO} offset0:128 offset1:192")
    vCS = vS
    def read_cs():
        for w in range(4):
            I(f"ds_read2st64_b32 v[{vCS+2*w}:{vCS+2*w+1}], v{vLGU} offset0:{(LCS-LGU)//256+2*w} offset1:{(LCS-LGU)//256+2*w+1}")
    if not late_cs: read_cs()
    for _ in range(min(3, len(deferred))): deferred.pop(0)()
    I("s_waitcnt lgkmcnt(0)" if (tstamps or late_cs) else "s_waitcnt lgkmcnt(4)")
    tstamp()
    I(f"v_add_f32 v{vT}, v{vT}, v{vT+2}")
    I(f"v_add_f32 v{vT+1}, v{vT+1}, v{vT+3}")
    I(f"v_add_f32 v{vT+4}, v{vT+4}, v{vT+6}")
    I(f"v_add_f32 v{vT+5}, v{vT+5}, v{vT+7}")
    I(f"v_add_f32 v{vT}, v{vT}, v{vT+4}")
    I(f"v_add_f32 v{vT+1}, v{vT+1}, v{vT+5}")
    I(f"v_cvt_pk_bf16_f32 v{vP}, v{vT}, v{vT}")
    I(f"v_cvt_pk_bf16_f32 v{vP+1}, v{vT+1}, v{vT+1}")
    gemv_il([vP, vP + 1], "a", 128, deferred)
    tstamp()
    swap_reduce(vPB)
    tstamp()
    if halfx: I("s_mov_b32 exec_hi, 0")
    I(f"buffer_store_dwordx4 v[{vPB}:{vPB+3}], v{vPUB}, {srd(sWS)}, s{sGOFF} offen {spol}")
    if halfx: I("s_mov_b64 exec, -1")
    if hu and K1 > 1: I(f"buffer_store_dwordx4 v[{vPB}:{vPB+3}], v{vPUB}, {srd(sWS)}, s{sC1} offen {spol}")
    if hu and K1 > 2: I(f"buffer_store_dwordx4 v[{vPB}:{vPB+3}], v{vPUB}, {srd(sWS)}, s{sC2} offen {spol}")
    stamp()
    vR = vG
    vPUB2 = vWQ

    def poll(label, S, voff, soff, nres, pre=None, th=0, soffA=None, lazy=None, delay=0):
        ld = lambda so: f"buffer_load_dwordx4 v[{S}:{S+3}], v{voff}, {srd(sWS)}, s{so} offen {lpol}"
        def check():
            I("s_waitcnt vmcnt(0)")
            I(f"v_cmp_eq_u64 vcc, s[{sTAG}:{sTAG+1}], v[{S+2}:{S+3}]")
            for r in range(nres): I(f"v_cndmask_b32 v{vR+r}, v{vR+r}, v{S+r}, vcc")
            I("s_andn2_b64 exec, exec, vcc")
            I(f"s_cbranch_scc0 {label}_ok")
        if delay:
            if pre: pre()
            a.C("back off before the first poll: reading a line before it is written slows the write down")
            I(f"s_sleep {delay}")
        a.X(ld(soffA if soffA else soff))
        if pre and not delay: pre()
        I(f"s_mov_b32 s{sCNT}, {SPIN}")
        I(f"{label}:")
        check()
        if th:
            I(f"s_bcnt1_i32_b64 s{sTMP}, exec")
            I(f"s_cmp_le_u32 s{sTMP}, {th}")
            I(f"s_cbranch_scc1 {label}_f")
            I(f"s_sleep {slow}")
            I(f"{label}_f:")
        if psl and not th: I(f"s_sleep {psl}")
        I(f"s_sub_u32 s{sCNT}, s{sCNT}, 1")
        if soffA:
            I(f"s_and_b32 s{sTMP}, s{sCNT}, {NA-1}")
            I(f"s_cselect_b32 s{sTMP}, s{soffA}, s{soff}")
            if lazy:
                I(f"s_cbranch_scc1 {label}_n")
                I("s_mov_b64 s[8:9], exec")
                I("s_mov_b64 exec, 3")
                a.X(lazy)
                I("s_mov_b64 exec, s[8:9]")
                I(f"{label}_n:")
            a.X(ld(sTMP))
        else:
            a.X(ld(soff))
        I(f"s_cmp_lg_u32 s{sCNT}, 0")
        I(f"s_cbranch_scc1 {label}")
        I(f"{label}_ok:")
        I("s_mov_b64 exec, -1")

    def sample(label, S, voff, soffs, nres, gap):
        ld = lambda k: f"buffer_load_dwordx4 v[{S+4*k}:{S+4*k+3}], v{voff}, {srd(sWS)}, s{soffs[k]} offen {lpol}"
        def check(k, cnt):
            I(f"s_waitcnt vmcnt({cnt})")
            I(f"v_cmp_eq_u64 vcc, s[{sTAG}:{sTAG+1}], v[{S+4*k+2}:{S+4*k+3}]")
            for r in range(nres): I(f"v_cndmask_b32 v{vR+r}, v{vR+r}, v{S+4*k+r}, vcc")
            I("s_andn2_b64 exec, exec, vcc")
            I(f"s_cbranch_scc0 {label}_ok")
        n = len(soffs)
        a.X(ld(0))
        for k in range(1, n):
            I(f"s_sleep {gap}")
            a.X(ld(k))
            check(k - 1, 1)
        I(f"s_mov_b32 s{sCNT}, {SPIN}")
        I(f"{label}:")
        check(n - 1, 0)
        I(f"s_sub_u32 s{sCNT}, s{sCNT}, 1")
        a.X(ld(n - 1))
        I(f"s_cmp_lg_u32 s{sCNT}, 0")
        I(f"s_cbranch_scc1 {label}")
        I(f"{label}_ok:")
        I("s_mov_b64 exec, -1")

    def colsum():
        x0, x1, t0, t1 = vR, vR + 1, vT + 2, vT + 3
        for r in (8, 4, 2):
            I(f"v_add_f32_dpp v{x0}, v{x0}, v{x0} row_ror:{r} row_mask:0xf bank_mask:0xf")
            I(f"v_add_f32_dpp v{x1}, v{x1}, v{x1} row_ror:{r} row_mask:0xf bank_mask:0xf")
        for sw in ("v_permlane16_swap_b32", "v_permlane32_swap_b32"):
            I(f"v_mov_b32 v{t0}, v{x0}")
            I(f"v_mov_b32 v{t1}, v{x1}")
            I(f"{sw} v{x0}, v{t0}")
            I(f"{sw} v{x1}, v{t1}")
            I(f"v_add_f32 v{x0}, v{x0}, v{t0}")
            I(f"v_add_f32 v{x1}, v{x1}, v{t1}")
        I(f"v_cvt_pk_bf16_f32 v{x0}, v{x0}, v{x1}")
        I(f"v_lshlrev_b32 v{t0}, 16, v{x0}")
        I(f"v_and_b32 v{t1}, 0xffff0000, v{x0}")

    def pre1():
        I(f"s_lshl_b32 s{sTMP}, s{sTB}, 5")
        I(f"s_add_u32 s{sTMP}, s{sTMP}, s{sTC}")
        I(f"s_lshl_b32 s{sTMP}, s{sTMP}, 12")
        I(f"v_lshl_add_u32 v{vPUB2}, v{vLW}, 1, s{sTMP}")
        I(f"v_mov_b32 v{vPB+2}, s{sTAG}")
        I(f"v_mov_b32 v{vPB+3}, s{sTAG+1}")
        I(f"s_getreg_b32 s{sXCC}, hwreg(HW_REG_XCC_ID, 0, 4)")
        I(f"v_mov_b32 v{vPB+1}, s{sXCC}")
        I(f"v_lshlrev_b32 v{vH}, 16, v{vXRES}")
        I(f"v_and_b32 v{vH+1}, 0xffff0000, v{vXRES}")
        if late_cs:
            I(f"v_and_b32 v{vA+4}, 0x3f803f80, v{vM0}")
            I(f"v_and_b32 v{vA+5}, 0x3f803f80, v{vM1}")
            I(f"s_waitcnt vmcnt({a.vm - 1 - side_last[0] + 1})")
            for f in range(32): mfma2(vA + 4, "a", 4 * f, 0, f == 0)
            swap_reduce(vT)
            I(f"ds_write_b64 v{vLW}, v[{vT}:{vT+1}] offset:{LCS}")
            I("s_waitcnt lgkmcnt(0)")
            I("s_barrier")
            read_cs()
        I("s_waitcnt lgkmcnt(0)")
        I(f"v_add_f32 v{vCS}, v{vCS}, v{vCS+2}")
        I(f"v_add_f32 v{vCS+1}, v{vCS+1}, v{vCS+3}")
        I(f"v_add_f32 v{vCS+4}, v{vCS+4}, v{vCS+6}")
        I(f"v_add_f32 v{vCS+5}, v{vCS+5}, v{vCS+7}")
        I(f"v_add_f32 v{vCS}, v{vCS}, v{vCS+4}")
        I(f"v_add_f32 v{vCS+1}, v{vCS+1}, v{vCS+5}")
    if hu:
        I(f"s_waitcnt vmcnt({K1})")
        I(f"v_cmp_ne_u64 vcc, s[{sTAG}:{sTAG+1}], v[{FS+2}:{FS+3}]")
        I("s_mov_b64 s[8:9], vcc")
        pre1()
        I("s_mov_b64 exec, s[8:9]")
        I("s_cbranch_execz L_flx")
        poll("L_fl", FS, vMAX, sFL, 0)
        I(f"s_sleep {aY}")
        I("s_branch L_fly")
        I("L_flx:")
        I("s_mov_b64 exec, -1")
        if aX: I(f"s_sleep {aX}")
        I("L_fly:")
        sample("L_p1", RING0, vGAT, [sGOFF, sC1, sC2][:K1], 2, bS)
    else:
        poll("L_p1", RING0, vGAT, sGOFF, 2, pre1, TH, delay=d1)
    colsum()
    I(f"v_add_f32 v{vT+2}, v{vT+2}, v{vH}")
    I(f"v_add_f32 v{vT+3}, v{vT+3}, v{vH+1}")
    I(f"v_cvt_pk_bf16_f32 v{vPB}, v{vT+2}, v{vT+3}")
    I("s_mov_b64 exec, 3")
    if fast: I(f"buffer_store_dwordx4 v[{vPB}:{vPB+3}], v{vHROW}, {srd(sWS)}, s{sHSTA} offen")
    HB = f"buffer_store_dwordx4 v[{vPB}:{vPB+3}], v{vHROW}, {srd(sWS)}, s{sHST} offen {spol}"
    if not fast: I(HB)
    I("s_mov_b64 exec, -1")
    stamp()
    if not align:
        I(f"s_cmp_ge_u32 s{sTC}, 28")
        I("s_cbranch_scc1 L_noffn")
    def pre2():
        I(f"s_mov_b32 s{sC1}, {P2B}")
        I(f"s_mov_b32 s{sC2}, {P2C}")
        I(f"v_lshlrev_b32 v{vH}, 16, v{vPB}")
        I(f"v_and_b32 v{vH+1}, 0xffff0000, v{vPB}")
    poll("L_h", RING0 + 16, vHROW, sROT, 2 if fast else 1, pre2, soffA=sROTA if fast else None, lazy=HB if fast else None, delay=dH)
    if fast:
        I("s_mov_b64 exec, 3")
        I(HB)
        I("s_mov_b64 exec, -1")
        I(f"v_cmp_ne_u32 s[8:9], s{sXCC}, v{vR+1}")
    stamp()
    tstamp()
    f0, f1, s1, t = vS + 8, vS + 9, vS + 10, vS + 11
    I(f"v_lshlrev_b32 v{f0}, 16, v{vR}")
    I(f"v_and_b32 v{f1}, 0xffff0000, v{vR}")
    I(f"v_and_b32 v{vP}, 0xffff, v{vR}")
    I(f"v_lshrrev_b32 v{vP+1}, 16, v{vR}")
    I(f"v_or_b32 v{vP}, v{vP}, v{f0}")
    I(f"v_or_b32 v{vP+1}, v{vP+1}, v{f1}")
    I(f"v_add_f32 v{s1}, v{f0}, v{f1}")
    stats = []
    def red(x):
        for r in (8, 4, 2, 1):
            stats.append(f"v_add_f32_dpp v{x}, v{x}, v{x} row_ror:{r} row_mask:0xf bank_mask:0xf")
        for sw in ("v_permlane16_swap_b32", "v_permlane32_swap_b32"):
            stats.append(f"v_mov_b32 v{t}, v{x}")
            stats.append(f"{sw} v{x}, v{t}")
            stats.append(f"v_add_f32 v{x}, v{x}, v{t}")
    red(s1)
    stats.append(f"v_mul_f32 v{s1}, {f32(1/128)}, v{s1}")
    stats.append(f"v_sub_f32 v{f0}, v{f0}, v{s1}")
    stats.append(f"v_sub_f32 v{f1}, v{f1}, v{s1}")
    stats.append(f"v_mul_f32 v{f0}, v{f0}, v{f0}")
    stats.append(f"v_fmac_f32 v{f0}, v{f1}, v{f1}")
    red(f0)
    stats.append(f"v_mov_b32 v{f1}, v{s1}")
    gemv_il([vP, vP + 1], "a", 0, stats)
    tstamp()
    I(f"s_lshl_b32 s{sTMP}, s{sW}, 3")
    I(f"v_mov_b32 v{t}, s{sTMP}")
    I("s_mov_b64 exec, 1")
    I(f"ds_write_b64 v{t}, v[{f0}:{f1}] offset:{LST}")
    if fast:
        I("s_or_b32 s8, s8, s9")
        I(f"v_mov_b32 v{s1}, s8")
        I(f"v_lshrrev_b32 v{t}, 1, v{t}")
        I(f"ds_write_b32 v{t}, v{s1} offset:{LFL}")
    I("s_mov_b64 exec, -1")
    I(f"v_mov_b32 v{t}, 0")
    swap_reduce(vT)
    I(f"ds_write_b64 v{vLW}, v[{vT}:{vT+1}] offset:{LGU}")
    I("s_waitcnt lgkmcnt(0)")
    I("s_barrier")
    tstamp()
    Z = vA
    I(f"ds_read_b128 v[{Z}:{Z+3}], v{t} offset:{LST}")
    I(f"ds_read_b128 v[{Z+4}:{Z+7}], v{t} offset:{LST+16}")
    for w in range(4):
        I(f"ds_read2st64_b32 v[{vT+2*w}:{vT+2*w+1}], v{vLGU} offset0:{2*w} offset1:{2*w+1}")
    if fast: I(f"ds_read_b128 v[{vS+12}:{vS+15}], v{t} offset:{LFL}")
    I("s_waitcnt lgkmcnt(0)" if tstamps else "s_waitcnt lgkmcnt(5)" if fast else "s_waitcnt lgkmcnt(4)")
    m, q = Z + 8, Z + 9
    I(f"v_add_f32 v{m}, v{Z+1}, v{Z+3}")
    I(f"v_add_f32 v{q}, v{Z+5}, v{Z+7}")
    I(f"v_add_f32 v{Z}, v{Z}, v{Z+2}")
    I(f"v_add_f32 v{m}, v{m}, v{q}")
    I(f"v_add_f32 v{Z+4}, v{Z+4}, v{Z+6}")
    I(f"v_mul_f32 v{m}, 0.25, v{m}" if False else f"v_mul_f32 v{m}, {f32(0.25)}, v{m}")
    I(f"v_add_f32 v{Z}, v{Z}, v{Z+4}")
    for k in (1, 3, 5, 7): I(f"v_sub_f32 v{Z+k}, v{Z+k}, v{m}")
    I(f"v_mul_f32 v{Z+1}, v{Z+1}, v{Z+1}")
    I(f"v_mul_f32 v{Z+5}, v{Z+5}, v{Z+5}")
    I(f"v_fmac_f32 v{Z+1}, v{Z+3}, v{Z+3}")
    I(f"v_fmac_f32 v{Z+5}, v{Z+7}, v{Z+7}")
    I(f"v_mul_f32 v{Z}, {f32(1/512)}, v{Z}")
    I(f"v_add_f32 v{Z+1}, v{Z+1}, v{Z+5}")
    I(f"v_fmac_f32 v{Z}, {f32(0.25)}, v{Z+1}")
    I(f"v_cvt_pk_bf16_f32 v{q}, v{m}, v{Z}")
    I("s_waitcnt lgkmcnt(0)")
    I(f"v_add_f32 v{vT}, v{vT}, v{vT+2}")
    I(f"v_lshlrev_b32 v{m}, 16, v{q}")
    I(f"v_and_b32 v{q}, 0xffff0000, v{q}")
    I(f"v_add_f32 v{vT+1}, v{vT+1}, v{vT+3}")
    I(f"v_add_f32 v{q}, {f32(1e-5)}, v{q}")
    I(f"v_add_f32 v{vT+4}, v{vT+4}, v{vT+6}")
    I(f"v_cvt_pk_bf16_f32 v{q}, v{q}, v{q}")
    I(f"v_add_f32 v{vT+5}, v{vT+5}, v{vT+7}")
    I(f"v_and_b32 v{q}, 0xffff0000, v{q}")
    I(f"v_add_f32 v{vT}, v{vT}, v{vT+4}")
    I(f"v_sqrt_f32 v{q}, v{q}")
    I(f"v_add_f32 v{vT+1}, v{vT+1}, v{vT+5}")
    I(f"v_cvt_pk_bf16_f32 v{q}, v{q}, v{q}")
    I(f"v_fma_f32 v{vT}, -v{m}, v{vCS}, v{vT}")
    I(f"v_and_b32 v{q}, 0xffff0000, v{q}")
    I(f"v_fma_f32 v{vT+1}, -v{m}, v{vCS+1}, v{vT+1}")
    I(f"v_rcp_f32 v{q}, v{q}")
    I(f"v_mul_f32 v{vT}, v{vT}, v{q}")
    I(f"v_mul_f32 v{vT+1}, v{vT+1}, v{q}")
    I(f"v_cvt_pk_bf16_f32 v{vT}, v{vT}, v{vT+1}")
    I(f"v_and_b32 v{vT+1}, 0xffff0000, v{vT}")
    I(f"v_lshlrev_b32 v{vT}, 16, v{vT}")
    I(f"v_max_f32 v{vT}, 0, v{vT}")
    I(f"v_mul_f32 v{vT}, v{vT}, v{vT+1}")
    I(f"v_cvt_pk_bf16_f32 v{vP}, v{vT}, v{vT}")
    tstamp()
    gemv_il([vP], "v", vWDF)
    tstamp()
    if fast:
        I(f"v_or3_b32 v{vS+12}, v{vS+12}, v{vS+13}, v{vS+14}")
        I(f"v_or_b32 v{vS+12}, v{vS+12}, v{vS+15}")
        I(f"v_readfirstlane_b32 s8, v{vS+12}")
    swap_reduce(vPB)
    tstamp()
    if align:
        I(f"s_cmp_ge_u32 s{sTC}, 28")
        I("s_cbranch_scc1 L_local")
    if fast:
        I(f"buffer_store_dwordx4 v[{vPB}:{vPB+3}], v{vPUB2}, {srd(sWS)}, s{sP2A} offen")
        I("s_cmp_eq_u32 s8, 0")
        I("s_cbranch_scc1 L_local")
    if halfx: I("s_mov_b32 exec_hi, 0")
    I(f"buffer_store_dwordx4 v[{vPB}:{vPB+3}], v{vPUB if halfx else vPUB2}, {srd(sWS)}, s{sP2} offen {spol}")
    if halfx: I("s_mov_b64 exec, -1")
    if KP > 1: I(f"buffer_store_dwordx4 v[{vPB}:{vPB+3}], v{vPUB2}, {srd(sWS)}, s{sC1} offen {spol}")
    if KP > 2: I(f"buffer_store_dwordx4 v[{vPB}:{vPB+3}], v{vPUB2}, {srd(sWS)}, s{sC2} offen {spol}")
    I("L_local:")
    I(f"s_lshl_b32 s{sTMP}, s{sTC}, 2")
    I(f"s_add_u32 s{sTMP}, s{sTMP}, s{sW}")
    I(f"s_cmp_lg_u32 s{sTMP}, 0")
    I("s_cbranch_scc1 L_noep")
    I(f"s_lshl_b32 s{sTMP}, s{sTB}, 7")
    I("s_mov_b64 exec, 1")
    I(f"buffer_store_dwordx2 v[{vPB+2}:{vPB+3}], v{vHROW}, {srd(sWS)}, s{sTMP} offen {epol}")
    I("s_mov_b64 exec, -1")
    I("L_noep:")
    stamp()
    if not align: I("s_branch L_final")
    I("L_noffn:")
    if fast and not align:
        I("s_mov_b64 exec, 3")
        I(HB)
        I("s_mov_b64 exec, -1")
    if not align:
        I(f"v_lshlrev_b32 v{vH}, 16, v{vPB}")
        I(f"v_and_b32 v{vH+1}, 0xffff0000, v{vPB}")
    I("L_final:")
    I(f"v_mov_b32 v{vR}, 0")
    I(f"v_mov_b32 v{vR+1}, 0")
    I(f"s_mov_b32 exec_hi, 0x00ffffff")
    if KP > 1:
        I(f"s_sleep {dP}")
        sample("L_p2", RING0 + 32, vGAT, [sP2, sC1, sC2][:KP], 2, bP)
    else:
        poll("L_p2", RING0 + 32, vGAT, sP2, 2, soffA=sP2A if fast else None, delay=dP)
    colsum()
    I(f"v_add_f32 v{vT+2}, v{vT+2}, v{vH}")
    I(f"v_add_f32 v{vT+3}, v{vT+3}, v{vH+1}")
    I(f"v_cvt_pk_bf16_f32 v{vT}, v{vT+2}, v{vT+3}")
    if fixref:
        I(f"v_mov_b32 v{vT+5}, 0")
        I(f"global_load_dword v{vT+4}, v{vT+5}, s[76:77] sc1")
        I(f"s_memrealtime s[{sNOW}:{sNOW+1}]")
        I("s_waitcnt vmcnt(0) lgkmcnt(0)")
        I(f"v_readfirstlane_b32 s{sLVL}, v{vT+4}")
        I(f"s_sub_u32 s{sTMP}, s{sT0}, s{sLVL}")
        I(f"s_add_u32 s{sTMP}, s{sTMP}, 1000")
        I(f"s_sub_u32 s{sTMP2}, s{sNOW}, s{sLVL}")
        I(f"s_mov_b32 s{sT0}, s{sLVL}")
        I(f"v_mov_b32 v{vT+6}, s{sTMP}")
        I(f"v_mov_b32 v{vT+7}, s{sTMP2}")
        I("s_mov_b64 exec, 1")
        if fixref == 2:
            I(f"global_atomic_umax v{vT+5}, v{vT+6}, s[76:77] offset:4 sc1")
            I(f"global_atomic_umax v{vT+5}, v{vT+7}, s[76:77] offset:8 sc1")
            I(f"v_sub_u32 v{vT+6}, 2000, v{vT+6}")
            I(f"global_atomic_umax v{vT+5}, v{vT+6}, s[76:77] offset:12 sc1")
        I("s_mov_b64 exec, -1")
    if fixt:
        I("L_fix:")
        I(f"s_memrealtime s[{sNOW}:{sNOW+1}]")
        I("s_waitcnt lgkmcnt(0)")
        I(f"s_sub_u32 s{sLVL}, s{sNOW}, s{sT0}")
        I(f"s_cmp_lt_u32 s{sLVL}, {fixt * 100}")
        I("s_cbranch_scc1 L_fix")
    I("s_mov_b64 exec, 3")
    I(f"buffer_store_dword v{vT}, v{vHST}, {srd(sOUT)}, s{sOUTO} offen {opol}")
    I("s_mov_b64 exec, -1")
    if stamps:
        stamp()
        I(f"s_cmp_lg_u32 s{sW}, 0")
        I("s_cbranch_scc1 L_end")
        I("s_waitcnt lgkmcnt(0)")
        I(f"s_lshl_b32 s{sTMP}, s2, 6")
        I(f"s_add_u32 s{sTMP}, s{sTMP}, {STAMPOFF}")
        I(f"v_mov_b32 v{vT+2}, 0")
        I("s_mov_b64 exec, 1")
        for k in range(stamp_n[0]):
            r = 84 if k == 0 else 60 + 2 * (k - 1)
            I(f"v_mov_b32 v{vT+3}, s{r}")
            I(f"buffer_store_dword v{vT+3}, v{vT+2}, {srd(sWS)}, s{sTMP} offen offset:{4*k}")
        if tstamps:
            for k in range(tn[0]):
                r = 10 + 2 * k if k < 9 else [32, 34, 40, 42][k - 9]
                I(f"v_writelane_b32 v91, s{r}, {k}")
        if pstamps:
            I("s_mov_b64 exec, 0xffff")
            I(f"s_add_u32 s60, s{sTMP}, 0x10000")
            I(f"buffer_store_dword v91, v{vROW}, {srd(sWS)}, s60 offen")
            I("s_mov_b64 exec, 1")
        I("s_getreg_b32 s60, hwreg(HW_REG_XCC_ID)")
        I(f"v_mov_b32 v{vT+3}, s60")
        I(f"buffer_store_dword v{vT+3}, v{vT+2}, {srd(sWS)}, s{sTMP} offen offset:60")
    I("L_end:")
    I("s_endpgm")
    body = a.finish()
    out = HEADER + DESC + "; @launch grid=(256,1,1) block=(256,1,1) lds=10368\n"
    out += '.amdgcn_target "amdgcn-amd-amdhsa--gfx950"\n.text\n'
    out += f".globl {KNAME}\n.p2align 8\n.type {KNAME},@function\n{KNAME}:\n"
    out += body
    out += f'''.section .rodata,"a"
.p2align 6
.amdhsa_kernel {KNAME}
  .amdhsa_next_free_vgpr 512
  .amdhsa_next_free_sgpr 102
  .amdhsa_accum_offset 256
  .amdhsa_group_segment_fixed_size 0
  .amdhsa_kernarg_size 96
  .amdhsa_user_sgpr_count 2
  .amdhsa_user_sgpr_kernarg_segment_ptr 1
  .amdhsa_system_sgpr_workgroup_id_x 1
.end_amdhsa_kernel
'''
    return out

if __name__ == "__main__":
    import json
    cfg = json.loads(sys.argv[2]) if len(sys.argv) > 2 else {}
    open(sys.argv[1], "w").write(gen(**cfg))
```

```python
import sys
sys.path.insert(0, "gen")
from asmlib import Asm
import struct

KNAME = "sequential_preLN__mha_block_cached__glu_gated_reglu__decode_kernel"
HEADER = open("sequential_preLN__mha_block_cached__glu_gated_reglu__decode.s.ref").read().split("; Override launch")[0]

def f32(x):
    return "0x%08x" % struct.unpack("<I", struct.pack("<f", x))[0]

vLANE, vKV, vWQ, vWO, vWD = 1, 2, 3, 4, 5
vGU = 6
vPUB, vGAT, vROW, vLW, vM0, vM1, vXRES, vMAX = 8, 9, 10, 11, 12, 13, 14, 15
vQ, vP, vG, vS, vA, vACC, vT = 16, 20, 24, 28, 44, 60, 68
vLO, vLGU, vLQ, vHST, vHROW, vH = 84, 85, 86, 87, 88, 89
vPB = 92
RING0 = 96
vWDF = 192
sW, sB, sH, sJF = 3, 4, 5, 6
sK, sV, sWQ, sWO, sWD, sWS, sX, sOUT, sDBG = 8, 12, 16, 20, 24, 28, 32, 36, 40
sISS, sWOFF, sTMP, sTMP2 = 48, 49, 50, 51
sODD, sBIT1 = 52, 54
sCNT, sL2E = 58, 59
sSCALE, sFFFF, sP2, sHST = 44, 45, 46, 47
sGOFF = 86
sROT = 94
sGUSTEP = 98
sOUTO = 100
sTAG = 56
sTAGP = 88
sTB, sTC = 90, 91
sHSTA, sROTA, sP2A = 92, 93, 87
sXCC = 95
sRQ = 7
sFL, sC1, sC2 = 76, 77, 82
vFLG = 91
vKV2 = 0
sNOW, sLVL, sT0 = 80, 101, 84
sPC, sPFD = 78, 83
sXT = 40
LQ, LML, LO, LGU, LCS, LST, LFL = 0, 2048, 4096, 6144, 8192, 10240, 10304
P1OFF, P2OFF, HOFF, STAMPOFF = 0x10000, 0x110000, 0x210000, 0x400000
P2AOFF, HAOFF = 0x220000, 0x218000
FLOFF, P1B, P1C, P2B, P2C, HC = 0x8000, 0x500000, 0x600000, 0x700000, 0x800000, 0x900000
SPIN = 200000

DESC = '''; Design (generated by my own script; one workgroup of 4 waves per (batch, head), one per CU):
;   * hand-off granule = 16 bytes {payload, 64-bit tag}; the tag is derived from an epoch word found in
'''

def srd(b): return f"s[{b}:{b+3}]"

def gen(N=5, NV=None, R=24, wpol="nt", kvpol="nt", stamps=False, pstamps=False, sleep=4, wstart=40, wend=250, M=11, kfirst=1, ratio=(5, 6), qextra=3, cu=5, Tx=5, noside=False, vpol=None, lpol="sc1", spol="sc1", K=4, gap=1, TH=0, slow=16, cs_start=300, remap=False, fast=False, NA=32, fpol=None, pretouch=470, rawh=True, dH=20, dP=12, psl=0, align=True, NE=8, E=24, hmap=False, kstamps=False, nokc=False, fB=0, fC=0, KC=1, dS=5, rotq=0, tstamps=False, ND=0, dper=2, fakeq=0, qpol=None, qdelay=0, ctl=True, Ts=137.0, T0=2200, Tside=17.5, dl=350, U=16, cands=2, nl=8, ustart=48, d1=16, two=True, pf=4, pft=True, pfd=3, fixt=0, fixref=False, hu=False, halfx=False, aX=6, aY=11, bS=9, KP=1, bP=5, hcopy=False, opol="", epol="", swp=32, K1=1, hlead=0, stg=3):
    a = Asm(); I = a.I
    wp = (" " + wpol) if wpol else ""
    kp = (" " + kvpol) if kvpol else ""
    fp = wp if fpol is None else ((" " + fpol) if fpol else "")
    qp = wp if qpol is None else ((" " + qpol) if qpol else "")
    NWQ = fakeq or 32
    vp = kp if vpol is None else ((" " + vpol) if vpol else "")
    stamp_n = [0]
    def stamp():
        if stamps:
            k = stamp_n[0]; stamp_n[0] += 1
            r = 84 if k == 0 else 60 + 2 * (k - 1)
            I(f"s_memrealtime s[{r}:{r+1}]")
    def pstamp(k, force=False):
        if (pstamps and not kstamps and not tstamps) or force:
            I(f"s_memrealtime s[96:97]")
            I("s_waitcnt lgkmcnt(0)")
            I(f"v_writelane_b32 v91, s96, {k}")
    free = [("v", RING0 + 4 * k) for k in range(R)]
    extra = [("v", vWDF + 4 * k) for k in range(16)] + [("a", 252 - 4 * k) for k in range(28)]
    slot_of = {}
    busy_a = set()
    tn = [0]
    def tstamp():
        if tstamps:
            k = tn[0]; tn[0] += 1
            r = 10 + 2 * k if k < 9 else [32, 34, 40, 42][k - 9]
            I(f"s_memtime s[{r}:{r+1}]")
    def slot(g): return slot_of[g][1]
    def alloc(g):
        if free: r = free.pop(0)
        else:
            assert g < 100 and extra, f"out of slots at {g}"
            r = extra.pop(0)
        if r[0] == "a": busy_a.add(r[1])
        slot_of[g] = r
    def release(g):
        r = slot_of[g]
        if r[0] == "v" and r[1] < vWDF: free.append(r)
        if r[0] == "a": busy_a.discard(r[1])

    def wave_reduce(x, t, op):
        for r in (8, 4, 2, 1):
            I(f"{op}_dpp v{x}, v{x}, v{x} row_ror:{r} row_mask:0xf bank_mask:0xf")
        I(f"v_mov_b32 v{t}, v{x}")
        I(f"v_permlane16_swap_b32 v{x}, v{t}")
        I(f"{op} v{x}, v{x}, v{t}")
        I(f"v_mov_b32 v{t}, v{x}")
        I(f"v_permlane32_swap_b32 v{x}, v{t}")
        I(f"{op} v{x}, v{x}, v{t}")

    def ln(Dl, X0, X1, F):
        f = [F + i for i in range(8)]
        c = [F + 8 + i for i in range(4)]
        s, t = F + 12, F + 13
        for i in range(4):
            I(f"v_lshlrev_b32 v{f[2*i]}, 16, v{Dl[i]}")
            I(f"v_and_b32 v{f[2*i+1]}, 0xffff0000, v{Dl[i]}")
        for i in range(4):
            I(f"v_add_f32 v{c[i]}, v{f[2*i]}, v{f[2*i+1]}")
        I(f"v_add_f32 v{c[0]}, v{c[0]}, v{c[2]}")
        I(f"v_add_f32 v{c[1]}, v{c[1]}, v{c[3]}")
        I(f"v_add_f32 v{s}, v{c[0]}, v{c[1]}")
        wave_reduce(s, t, "v_add_f32")
        I(f"v_mul_f32 v{s}, {f32(1/512)}, v{s}")
        for i in range(4):
            I(f"v_sub_f32 v{Dl[i]}, v{f[2*i]}, v{s}")
            I(f"v_sub_f32 v{c[i]}, v{f[2*i+1]}, v{s}")
        for i in range(4):
            I(f"v_mul_f32 v{Dl[i]}, v{Dl[i]}, v{Dl[i]}")
        for i in range(4):
            I(f"v_fmac_f32 v{Dl[i]}, v{c[i]}, v{c[i]}")
        I(f"v_add_f32 v{Dl[0]}, v{Dl[0]}, v{Dl[2]}")
        I(f"v_add_f32 v{Dl[1]}, v{Dl[1]}, v{Dl[3]}")
        I(f"v_add_f32 v{Dl[0]}, v{Dl[0]}, v{Dl[1]}")
        wave_reduce(Dl[0], t, "v_add_f32")
        I(f"v_mul_f32 v{Dl[0]}, {f32(1/512)}, v{Dl[0]}")
        I(f"v_cvt_pk_bf16_f32 v{t}, v{s}, v{Dl[0]}")
        I(f"v_lshlrev_b32 v{s}, 16, v{t}")
        I(f"v_and_b32 v{t}, 0xffff0000, v{t}")
        I(f"v_add_f32 v{t}, {f32(1e-5)}, v{t}")
        I(f"v_sub_f32 v{f[0]}, v{f[0]}, v{s}")
        I(f"v_cvt_pk_bf16_f32 v{t}, v{t}, v{t}")
        I(f"v_sub_f32 v{f[1]}, v{f[1]}, v{s}")
        I(f"v_and_b32 v{t}, 0xffff0000, v{t}")
        I(f"v_cvt_pk_bf16_f32 v{f[0]}, v{f[0]}, v{f[1]}")
        I(f"v_sqrt_f32 v{t}, v{t}")
        I(f"v_and_b32 v{f[1]}, 0xffff0000, v{f[0]}")
        I(f"v_lshlrev_b32 v{f[0]}, 16, v{f[0]}")
        I(f"v_cvt_pk_bf16_f32 v{t}, v{t}, v{t}")
        I(f"v_and_b32 v{t}, 0xffff0000, v{t}")
        I(f"v_rcp_f32 v{s}, v{t}")
        I(f"v_mul_f32 v{f[2]}, v{f[0]}, v{s}")
        I(f"v_mul_f32 v{f[3]}, v{f[1]}, v{s}")
        I(f"v_fma_f32 v{f[4]}, -v{f[2]}, v{t}, v{f[0]}")
        I(f"v_fma_f32 v{f[5]}, -v{f[3]}, v{t}, v{f[1]}")
        I(f"v_fmac_f32 v{f[2]}, v{f[4]}, v{s}")
        I(f"v_fmac_f32 v{f[3]}, v{f[5]}, v{s}")
        I(f"v_cvt_pk_bf16_f32 v{X0}, v{f[2]}, v{f[2]}")
        I(f"v_cvt_pk_bf16_f32 v{X1}, v{f[3]}, v{f[3]}")

    def afrag(dst, src, u):
        I(f"v_and_b32_dpp v{dst}, v{src}, v{vM0} quad_perm:[{u},{u},{u},{u}] row_mask:0xf bank_mask:0xf")
        I(f"v_and_b32_dpp v{dst+1}, v{src}, v{vM1} quad_perm:[{u},{u},{u},{u}] row_mask:0xf bank_mask:0xf")

    def mfma2(A, bfile, b, abid, first, acc=vACC):
        lo, hi = acc, acc + 4
        c0 = "0" if first else f"v[{lo}:{lo+3}]"
        c1 = "0" if first else f"v[{hi}:{hi+3}]"
        I(f"v_mfma_f32_4x4x4_16b_bf16 v[{lo}:{lo+3}], v[{A}:{A+1}], {bfile}[{b}:{b+1}], {c0} cbsz:2 abid:{abid}")
        I(f"v_mfma_f32_4x4x4_16b_bf16 v[{hi}:{hi+3}], v[{A}:{A+1}], {bfile}[{b+2}:{b+3}], {c1} cbsz:2 abid:{abid}")

    def swap_reduce(dst, acc=vACC):
        lo, hi = acc, acc + 4
        for i in range(4): I(f"v_permlane32_swap_b32 v{lo+i}, v{hi+i}")
        for i in range(4): I(f"v_add_f32 v{lo+i}, v{lo+i}, v{hi+i}")
        I(f"v_permlane16_swap_b32 v{lo}, v{lo+2}")
        I(f"v_permlane16_swap_b32 v{lo+1}, v{lo+3}")
        I(f"v_add_f32 v{dst}, v{lo}, v{lo+2}")
        I(f"v_add_f32 v{dst+1}, v{lo+1}, v{lo+3}")

    def afrag1(dst, src, u, half):
        I(f"v_and_b32_dpp v{dst+half}, v{src}, v{vM0 if half == 0 else vM1} quad_perm:[{u},{u},{u},{u}] row_mask:0xf bank_mask:0xf")

    def gemv_il(Xs, bfile, b0, fill=None):
        nr = len(Xs)
        combos = [(u, r) for u in range(4) for r in range(nr)]
        fill = fill if fill is not None else []
        dbl = len(fill) > 18
        def put():
            x = fill.pop(0)
            if callable(x): x()
            else: I(x)
        afrag(vA, Xs[combos[0][1]], combos[0][0])
        first = True
        for ci, (u, r) in enumerate(combos):
            A = vA + 2 * (ci & 1)
            for aa in range(4):
                f = (8 * aa + 2 * u + r) if nr == 2 else (4 * aa + u)
                mfma2(A, bfile, b0 + 4 * f, aa, first); first = False
                if aa < 2 and ci + 1 < len(combos):
                    afrag1(vA + 2 * ((ci + 1) & 1), Xs[combos[ci + 1][1]], combos[ci + 1][0], aa)
                    if fill and aa == 0 and dbl: put()
                elif fill:
                    put()
                    if fill and aa == 2 and dbl: put()
        while fill: put()

    I(f"s_cmp_ge_u32 s2, 256")
    I("s_cbranch_scc1 L_end")
    stamp()
    if ctl and not stamps: I(f"s_memrealtime s[{sT0}:{sT0+1}]")
    a.C("kernarg pointers; lane/wave decomposition")
    I("s_load_dwordx16 s[60:75], s[0:1], 0")
    I("s_load_dwordx8 s[76:83], s[0:1], 64")
    I(f"v_lshrrev_b32 v{vT}, 6, v0")
    I(f"v_and_b32 v{vLANE}, 63, v0")
    I(f"v_readfirstlane_b32 s{sW}, v{vT}")
    I(f"s_lshr_b32 s{sB}, s2, 5")
    if hmap:
        I(f"s_and_b32 s{sH}, s2, 7")
        I(f"s_lshl_b32 s{sH}, s{sH}, 2")
        I(f"s_bfe_u32 s{sTMP}, s2, 0x20003")
        I(f"s_or_b32 s{sH}, s{sH}, s{sTMP}")
        I(f"s_andn2_b32 s2, s2, 31")
        I(f"s_or_b32 s2, s2, s{sH}")
    else:
        I(f"s_and_b32 s{sH}, s2, 31")
    if remap:
        I(f"s_and_b32 s{sTB}, s2, 7")
        I(f"s_lshr_b32 s{sTC}, s2, 3")
    else:
        I(f"s_mov_b32 s{sTB}, s{sB}")
        I(f"s_mov_b32 s{sTC}, s{sH}")
    I(f"s_min_u32 s{sJF}, s{sTC}, 27")
    J16, SS = vT + 1, vT + 2
    I(f"v_and_b32 v{J16}, 15, v{vLANE}")
    I(f"v_lshrrev_b32 v{SS}, 4, v{vLANE}")
    I(f"v_lshlrev_b32 v{vROW}, 2, v{vLANE}")
    I(f"v_lshlrev_b32 v{vKV}, 4, v{vLANE}")
    I(f"s_lshl_b32 s{sTMP}, s{sW}, 12")
    I(f"v_add_u32 v{vKV}, s{sTMP}, v{vKV}")
    if swp: I(f"v_xor_b32 v{vKV2}, 0x2000, v{vKV}")
    for i in range(4):
        I(f"s_add_u32 s{sROT+i}, s{sW}, {i}")
        I(f"s_and_b32 s{sROT+i}, s{sROT+i}, 3")
        I(f"s_lshl_b32 s{sROT+i}, s{sROT+i}, 8")
    I(f"v_lshlrev_b32 v{vT+3}, 4, v{J16}")
    I(f"s_lshl_b32 s{sTMP}, s{sW}, 20" if not fakeq else f"s_lshl_b32 s{sTMP}, s{sB}, 19")
    I(f"s_lshl_b32 s{sTMP2}, s{sH}, 8")
    I(f"s_add_u32 s{sTMP}, s{sTMP}, s{sTMP2}")
    I(f"v_lshlrev_b32 v{vWQ}, {17 if fakeq else 18}, v{SS}")
    I(f"v_add3_u32 v{vWQ}, v{vWQ}, v{vT+3}, s{sTMP}")
    if rotq:
        I(f"s_mul_i32 s{sRQ}, s{sB}, {rotq // 2}")
        I(f"v_add_u32 v{vT+7}, s{sRQ}, v{vLANE}")
        I(f"v_and_b32 v{vT+7}, 15, v{vT+7}")
        I(f"v_and_or_b32 v{vT+7}, v{vLANE}, 48, v{vT+7}")
        I(f"v_lshlrev_b32 v{vT+7}, 2, v{vT+7}")
        I(f"s_lshl_b32 s{sRQ}, s{sRQ}, 14")
    I("s_waitcnt lgkmcnt(0)")
    pstamp(0)
    def mk(b, plo, offlo, size, offhi=None):
        if offlo is None:
            I(f"s_mov_b32 s{b}, s{plo}"); I(f"s_mov_b32 s{b+1}, s{plo+1}")
        else:
            I(f"s_add_u32 s{b}, s{plo}, {offlo}"); I(f"s_addc_u32 s{b+1}, s{plo+1}, 0")
        I(f"s_mov_b32 s{b+2}, {size}"); I(f"s_mov_b32 s{b+3}, 0x20000")
    I(f"s_lshl_b32 s{sTMP}, s{sB}, 10")
    mk(sX, 60, f"s{sTMP}", 1024)
    I(f"s_lshl_b32 s{sTMP}, s2, 20")
    mk(sK, 62, f"s{sTMP}", 1 << 20)
    xl = [I(f"buffer_load_dword v{vT+8+i}, v{vT+7 if rotq else vROW}, {srd(sX)}, s{sROT+i} offen") for i in range(4)]
    a.C("each head starts its sweep at a different 16 KiB step (spreads workgroups over DRAM channels/banks)")
    if stg == 2:
        I(f"s_and_b32 s{sISS}, s{sH}, 15"); I(f"s_lshl_b32 s{sISS}, s{sISS}, 14")
    elif stg == 3:
        I(f"s_sub_u32 s{sISS}, 64, s{sH}"); I(f"s_and_b32 s{sISS}, s{sISS}, 63"); I(f"s_lshl_b32 s{sISS}, s{sISS}, 14")
    elif stg == 4:
        I(f"s_and_b32 s{sISS}, s2, 63"); I(f"s_lshl_b32 s{sISS}, s{sISS}, 14")
    elif stg == 5:
        I(f"s_mul_i32 s{sISS}, s2, 5"); I(f"s_bfe_u32 s{sISS}, s{sISS}, 0x60002"); I(f"s_lshl_b32 s{sISS}, s{sISS}, 14")
    else:
        I(f"s_lshl_b32 s{sISS}, s{sH}, 14" if stg else f"s_mov_b32 s{sISS}, 0")
    issued = [0]
    kvid = {}
    def issue_kv():
        g = issued[0]; issued[0] += 1
        alloc(g)
        s = sK if g < 256 else sV
        if g == 256 and not stg: I(f"s_mov_b32 s{sISS}, 0")
        kvid[g] = I(f"buffer_load_dwordx4 {slot_of[g][0]}[{slot(g)}:{slot(g)+3}], v{vKV2 if (swp and ((g & 255) // swp) & 1) else vKV}, {srd(s)}, s{sISS} offen offset:{(g&3)*1024}{kp if g < 256 else vp}")
        if (g & 3) == 3 and (stg or g != 255) and g != 511:
            I(f"s_add_u32 s{sISS}, s{sISS}, 16384")
            if stg: I(f"s_and_b32 s{sISS}, s{sISS}, 0xfffff")
    wqid = []
    def issue_wq():
        f = len(wqid)
        if rotq:
            I(f"s_add_u32 s{sWOFF}, s{sRQ}, {f*8192}")
            I(f"s_and_b32 s{sWOFF}, s{sWOFF}, 0x3ffff")
        else: I(f"s_mov_b32 s{sWOFF}, {f*8192}")
        wqid.append(I(f"buffer_load_dwordx4 a[{4*f}:{4*f+3}], v{vWQ}, {srd(sWQ)}, s{sWOFF} offen{qp}"))
    mk(sWQ, 66, None, 4 << 20)
    seq = ['K'] * kfirst
    acc = 0
    nwq = 0
    while nwq < NWQ:
        seq.append('W'); nwq += 1
        acc += ratio[0]
        while acc >= ratio[1] and nwq < NWQ:
            seq.append('K'); acc -= ratio[1]
    seqid = []
    def issue_seq(n):
        if seq[n] == 'K': issue_kv()
        else: issue_wq()
        seqid.append(a.vm - 1)
    seqpos = 0
    while seqpos < min(M, len(seq)):
        issue_seq(seqpos); seqpos += 1
    I(f"s_lshl_b32 s{sTMP2}, s{sTB}, 7")
    I(f"s_load_dwordx2 s[{sTAG}:{sTAG+1}], s[82:83], s{sTMP2}")
    I(f"s_lshl_b32 s{sTMP2}, s{sB}, 7")
    I(f"s_load_dwordx2 s[{sTAGP}:{sTAGP+1}], s[82:83], s{sTMP2}")
    mk(sV, 64, f"s{sTMP}", 1 << 20)
    I(f"s_lshl_b32 s{sTMP}, s{sH}, 17")
    mk(sWO, 68, f"s{sTMP}", 1 << 17)
    I(f"s_lshl_b32 s{sTMP}, s{sJF}, 16")
    mk(sWD, 76, f"s{sTMP}", 1 << 16)
    I(f"s_cmp_ge_u32 s{sTC}, 28")
    I(f"s_cselect_b32 s{sWD+2}, 0, s{sWD+2}")
    I(f"s_lshl_b32 s{sTMP}, s{sTB}, 10")
    mk(sXT, 60, f"s{sTMP}", 1024)
    mk(sOUT, 78, None, 8192)
    mk(sWS, 82, None, 0xa00000)
    I(f"s_lshl_b32 s{sTMP}, s{sW}, 8")
    I(f"v_lshlrev_b32 v{vWO}, 15, v{SS}")
    I(f"v_add3_u32 v{vWO}, v{vWO}, v{vT+3}, s{sTMP}")
    I(f"v_lshlrev_b32 v{vWD}, 14, v{SS}")
    I(f"v_add3_u32 v{vWD}, v{vWD}, v{vT+3}, s{sTMP}")
    I(f"v_cmp_gt_u32 vcc, 8, v{J16}")
    I(f"v_mov_b32 v{vT+4}, s74")
    I(f"v_mov_b32 v{vT+5}, s72")
    I(f"v_cndmask_b32 v{vGU}, v{vT+4}, v{vT+5}, vcc")
    I(f"v_mov_b32 v{vT+4}, s75")
    I(f"v_mov_b32 v{vT+5}, s73")
    I(f"v_cndmask_b32 v{vGU+1}, v{vT+4}, v{vT+5}, vcc")
    I(f"s_mul_i32 s{sTMP}, s{sW}, {128*3584}")
    I(f"s_lshl_b32 s{sTMP2}, s{sJF}, 7")
    I(f"s_add_u32 s{sTMP}, s{sTMP}, s{sTMP2}")
    I(f"v_mul_u32_u24 v{vT+4}, {32*3584}, v{SS}")
    I(f"v_and_b32 v{vT+5}, 0x70, v{vT+3}")
    I(f"v_add3_u32 v{vT+4}, v{vT+4}, v{vT+5}, s{sTMP}")
    I(f"s_cmp_ge_u32 s{sTC}, 28")
    I(f"s_cselect_b32 s{sTMP}, 0, -1")
    I(f"s_cselect_b32 s{sGUSTEP}, 0, 7168")
    I(f"v_and_b32 v{vT+4}, s{sTMP}, v{vT+4}")
    I(f"v_mov_b32 v{vT+5}, 0")
    I(f"v_lshl_add_u64 v[{vGU}:{vGU+1}], v[{vT+4}:{vT+5}], 0, v[{vGU}:{vGU+1}]")
    I(f"s_mov_b32 s{sGUSTEP+1}, 0")
    I(f"s_lshl_b32 s{sTMP}, s{sW}, 9")
    I(f"v_lshlrev_b32 v{vLW}, 5, v{J16}")
    I(f"v_lshlrev_b32 v{vT+4}, 3, v{SS}")
    I(f"v_add3_u32 v{vLW}, v{vLW}, v{vT+4}, s{sTMP}")
    I(f"s_lshl_b32 s{sTMP}, s2, 12")
    I(f"v_lshl_add_u32 v{vPUB}, v{vLW}, 1, s{sTMP}")
    I(f"s_lshl_b32 s{sTMP}, s{sTB}, 17")
    I(f"s_lshl_b32 s{sTMP2}, s{sTC}, 7")
    I(f"s_add_u32 s{sTMP}, s{sTMP}, s{sTMP2}")
    I(f"s_lshl_b32 s{sTMP2}, s{sW}, 5")
    I(f"s_add_u32 s{sTMP}, s{sTMP}, s{sTMP2}")
    I(f"v_lshrrev_b32 v{vGAT}, 1, v{vLANE}")
    I(f"v_lshlrev_b32 v{vGAT}, 12, v{vGAT}")
    I(f"v_and_b32 v{vT+4}, 16, v{vT+3}")
    I(f"v_add3_u32 v{vGAT}, v{vGAT}, v{vT+4}, s{sTMP}")
    if halfx:
        I(f"s_lshl_b32 s{sTMP}, s{sTB}, 17")
        I(f"s_lshl_b32 s{sTMP2}, s{sTC}, 6")
        I(f"s_add_u32 s{sTMP}, s{sTMP}, s{sTMP2}")
        I(f"s_lshr_b32 s{sTMP2}, s{sW}, 1")
        I(f"s_lshl_b32 s{sTMP2}, s{sTMP2}, 5")
        I(f"s_add_u32 s{sTMP}, s{sTMP}, s{sTMP2}")
        I(f"v_lshrrev_b32 v{vGAT}, 1, v{vLANE}")
        I(f"v_lshlrev_b32 v{vGAT}, 12, v{vGAT}")
        I(f"v_add3_u32 v{vGAT}, v{vGAT}, v{vT+4}, s{sTMP}")
        I(f"s_lshl_b32 s{sTMP}, s2, 12")
        I(f"v_lshlrev_b32 v{vT+4}, 3, v{SS}")
        I(f"v_add3_u32 v{vPUB}, v{vLW}, v{vT+4}, s{sTMP}")
    I(f"s_mov_b32 s{sGOFF}, {P1OFF}")
    I(f"v_lshlrev_b32 v{vHROW}, 4, v{vLANE}")
    I(f"v_lshlrev_b32 v{vLO}, 3, v{vLANE}")
    I(f"v_add_u32 v{vLO}, {LO}, v{vLO}")
    I(f"v_add_u32 v{vLGU}, {LGU}, v{vROW}")
    I(f"v_lshlrev_b32 v{vLQ}, 5, v{J16}")
    I(f"v_and_b32 v{vHST}, 4, v{vROW}")
    I(f"v_and_b32 v{vT+4}, 3, v{vLANE}")
    I(f"v_mov_b32 v{vT+5}, 0xffff")
    I(f"v_mov_b32 v{vT+6}, 0xffff0000")
    I(f"v_mov_b32 v{vM0}, 0")
    I(f"v_mov_b32 v{vM1}, 0")
    for val, dst, src in ((0, vM0, vT+5), (1, vM0, vT+6), (2, vM1, vT+5), (3, vM1, vT+6)):
        I(f"v_cmp_eq_u32 vcc, {val}, v{vT+4}")
        I(f"v_cndmask_b32 v{dst}, v{dst}, v{src}, vcc")
    I(f"s_mov_b32 s{sODD}, 0xaaaaaaaa"); I(f"s_mov_b32 s{sODD+1}, 0xaaaaaaaa")
    I(f"s_mov_b32 s{sBIT1}, 0xcccccccc"); I(f"s_mov_b32 s{sBIT1+1}, 0xcccccccc")
    I(f"s_mov_b32 s{sL2E}, {f32(1.4426950408889634)}")
    I(f"s_mov_b32 s{sSCALE}, {f32(128 ** -0.5)}")
    I(f"s_mov_b32 s{sFFFF}, 0xffff")
    I(f"s_mov_b32 s{sP2}, {P2OFF}")
    I(f"s_lshl_b32 s{sTMP}, s{sTB}, 10")
    I(f"s_lshl_b32 s{sTMP2}, s{sTC}, 5")
    I(f"s_add_u32 s{sOUTO}, s{sTMP}, s{sTMP2}")
    I(f"s_lshl_b32 s{sTMP2}, s{sW}, 3")
    I(f"s_add_u32 s{sOUTO}, s{sOUTO}, s{sTMP2}")
    I(f"s_lshl_b32 s{sHST}, s{sOUTO}, 2")
    I(f"s_add_u32 s{sHST}, s{sHST}, {HOFF}")
    I(f"s_lshl_b32 s{sTMP}, s{sTB}, 12")
    I(f"s_lshl_b32 s{sROT}, s{sW}, 10")
    I(f"s_add_u32 s{sROT}, s{sROT}, s{sTMP}")
    I(f"s_add_u32 s{sROT}, s{sROT}, {HOFF}")
    I(f"s_add_u32 s{sHSTA}, s{sHST}, {HAOFF - HOFF}")
    I(f"s_add_u32 s{sROTA}, s{sROT}, {HAOFF - HOFF}")
    I(f"s_mov_b32 s{sP2A}, {P2AOFF}")
    I(f"v_mov_b32 v{vMAX}, 0xff800000")
    I("s_waitcnt lgkmcnt(0)")
    for tg in (sTAG, sTAGP):
        I(f"s_mul_i32 s{tg}, s{tg}, 1664525")
        I(f"s_add_u32 s{tg}, s{tg}, 1013904223")
        I(f"s_mul_i32 s{tg+1}, s{tg+1}, 22695477")
        I(f"s_add_u32 s{tg+1}, s{tg+1}, 1")
    I(f"v_mov_b32 v{vPB+2}, s{sTAGP}")
    I(f"v_mov_b32 v{vPB+3}, s{sTAGP+1}")
    if fixref:
        mk(sDBG if False else 40, 80, None, 256) if False else None
        I(f"s_or_b32 s{sTMP}, s2, s{sW}")
        I(f"s_cmp_lg_u32 s{sTMP}, 0")
        I("s_cbranch_scc1 L_noref")
        I(f"v_mov_b32 v{vT+4}, s{sT0}")
        I(f"v_mov_b32 v{vT+5}, 0")
        I("s_mov_b64 exec, 1")
        a.X(f"global_store_dword v{vT+5}, v{vT+4}, s[80:81] sc1")
        I("s_mov_b64 exec, -1")
        I("L_noref:")
        I(f"s_mov_b64 s[76:77], s[80:81]")
    pstamp(2)
    a.C("LayerNorm(x[b]) with the reference's bf16 roundings, then q = xn @ wq[:, head]")
    a.wait_vm(xl[3])
    pstamp(3)
    X0, X1 = vT, vT + 1
    ln([vT + 8 + i for i in range(4)], vP, vP + 1, vS)
    pstamp(4)
    for u in range(4):
        for r in range(2):
            afrag(vA + 4 * u + 2 * r, vP + r, u)
    base = xl[3] + 1
    fdone = 0
    def do_wq_upto(idx):
        nonlocal fdone
        while fdone < len(wqid) and wqid[fdone] <= idx:
            f = fdone; fdone += 1
            aa, u, r = f >> 3, (f >> 1) & 3, f & 1
            mfma2(vA + 4 * u + 2 * r, "a", 4 * f, aa, f == 0)
    while seqpos < len(seq):
        idx = seqid[seqpos - M]
        a.wait_vm(idx)
        issue_seq(seqpos); seqpos += 1
        do_wq_upto(idx)
    kleft = qextra
    while fdone < NWQ:
        idx = wqid[fdone]
        a.wait_vm(idx)
        while issued[0] - sum(1 for g in kvid if kvid[g] <= idx) < N: issue_kv()
        do_wq_upto(idx)
    for _ in range(qdelay):
        a.wait_vm(kvid[issued[0] - N]); issue_kv()
    pstamp(8)
    swap_reduce(vT)
    I(f"ds_write_b64 v{vLW}, v[{vT}:{vT+1}] offset:{LQ}")
    if qextra > 0: issue_kv()
    I("s_waitcnt lgkmcnt(0)")
    I("s_barrier")
    if qextra > 1: issue_kv()
    pstamp(9)
    for w in range(4):
        I(f"ds_read_b128 v[{vS+8*(w&1)}:{vS+8*(w&1)+3}], v{vLQ} offset:{LQ+w*512}" if w < 2 else f"ds_read_b128 v[{vA+8*(w&1)}:{vA+8*(w&1)+3}], v{vLQ} offset:{LQ+w*512}")
        I(f"ds_read_b128 v[{vS+8*(w&1)+4}:{vS+8*(w&1)+7}], v{vLQ} offset:{LQ+w*512+16}" if w < 2 else f"ds_read_b128 v[{vA+8*(w&1)+4}:{vA+8*(w&1)+7}], v{vLQ} offset:{LQ+w*512+16}")
    I("s_waitcnt lgkmcnt(0)")
    for i in range(8): I(f"v_add_f32 v{vS+i}, v{vS+i}, v{vS+8+i}")
    for i in range(8): I(f"v_add_f32 v{vA+i}, v{vA+i}, v{vA+8+i}")
    for i in range(8): I(f"v_add_f32 v{vS+i}, v{vS+i}, v{vA+i}")
    if qextra > 2: issue_kv()
    for i in range(4): I(f"v_cvt_pk_bf16_f32 v{vQ+i}, v{vS+2*i}, v{vS+2*i+1}")
    stamp()

    side = []
    side_last = [0]
    def mkside():
        def clr():
            I(f"s_and_b32 s{sTMP}, s{sOUTO}, 1023")
            I(f"buffer_load_dword v{vXRES}, v{vHST}, {srd(sXT)}, s{sTMP} offen")
        side.append(clr)
        def wo(f):
            def g():
                assert 128 + 4 * f not in busy_a
                I(f"s_mov_b32 s{sWOFF}, {(f>>2)*4096}")
                I(f"buffer_load_dwordx4 a[{128+4*f}:{128+4*f+3}], v{vWO}, {srd(sWO)}, s{sWOFF} offen offset:{(f&3)*1024}{wp}")
            return g
        def gu(f):
            def g():
                side_last[0] = I(f"global_load_dwordx4 a[{4*f}:{4*f+3}], v[{vGU}:{vGU+1}], off offset:{(f&1)*3584}{fp}")
                if f & 1: I(f"v_lshl_add_u64 v[{vGU}:{vGU+1}], v[{vGU}:{vGU+1}], 0, s[{sGUSTEP}:{sGUSTEP+1}]")
            return g
        def wd(f):
            def g():
                I(f"s_mov_b32 s{sWOFF}, {(f>>2)*4096}")
                I(f"buffer_load_dwordx4 v[{vWDF+4*f}:{vWDF+4*f+3}], v{vWD}, {srd(sWD)}, s{sWOFF} offen offset:{(f&3)*1024}{fp}")
            return g
        for f in range(32): side.append(wo(f))
        for f in range(32): side.append(gu(f))
        for f in range(16): side.append(wd(f))
    mkside()
    if noside: side = side[:1]
    deferred = side[len(side) - ND:] if ND else []
    side = side[:len(side) - ND]
    late_cs = ND > 16
    side_steps = {}
    for k in range(len(side)):
        pos = wstart + (wend - wstart) * k // len(side)
        side_steps.setdefault(pos, []).append(side[k])

    work = []
    def push_group(g4):
        B, aa = g4 >> 2, g4 & 3
        def D(e):
            def f():
                src = []
                for c in range(4):
                    g = 4 * g4 + c
                    if slot_of[g][0] == "a":
                        I(f"v_accvgpr_read_b32 v{vA+c}, a{slot(g)+e}"); src.append(vA + c)
                    else: src.append(slot(g) + e)
                for c in range(4):
                    I(f"v_dot2_f32_bf16 v{vP+c}, v{src[c]}, v{vQ+e}, " + ("0" if e == 0 else f"v{vP+c}"))
                if e == 3:
                    for c in range(4): release(4 * g4 + c)
            return f
        def Rd():
            I(f"v_add_f32_dpp v{vP}, v{vP}, v{vP} row_ror:8 row_mask:0xf bank_mask:0x3")
            I(f"v_add_f32_dpp v{vP+1}, v{vP+1}, v{vP+1} row_ror:8 row_mask:0xf bank_mask:0x3")
            I(f"v_add_f32_dpp v{vP}, v{vP+2}, v{vP+2} row_ror:8 row_mask:0xf bank_mask:0xc")
            I(f"v_add_f32_dpp v{vP+1}, v{vP+3}, v{vP+3} row_ror:8 row_mask:0xf bank_mask:0xc")
            I(f"v_add_f32_dpp v{vG+aa}, v{vP}, v{vP} row_half_mirror row_mask:0xf bank_mask:0x5")
            I(f"v_add_f32_dpp v{vG+aa}, v{vP+1}, v{vP+1} row_half_mirror row_mask:0xf bank_mask:0xa")
        def F1():
            for q in range(4):
                I(f"v_add_f32_dpp v{vG+q}, v{vG+q}, v{vG+q} quad_perm:[1,0,3,2] row_mask:0xf bank_mask:0xf")
            I(f"v_cndmask_b32 v{vG}, v{vG}, v{vG+1}, s[{sODD}:{sODD+1}]")
            I(f"v_cndmask_b32 v{vG+2}, v{vG+2}, v{vG+3}, s[{sODD}:{sODD+1}]")
            I(f"v_add_f32_dpp v{vG}, v{vG}, v{vG} quad_perm:[2,3,0,1] row_mask:0xf bank_mask:0xf")
            I(f"v_add_f32_dpp v{vG+2}, v{vG+2}, v{vG+2} quad_perm:[2,3,0,1] row_mask:0xf bank_mask:0xf")
            I(f"v_cndmask_b32 v{vS+B}, v{vG}, v{vG+2}, s[{sBIT1}:{sBIT1+1}]")
        def F2():
            I(f"v_cvt_pk_bf16_f32 v{vS+B}, v{vS+B}, v{vS+B}")
            I(f"v_and_b32 v{vS+B}, 0xffff0000, v{vS+B}")
            I(f"v_mul_f32 v{vS+B}, s{sSCALE}, v{vS+B}")
            I(f"v_cvt_pk_bf16_f32 v{vS+B}, v{vS+B}, v{vS+B}")
            I(f"v_and_b32 v{vS+B}, 0xffff0000, v{vS+B}")
            I(f"v_max_f32 v{vMAX}, v{vMAX}, v{vS+B}")
        work.extend([D(0), D(1), D(2), D(3), Rd])
        if aa == 3: work.extend([F1, F2])
    if pf or pft:
        I(f"s_getpc_b64 s[{sPC}:{sPC+1}]")
        I("L_pc:")
        I(f"s_lshl_b32 s{sTMP}, s{sW}, 7")
        I(f"s_add_u32 s{sPC}, s{sPC}, s{sTMP}")
        I(f"s_addc_u32 s{sPC+1}, s{sPC+1}, 0")
    def codepf(i):
        if i % 16 == 0: I(f"L_blk{i // 16}:")
        if pf and i % 16 == 3 and i // 16 + pfd < 32:
            I(f"s_mov_b32 s{sPFD-1}, L_blk{i // 16 + pfd}-L_pc")
            for k in range(pf if i // 16 + pfd < 17 else (pf + 1) // 2 + 1):
                I(f"s_load_dword s{sPFD}, s[{sPC}:{sPC+1}], s{sPFD-1} offset:{512 * k}")
        if pft and i == 451:
            I(f"s_mov_b32 s{sPFD-1}, L_tail-L_pc")
            for k in range(6):
                I(f"s_load_dword s{sPFD}, s[{sPC}:{sPC+1}], s{sPFD-1} offset:{512 * k}")
    a.C("K phase: 16 blocks of 64 keys per wave; weight slices for the tail are loaded in between")
    I1 = issued[0]
    boost = fB or fC or ctl
    I(f"s_mov_b32 s{sLVL}, 0")
    def nominal(i):
        ns = sum(len(v) for k, v in side_steps.items() if k <= i)
        return T0 + Ts * (i + 1) + Tside * ns
    def control(i):
        if not ctl or i < ustart: return
        if i % U == 0: I(f"s_memrealtime s[{sNOW}:{sNOW+1}]")
        if i % U == 2:
            a.C("window level = how far this wave is behind the expected stream position")
            I("s_waitcnt lgkmcnt(0)")
            I(f"s_sub_u32 s{sLVL}, s{sNOW}, s{sT0}")
            I(f"s_sub_i32 s{sLVL}, s{sLVL}, {int(nominal(i - 3) / 10)}")
            I(f"s_mul_i32 s{sLVL}, s{sLVL}, {int(65536 * 10 / dl)}")
            I(f"s_ashr_i32 s{sLVL}, s{sLVL}, 16")
    if fB:
        I(f"s_getreg_b32 s{sTMP}, hwreg(HW_REG_XCC_ID, 0, 1)")
        I(f"s_cmp_eq_u32 s{sTMP}, 0")
        I("s_cselect_b64 vcc, -1, 0")
    accs = [0.0, 0.0]
    def paced1(i, n):
        tgt = min(i + 2 + n, 512)
        if issued[0] >= tgt: return
        if issued[0] == tgt - 1 and i + 1 in kvid:
            accs[1] += fC; accs[0] += fB
            if ctl and i > ustart and i % cands == 0:
                j = (i // cands) % nl
                th = int(format(j, f"0{nl.bit_length()-1}b")[::-1], 2) + 1
                I(f"s_cmp_ge_i32 s{sLVL}, {th}")
                I(f"s_cbranch_scc1 L_b{i}")
                I(f"s_waitcnt vmcnt({a.vm - 1 - kvid[i+1]})")
                I(f"L_b{i}:")
            elif accs[1] >= 1: accs[1] -= 1
            elif accs[0] >= 1:
                accs[0] -= 1
                I(f"s_cbranch_vccnz L_b{i}")
                I(f"s_waitcnt vmcnt({a.vm - 1 - kvid[i+1]})")
                I(f"L_b{i}:")
            else: a.wait_vm(kvid[i + 1])
        while issued[0] < tgt: issue_kv()
    def paced2(i, n):
        tgt = min(i + 3 + n, 512)
        if issued[0] >= tgt: return
        while issued[0] < tgt - 1:
            a.wait_vm(kvid[issued[0] - n]); issue_kv()
        if i <= ustart:
            a.wait_vm(kvid[i + 2])
        else:
            k = i & 15
            ta = 1 if k == 0 else 2 if k == 8 else 3 if k % 4 == 0 else 4 if k % 2 == 0 else 5
            tb = 6 if k % 4 == 0 else 7 if k % 2 == 0 else 8
            if kvid[i + 1] >= a.vm_done:
                I(f"s_cmp_ge_i32 s{sLVL}, {tb}")
                I(f"s_cbranch_scc1 L_b{i}")
                I(f"s_waitcnt vmcnt({a.vm - 1 - kvid[i+1]})")
            I(f"s_cmp_ge_i32 s{sLVL}, {ta}")
            I(f"s_cbranch_scc1 L_b{i}")
            I(f"s_waitcnt vmcnt({a.vm - 1 - kvid[i+2]})")
            I(f"L_b{i}:")
        issue_kv()
    paced = paced2 if two else paced1
    for i in range(256):
        a.wait_vm(kvid[i])
        control(i)
        codepf(i)
        if boost and i + 1 + N >= I1 + i // cu: paced(i, N)
        tgt = max(i + 1 + N, I1 + i // cu)
        while issued[0] < tgt: issue_kv()
        for fn in side_steps.get(i, []): fn()
        if kstamps and i % 32 == 31: pstamp(i // 32, True)
        if (i & 3) == 3:
            if nokc and i > 64:
                for c in range(4): release(i - 3 + c)
            else: push_group(i >> 2)
        n = 1 if len(work) <= 4 - (i & 3) + 0 else 2
        for _ in range(min(n, len(work))): work.pop(0)()
    nV = NV or N
    xleft = [Tx]
    def xissue():
        if xleft[0] > 0:
            xleft[0] -= 1; issue_kv()
    while work: work.pop(0)()
    stamp()
    a.C("softmax: wave max/sum, exchange (max, sum) through LDS, p = bf16(exp(s - max) / sum)")
    xissue()
    wave_reduce(vMAX, vT, "v_max_f32")
    I(f"v_mul_f32 v{vT}, s{sL2E}, v{vMAX}")
    for B in range(16): I(f"v_fma_f32 v{vS+B}, v{vS+B}, s{sL2E}, -v{vT}")
    for B in range(16): I(f"v_exp_f32 v{vS+B}, v{vS+B}")
    xissue()
    for k in range(8): I(f"v_add_f32 v{vA+k}, v{vS+2*k}, v{vS+2*k+1}")
    for k in range(4): I(f"v_add_f32 v{vA+k}, v{vA+k}, v{vA+4+k}")
    for k in range(2): I(f"v_add_f32 v{vA+k}, v{vA+k}, v{vA+2+k}")
    I(f"v_add_f32 v{vT+3}, v{vA}, v{vA+1}")
    wave_reduce(vT + 3, vT + 1, "v_add_f32")
    I(f"v_mov_b32 v{vT+2}, v{vT}")
    I(f"s_lshl_b32 s{sTMP}, s{sW}, 3")
    I(f"v_mov_b32 v{vT+1}, s{sTMP}")
    I("s_mov_b64 exec, 1")
    I(f"ds_write_b64 v{vT+1}, v[{vT+2}:{vT+3}] offset:{LML}")
    I("s_mov_b64 exec, -1")
    I(f"v_mov_b32 v{vT+1}, 0")
    xissue()
    I("s_waitcnt lgkmcnt(0)")
    I("s_barrier")
    xissue()
    I(f"ds_read_b128 v[{vA}:{vA+3}], v{vT+1} offset:{LML}")
    I(f"ds_read_b128 v[{vA+4}:{vA+7}], v{vT+1} offset:{LML+16}")
    I("s_waitcnt lgkmcnt(0)")
    I(f"v_max3_f32 v{vT+5}, v{vA}, v{vA+2}, v{vA+4}")
    I(f"v_max_f32 v{vT+5}, v{vT+5}, v{vA+6}")
    for k in range(4): I(f"v_sub_f32 v{vA+2*k}, v{vA+2*k}, v{vT+5}")
    I(f"v_sub_f32 v{vT}, v{vT}, v{vT+5}")
    for k in range(4): I(f"v_exp_f32 v{vA+2*k}, v{vA+2*k}")
    I(f"v_exp_f32 v{vT}, v{vT}")
    I(f"v_mul_f32 v{vA}, v{vA}, v{vA+1}")
    I(f"v_mul_f32 v{vA+4}, v{vA+4}, v{vA+5}")
    I(f"v_fmac_f32 v{vA}, v{vA+2}, v{vA+3}")
    I(f"v_fmac_f32 v{vA+4}, v{vA+6}, v{vA+7}")
    I(f"v_add_f32 v{vA}, v{vA}, v{vA+4}")
    I(f"v_rcp_f32 v{vA}, v{vA}")
    I(f"v_mul_f32 v{vT}, v{vT}, v{vA}")
    while xleft[0] > 0: xissue()
    for B in range(16): I(f"v_mul_f32 v{vS+B}, v{vS+B}, v{vT}")
    for B in range(16): I(f"v_cvt_pk_bf16_f32 v{vS+B}, v{vS+B}, v{vS+B}")
    stamp()
    a.C("V phase: o += p * V")
    hu_done = []
    cnt_id = None
    for i in range(256, 512):
        B, t = (i - 256) >> 4, i & 15
        u, c = t >> 2, t & 3
        A = vA + 2 * ((i >> 2) & 1)
        if i == 256: afrag(A, vS, 0)
        a.wait_vm(kvid[i])
        if not (NE and i >= 512 - E): control(i)
        codepf(i)
        if boost and not (NE and i >= 512 - E): paced(i, nV)
        tgt = min(i + 1 + (NE if (NE and i >= 512 - E) else nV), 512)
        while issued[0] < tgt: issue_kv()
        for fn in side_steps.get(i, []): fn()
        if issued[0] == 512:
            for _ in range(min(dper, len(deferred))): deferred.pop(0)()
            if hu and not hu_done and i >= 511 - 8 + hlead:
                hu_done.append(1)
                I(f"s_lshl_b32 s{sFL}, s2, 7")
                I(f"s_add_u32 s{sFL}, s{sFL}, {FLOFF}")
                I(f"s_cmp_lg_u32 s{sW}, 0")
                I("s_cbranch_scc1 L_nohu")
                I("s_mov_b64 exec, 1")
                a.X(f"buffer_store_dwordx4 v[{vPB}:{vPB+3}], v{vHROW}, {srd(sWS)}, s{sFL} offen {spol}")
                I("s_mov_b64 exec, -1")
                I("L_nohu:")
                I(f"s_lshl_b32 s{sFL}, s{sTB}, 12")
                I(f"s_add_u32 s{sFL}, s{sFL}, {FLOFF}")
                I(f"v_lshrrev_b32 v{vMAX}, 1, v{vLANE}")
                I(f"v_lshlrev_b32 v{vMAX}, 7, v{vMAX}")
                I(f"s_mov_b32 s{sC1}, {P1B}")
                I(f"s_mov_b32 s{sC2}, {P1C}")
        mfma2(A, "v", slot(i), c, i == 256)
        release(i)
        if kstamps and i % 32 == 31: pstamp(i // 32, True)
        if fast and i == pretouch:
            I(f"buffer_load_dwordx4 v[{vT+4}:{vT+7}], v{vHROW}, {srd(sWS)}, s{sROTA} offen sc1")
        if fast and i == pretouch + 4:
            I(f"buffer_load_dwordx4 v[{vT+4}:{vT+7}], v{vGAT}, {srd(sWS)}, s{sP2A} offen sc1")
        if late_cs: pass
        elif i == cs_start - 1:
            assert side_last[0] < a.vm_done
            I(f"v_and_b32 v{vA+4}, 0x3f803f80, v{vM0}")
            I(f"v_and_b32 v{vA+5}, 0x3f803f80, v{vM1}")
        if not late_cs and cs_start <= i < cs_start + 32:
            mfma2(vA + 4, "a", 4 * (i - cs_start), 0, i == cs_start, acc=vT + 8)
        if not late_cs and i == cs_start + 33:
            swap_reduce(vT, acc=vT + 8)
            I(f"ds_write_b64 v{vLW}, v[{vT}:{vT+1}] offset:{LCS}")
        if c == 0 and i + 4 < 512:
            j = i + 4
            afrag(vA + 2 * ((j >> 2) & 1), vS + ((j - 256) >> 4), (j & 15) >> 2)
    stamp()
    a.C("tail: reduce o over the waves, o @ wo slice, publish, then the three hand-offs")
    I("L_tail:")
    tstamp()
    FS = RING0 + 48
    if hu: a.X(f"buffer_load_dwordx4 v[{FS}:{FS+3}], v{vMAX}, {srd(sWS)}, s{sFL} offen {lpol}")
    swap_reduce(vT)
    I(f"ds_write_b64 v{vLW}, v[{vT}:{vT+1}] offset:{LO}")
    for _ in range(min(3, len(deferred))): deferred.pop(0)()
    I("s_waitcnt lgkmcnt(0)")
    tstamp()
    I("s_barrier")
    tstamp()
    I(f"ds_read2_b64 v[{vT}:{vT+3}], v{vLO} offset0:0 offset1:64")
    I(f"ds_read2_b64 v[{vT+4}:{vT+7}], v{vLO} offset0:128 offset1:192")
    vCS = vS
    def read_cs():
        for w in range(4):
            I(f"ds_read2st64_b32 v[{vCS+2*w}:{vCS+2*w+1}], v{vLGU} offset0:{(LCS-LGU)//256+2*w} offset1:{(LCS-LGU)//256+2*w+1}")
    if not late_cs: read_cs()
    for _ in range(min(3, len(deferred))): deferred.pop(0)()
    I("s_waitcnt lgkmcnt(0)" if (tstamps or late_cs) else "s_waitcnt lgkmcnt(4)")
    tstamp()
    I(f"v_add_f32 v{vT}, v{vT}, v{vT+2}")
    I(f"v_add_f32 v{vT+1}, v{vT+1}, v{vT+3}")
    I(f"v_add_f32 v{vT+4}, v{vT+4}, v{vT+6}")
    I(f"v_add_f32 v{vT+5}, v{vT+5}, v{vT+7}")
    I(f"v_add_f32 v{vT}, v{vT}, v{vT+4}")
    I(f"v_add_f32 v{vT+1}, v{vT+1}, v{vT+5}")
    I(f"v_cvt_pk_bf16_f32 v{vP}, v{vT}, v{vT}")
    I(f"v_cvt_pk_bf16_f32 v{vP+1}, v{vT+1}, v{vT+1}")
    gemv_il([vP, vP + 1], "a", 128, deferred)
    tstamp()
    swap_reduce(vPB)
    tstamp()
    if halfx: I("s_mov_b32 exec_hi, 0")
    I(f"buffer_store_dwordx4 v[{vPB}:{vPB+3}], v{vPUB}, {srd(sWS)}, s{sGOFF} offen {spol}")
    if halfx: I("s_mov_b64 exec, -1")
    if hu and K1 > 1: I(f"buffer_store_dwordx4 v[{vPB}:{vPB+3}], v{vPUB}, {srd(sWS)}, s{sC1} offen {spol}")
    if hu and K1 > 2: I(f"buffer_store_dwordx4 v[{vPB}:{vPB+3}], v{vPUB}, {srd(sWS)}, s{sC2} offen {spol}")
    stamp()
    vR = vG
    vPUB2 = vWQ

    def poll(label, S, voff, soff, nres, pre=None, th=0, soffA=None, lazy=None, delay=0):
        ld = lambda so: f"buffer_load_dwordx4 v[{S}:{S+3}], v{voff}, {srd(sWS)}, s{so} offen {lpol}"
        def check():
            I("s_waitcnt vmcnt(0)")
            I(f"v_cmp_eq_u64 vcc, s[{sTAG}:{sTAG+1}], v[{S+2}:{S+3}]")
            for r in range(nres): I(f"v_cndmask_b32 v{vR+r}, v{vR+r}, v{S+r}, vcc")
            I("s_andn2_b64 exec, exec, vcc")
            I(f"s_cbranch_scc0 {label}_ok")
        if delay:
            if pre: pre()
            a.C("back off before the first poll: reading a line before it is written slows the write down")
            I(f"s_sleep {delay}")
        a.X(ld(soffA if soffA else soff))
        if pre and not delay: pre()
        I(f"s_mov_b32 s{sCNT}, {SPIN}")
        I(f"{label}:")
        check()
        if th:
            I(f"s_bcnt1_i32_b64 s{sTMP}, exec")
            I(f"s_cmp_le_u32 s{sTMP}, {th}")
            I(f"s_cbranch_scc1 {label}_f")
            I(f"s_sleep {slow}")
            I(f"{label}_f:")
        if psl and not th: I(f"s_sleep {psl}")
        I(f"s_sub_u32 s{sCNT}, s{sCNT}, 1")
        if soffA:
            I(f"s_and_b32 s{sTMP}, s{sCNT}, {NA-1}")
            I(f"s_cselect_b32 s{sTMP}, s{soffA}, s{soff}")
            if lazy:
                I(f"s_cbranch_scc1 {label}_n")
                I("s_mov_b64 s[8:9], exec")
                I("s_mov_b64 exec, 3")
                a.X(lazy)
                I("s_mov_b64 exec, s[8:9]")
                I(f"{label}_n:")
            a.X(ld(sTMP))
        else:
            a.X(ld(soff))
        I(f"s_cmp_lg_u32 s{sCNT}, 0")
        I(f"s_cbranch_scc1 {label}")
        I(f"{label}_ok:")
        I("s_mov_b64 exec, -1")

    def sample(label, S, voff, soffs, nres, gap):
        ld = lambda k: f"buffer_load_dwordx4 v[{S+4*k}:{S+4*k+3}], v{voff}, {srd(sWS)}, s{soffs[k]} offen {lpol}"
        def check(k, cnt):
            I(f"s_waitcnt vmcnt({cnt})")
            I(f"v_cmp_eq_u64 vcc, s[{sTAG}:{sTAG+1}], v[{S+4*k+2}:{S+4*k+3}]")
            for r in range(nres): I(f"v_cndmask_b32 v{vR+r}, v{vR+r}, v{S+4*k+r}, vcc")
            I("s_andn2_b64 exec, exec, vcc")
            I(f"s_cbranch_scc0 {label}_ok")
        n = len(soffs)
        a.X(ld(0))
        for k in range(1, n):
            I(f"s_sleep {gap}")
            a.X(ld(k))
            check(k - 1, 1)
        I(f"s_mov_b32 s{sCNT}, {SPIN}")
        I(f"{label}:")
        check(n - 1, 0)
        I(f"s_sub_u32 s{sCNT}, s{sCNT}, 1")
        a.X(ld(n - 1))
        I(f"s_cmp_lg_u32 s{sCNT}, 0")
        I(f"s_cbranch_scc1 {label}")
        I(f"{label}_ok:")
        I("s_mov_b64 exec, -1")

    def colsum():
        x0, x1, t0, t1 = vR, vR + 1, vT + 2, vT + 3
        for r in (8, 4, 2):
            I(f"v_add_f32_dpp v{x0}, v{x0}, v{x0} row_ror:{r} row_mask:0xf bank_mask:0xf")
            I(f"v_add_f32_dpp v{x1}, v{x1}, v{x1} row_ror:{r} row_mask:0xf bank_mask:0xf")
        for sw in ("v_permlane16_swap_b32", "v_permlane32_swap_b32"):
            I(f"v_mov_b32 v{t0}, v{x0}")
            I(f"v_mov_b32 v{t1}, v{x1}")
            I(f"{sw} v{x0}, v{t0}")
            I(f"{sw} v{x1}, v{t1}")
            I(f"v_add_f32 v{x0}, v{x0}, v{t0}")
            I(f"v_add_f32 v{x1}, v{x1}, v{t1}")
        I(f"v_cvt_pk_bf16_f32 v{x0}, v{x0}, v{x1}")
        I(f"v_lshlrev_b32 v{t0}, 16, v{x0}")
        I(f"v_and_b32 v{t1}, 0xffff0000, v{x0}")

    def pre1():
        I(f"s_lshl_b32 s{sTMP}, s{sTB}, 5")
        I(f"s_add_u32 s{sTMP}, s{sTMP}, s{sTC}")
        I(f"s_lshl_b32 s{sTMP}, s{sTMP}, 12")
        I(f"v_lshl_add_u32 v{vPUB2}, v{vLW}, 1, s{sTMP}")
        I(f"v_mov_b32 v{vPB+2}, s{sTAG}")
        I(f"v_mov_b32 v{vPB+3}, s{sTAG+1}")
        I(f"s_getreg_b32 s{sXCC}, hwreg(HW_REG_XCC_ID, 0, 4)")
        I(f"v_mov_b32 v{vPB+1}, s{sXCC}")
        I(f"v_lshlrev_b32 v{vH}, 16, v{vXRES}")
        I(f"v_and_b32 v{vH+1}, 0xffff0000, v{vXRES}")
        if late_cs:
            I(f"v_and_b32 v{vA+4}, 0x3f803f80, v{vM0}")
            I(f"v_and_b32 v{vA+5}, 0x3f803f80, v{vM1}")
            I(f"s_waitcnt vmcnt({a.vm - 1 - side_last[0] + 1})")
            for f in range(32): mfma2(vA + 4, "a", 4 * f, 0, f == 0)
            swap_reduce(vT)
            I(f"ds_write_b64 v{vLW}, v[{vT}:{vT+1}] offset:{LCS}")
            I("s_waitcnt lgkmcnt(0)")
            I("s_barrier")
            read_cs()
        I("s_waitcnt lgkmcnt(0)")
        I(f"v_add_f32 v{vCS}, v{vCS}, v{vCS+2}")
        I(f"v_add_f32 v{vCS+1}, v{vCS+1}, v{vCS+3}")
        I(f"v_add_f32 v{vCS+4}, v{vCS+4}, v{vCS+6}")
        I(f"v_add_f32 v{vCS+5}, v{vCS+5}, v{vCS+7}")
        I(f"v_add_f32 v{vCS}, v{vCS}, v{vCS+4}")
        I(f"v_add_f32 v{vCS+1}, v{vCS+1}, v{vCS+5}")
    if hu:
        I(f"s_waitcnt vmcnt({K1})")
        I(f"v_cmp_ne_u64 vcc, s[{sTAG}:{sTAG+1}], v[{FS+2}:{FS+3}]")
        I("s_mov_b64 s[8:9], vcc")
        pre1()
        I("s_mov_b64 exec, s[8:9]")
        I("s_cbranch_execz L_flx")
        poll("L_fl", FS, vMAX, sFL, 0)
        I(f"s_sleep {aY}")
        I("s_branch L_fly")
        I("L_flx:")
        I("s_mov_b64 exec, -1")
        if aX: I(f"s_sleep {aX}")
        I("L_fly:")
        sample("L_p1", RING0, vGAT, [sGOFF, sC1, sC2][:K1], 2, bS)
    else:
        poll("L_p1", RING0, vGAT, sGOFF, 2, pre1, TH, delay=d1)
    colsum()
    I(f"v_add_f32 v{vT+2}, v{vT+2}, v{vH}")
    I(f"v_add_f32 v{vT+3}, v{vT+3}, v{vH+1}")
    I(f"v_cvt_pk_bf16_f32 v{vPB}, v{vT+2}, v{vT+3}")
    I("s_mov_b64 exec, 3")
    if fast: I(f"buffer_store_dwordx4 v[{vPB}:{vPB+3}], v{vHROW}, {srd(sWS)}, s{sHSTA} offen")
    HB = f"buffer_store_dwordx4 v[{vPB}:{vPB+3}], v{vHROW}, {srd(sWS)}, s{sHST} offen {spol}"
    if not fast: I(HB)
    I("s_mov_b64 exec, -1")
    stamp()
    if not align:
        I(f"s_cmp_ge_u32 s{sTC}, 28")
        I("s_cbranch_scc1 L_noffn")
    def pre2():
        I(f"s_mov_b32 s{sC1}, {P2B}")
        I(f"s_mov_b32 s{sC2}, {P2C}")
        I(f"v_lshlrev_b32 v{vH}, 16, v{vPB}")
        I(f"v_and_b32 v{vH+1}, 0xffff0000, v{vPB}")
    poll("L_h", RING0 + 16, vHROW, sROT, 2 if fast else 1, pre2, soffA=sROTA if fast else None, lazy=HB if fast else None, delay=dH)
    if fast:
        I("s_mov_b64 exec, 3")
        I(HB)
        I("s_mov_b64 exec, -1")
        I(f"v_cmp_ne_u32 s[8:9], s{sXCC}, v{vR+1}")
    stamp()
    tstamp()
    f0, f1, s1, t = vS + 8, vS + 9, vS + 10, vS + 11
    I(f"v_lshlrev_b32 v{f0}, 16, v{vR}")
    I(f"v_and_b32 v{f1}, 0xffff0000, v{vR}")
    I(f"v_and_b32 v{vP}, 0xffff, v{vR}")
    I(f"v_lshrrev_b32 v{vP+1}, 16, v{vR}")
    I(f"v_or_b32 v{vP}, v{vP}, v{f0}")
    I(f"v_or_b32 v{vP+1}, v{vP+1}, v{f1}")
    I(f"v_add_f32 v{s1}, v{f0}, v{f1}")
    stats = []
    def red(x):
        for r in (8, 4, 2, 1):
            stats.append(f"v_add_f32_dpp v{x}, v{x}, v{x} row_ror:{r} row_mask:0xf bank_mask:0xf")
        for sw in ("v_permlane16_swap_b32", "v_permlane32_swap_b32"):
            stats.append(f"v_mov_b32 v{t}, v{x}")
            stats.append(f"{sw} v{x}, v{t}")
            stats.append(f"v_add_f32 v{x}, v{x}, v{t}")
    red(s1)
    stats.append(f"v_mul_f32 v{s1}, {f32(1/128)}, v{s1}")
    stats.append(f"v_sub_f32 v{f0}, v{f0}, v{s1}")
    stats.append(f"v_sub_f32 v{f1}, v{f1}, v{s1}")
    stats.append(f"v_mul_f32 v{f0}, v{f0}, v{f0}")
    stats.append(f"v_fmac_f32 v{f0}, v{f1}, v{f1}")
    red(f0)
    stats.append(f"v_mov_b32 v{f1}, v{s1}")
    gemv_il([vP, vP + 1], "a", 0, stats)
    tstamp()
    I(f"s_lshl_b32 s{sTMP}, s{sW}, 3")
    I(f"v_mov_b32 v{t}, s{sTMP}")
    I("s_mov_b64 exec, 1")
    I(f"ds_write_b64 v{t}, v[{f0}:{f1}] offset:{LST}")
    if fast:
        I("s_or_b32 s8, s8, s9")
        I(f"v_mov_b32 v{s1}, s8")
        I(f"v_lshrrev_b32 v{t}, 1, v{t}")
        I(f"ds_write_b32 v{t}, v{s1} offset:{LFL}")
    I("s_mov_b64 exec, -1")
    I(f"v_mov_b32 v{t}, 0")
    swap_reduce(vT)
    I(f"ds_write_b64 v{vLW}, v[{vT}:{vT+1}] offset:{LGU}")
    I("s_waitcnt lgkmcnt(0)")
    I("s_barrier")
    tstamp()
    Z = vA
    I(f"ds_read_b128 v[{Z}:{Z+3}], v{t} offset:{LST}")
    I(f"ds_read_b128 v[{Z+4}:{Z+7}], v{t} offset:{LST+16}")
    for w in range(4):
        I(f"ds_read2st64_b32 v[{vT+2*w}:{vT+2*w+1}], v{vLGU} offset0:{2*w} offset1:{2*w+1}")
    if fast: I(f"ds_read_b128 v[{vS+12}:{vS+15}], v{t} offset:{LFL}")
    I("s_waitcnt lgkmcnt(0)" if tstamps else "s_waitcnt lgkmcnt(5)" if fast else "s_waitcnt lgkmcnt(4)")
    m, q = Z + 8, Z + 9
    I(f"v_add_f32 v{m}, v{Z+1}, v{Z+3}")
    I(f"v_add_f32 v{q}, v{Z+5}, v{Z+7}")
    I(f"v_add_f32 v{Z}, v{Z}, v{Z+2}")
    I(f"v_add_f32 v{m}, v{m}, v{q}")
    I(f"v_add_f32 v{Z+4}, v{Z+4}, v{Z+6}")
    I(f"v_mul_f32 v{m}, 0.25, v{m}" if False else f"v_mul_f32 v{m}, {f32(0.25)}, v{m}")
    I(f"v_add_f32 v{Z}, v{Z}, v{Z+4}")
    for k in (1, 3, 5, 7): I(f"v_sub_f32 v{Z+k}, v{Z+k}, v{m}")
    I(f"v_mul_f32 v{Z+1}, v{Z+1}, v{Z+1}")
    I(f"v_mul_f32 v{Z+5}, v{Z+5}, v{Z+5}")
    I(f"v_fmac_f32 v{Z+1}, v{Z+3}, v{Z+3}")
    I(f"v_fmac_f32 v{Z+5}, v{Z+7}, v{Z+7}")
    I(f"v_mul_f32 v{Z}, {f32(1/512)}, v{Z}")
    I(f"v_add_f32 v{Z+1}, v{Z+1}, v{Z+5}")
    I(f"v_fmac_f32 v{Z}, {f32(0.25)}, v{Z+1}")
    I(f"v_cvt_pk_bf16_f32 v{q}, v{m}, v{Z}")
    I("s_waitcnt lgkmcnt(0)")
    I(f"v_add_f32 v{vT}, v{vT}, v{vT+2}")
    I(f"v_lshlrev_b32 v{m}, 16, v{q}")
    I(f"v_and_b32 v{q}, 0xffff0000, v{q}")
    I(f"v_add_f32 v{vT+1}, v{vT+1}, v{vT+3}")
    I(f"v_add_f32 v{q}, {f32(1e-5)}, v{q}")
    I(f"v_add_f32 v{vT+4}, v{vT+4}, v{vT+6}")
    I(f"v_cvt_pk_bf16_f32 v{q}, v{q}, v{q}")
    I(f"v_add_f32 v{vT+5}, v{vT+5}, v{vT+7}")
    I(f"v_and_b32 v{q}, 0xffff0000, v{q}")
    I(f"v_add_f32 v{vT}, v{vT}, v{vT+4}")
    I(f"v_sqrt_f32 v{q}, v{q}")
    I(f"v_add_f32 v{vT+1}, v{vT+1}, v{vT+5}")
    I(f"v_cvt_pk_bf16_f32 v{q}, v{q}, v{q}")
    I(f"v_fma_f32 v{vT}, -v{m}, v{vCS}, v{vT}")
    I(f"v_and_b32 v{q}, 0xffff0000, v{q}")
    I(f"v_fma_f32 v{vT+1}, -v{m}, v{vCS+1}, v{vT+1}")
    I(f"v_rcp_f32 v{q}, v{q}")
    I(f"v_mul_f32 v{vT}, v{vT}, v{q}")
    I(f"v_mul_f32 v{vT+1}, v{vT+1}, v{q}")
    I(f"v_cvt_pk_bf16_f32 v{vT}, v{vT}, v{vT+1}")
    I(f"v_and_b32 v{vT+1}, 0xffff0000, v{vT}")
    I(f"v_lshlrev_b32 v{vT}, 16, v{vT}")
    I(f"v_max_f32 v{vT}, 0, v{vT}")
    I(f"v_mul_f32 v{vT}, v{vT}, v{vT+1}")
    I(f"v_cvt_pk_bf16_f32 v{vP}, v{vT}, v{vT}")
    tstamp()
    gemv_il([vP], "v", vWDF)
    tstamp()
    if fast:
        I(f"v_or3_b32 v{vS+12}, v{vS+12}, v{vS+13}, v{vS+14}")
        I(f"v_or_b32 v{vS+12}, v{vS+12}, v{vS+15}")
        I(f"v_readfirstlane_b32 s8, v{vS+12}")
    swap_reduce(vPB)
    tstamp()
    if align:
        I(f"s_cmp_ge_u32 s{sTC}, 28")
        I("s_cbranch_scc1 L_local")
    if fast:
        I(f"buffer_store_dwordx4 v[{vPB}:{vPB+3}], v{vPUB2}, {srd(sWS)}, s{sP2A} offen")
        I("s_cmp_eq_u32 s8, 0")
        I("s_cbranch_scc1 L_local")
    if halfx: I("s_mov_b32 exec_hi, 0")
    I(f"buffer_store_dwordx4 v[{vPB}:{vPB+3}], v{vPUB if halfx else vPUB2}, {srd(sWS)}, s{sP2} offen {spol}")
    if halfx: I("s_mov_b64 exec, -1")
    if KP > 1: I(f"buffer_store_dwordx4 v[{vPB}:{vPB+3}], v{vPUB2}, {srd(sWS)}, s{sC1} offen {spol}")
    if KP > 2: I(f"buffer_store_dwordx4 v[{vPB}:{vPB+3}], v{vPUB2}, {srd(sWS)}, s{sC2} offen {spol}")
    I("L_local:")
    I(f"s_lshl_b32 s{sTMP}, s{sTC}, 2")
    I(f"s_add_u32 s{sTMP}, s{sTMP}, s{sW}")
    I(f"s_cmp_lg_u32 s{sTMP}, 0")
    I("s_cbranch_scc1 L_noep")
    I(f"s_lshl_b32 s{sTMP}, s{sTB}, 7")
    I("s_mov_b64 exec, 1")
    I(f"buffer_store_dwordx2 v[{vPB+2}:{vPB+3}], v{vHROW}, {srd(sWS)}, s{sTMP} offen {epol}")
    I("s_mov_b64 exec, -1")
    I("L_noep:")
    stamp()
    if not align: I("s_branch L_final")
    I("L_noffn:")
    if fast and not align:
        I("s_mov_b64 exec, 3")
        I(HB)
        I("s_mov_b64 exec, -1")
    if not align:
        I(f"v_lshlrev_b32 v{vH}, 16, v{vPB}")
        I(f"v_and_b32 v{vH+1}, 0xffff0000, v{vPB}")
    I("L_final:")
    I(f"v_mov_b32 v{vR}, 0")
    I(f"v_mov_b32 v{vR+1}, 0")
    I(f"s_mov_b32 exec_hi, 0x00ffffff")
    if KP > 1:
        I(f"s_sleep {dP}")
        sample("L_p2", RING0 + 32, vGAT, [sP2, sC1, sC2][:KP], 2, bP)
    else:
        poll("L_p2", RING0 + 32, vGAT, sP2, 2, soffA=sP2A if fast else None, delay=dP)
    colsum()
    I(f"v_add_f32 v{vT+2}, v{vT+2}, v{vH}")
    I(f"v_add_f32 v{vT+3}, v{vT+3}, v{vH+1}")
    I(f"v_cvt_pk_bf16_f32 v{vT}, v{vT+2}, v{vT+3}")
    if fixref:
        I(f"v_mov_b32 v{vT+5}, 0")
        I(f"global_load_dword v{vT+4}, v{vT+5}, s[76:77] sc1")
        I(f"s_memrealtime s[{sNOW}:{sNOW+1}]")
        I("s_waitcnt vmcnt(0) lgkmcnt(0)")
        I(f"v_readfirstlane_b32 s{sLVL}, v{vT+4}")
        I(f"s_sub_u32 s{sTMP}, s{sT0}, s{sLVL}")
        I(f"s_add_u32 s{sTMP}, s{sTMP}, 1000")
        I(f"s_sub_u32 s{sTMP2}, s{sNOW}, s{sLVL}")
        I(f"s_mov_b32 s{sT0}, s{sLVL}")
        I(f"v_mov_b32 v{vT+6}, s{sTMP}")
        I(f"v_mov_b32 v{vT+7}, s{sTMP2}")
        I("s_mov_b64 exec, 1")
        if fixref == 2:
            I(f"global_atomic_umax v{vT+5}, v{vT+6}, s[76:77] offset:4 sc1")
            I(f"global_atomic_umax v{vT+5}, v{vT+7}, s[76:77] offset:8 sc1")
            I(f"v_sub_u32 v{vT+6}, 2000, v{vT+6}")
            I(f"global_atomic_umax v{vT+5}, v{vT+6}, s[76:77] offset:12 sc1")
        I("s_mov_b64 exec, -1")
    if fixt:
        I("L_fix:")
        I(f"s_memrealtime s[{sNOW}:{sNOW+1}]")
        I("s_waitcnt lgkmcnt(0)")
        I(f"s_sub_u32 s{sLVL}, s{sNOW}, s{sT0}")
        I(f"s_cmp_lt_u32 s{sLVL}, {fixt * 100}")
        I("s_cbranch_scc1 L_fix")
    I("s_mov_b64 exec, 3")
    I(f"buffer_store_dword v{vT}, v{vHST}, {srd(sOUT)}, s{sOUTO} offen {opol}")
    I("s_mov_b64 exec, -1")
    if stamps:
        stamp()
        I(f"s_cmp_lg_u32 s{sW}, 0")
        I("s_cbranch_scc1 L_end")
        I("s_waitcnt lgkmcnt(0)")
        I(f"s_lshl_b32 s{sTMP}, s2, 6")
        I(f"s_add_u32 s{sTMP}, s{sTMP}, {STAMPOFF}")
        I(f"v_mov_b32 v{vT+2}, 0")
        I("s_mov_b64 exec, 1")
        for k in range(stamp_n[0]):
            r = 84 if k == 0 else 60 + 2 * (k - 1)
            I(f"v_mov_b32 v{vT+3}, s{r}")
            I(f"buffer_store_dword v{vT+3}, v{vT+2}, {srd(sWS)}, s{sTMP} offen offset:{4*k}")
        if tstamps:
            for k in range(tn[0]):
                r = 10 + 2 * k if k < 9 else [32, 34, 40, 42][k - 9]
                I(f"v_writelane_b32 v91, s{r}, {k}")
        if pstamps:
            I("s_mov_b64 exec, 0xffff")
            I(f"s_add_u32 s60, s{sTMP}, 0x10000")
            I(f"buffer_store_dword v91, v{vROW}, {srd(sWS)}, s60 offen")
            I("s_mov_b64 exec, 1")
        I("s_getreg_b32 s60, hwreg(HW_REG_XCC_ID)")
        I(f"v_mov_b32 v{vT+3}, s60")
        I(f"buffer_store_dword v{vT+3}, v{vT+2}, {srd(sWS)}, s{sTMP} offen offset:60")
    I("L_end:")
    I("s_endpgm")
    body = a.finish()
    out = HEADER + DESC + "; @launch grid=(256,1,1) block=(256,1,1) lds=10368\n"
    out += '.amdgcn_target "amdgcn-amd-amdhsa--gfx950"\n.text\n'
    out += f".globl {KNAME}\n.p2align 8\n.type {KNAME},@function\n{KNAME}:\n"
    out += body
    out += f'''.section .rodata,"a"
.p2align 6
.amdhsa_kernel {KNAME}
  .amdhsa_next_free_vgpr 512
  .amdhsa_next_free_sgpr 102
  .amdhsa_accum_offset 256
  .amdhsa_group_segment_fixed_size 0
  .amdhsa_kernarg_size 96
  .amdhsa_user_sgpr_count 2
  .amdhsa_user_sgpr_kernarg_segment_ptr 1
  .amdhsa_system_sgpr_workgroup_id_x 1
.end_amdhsa_kernel
'''
    return out

if __name__ == "__main__":
    import json
    cfg = json.loads(sys.argv[2]) if len(sys.argv) > 2 else {}
    open(sys.argv[1], "w").write(gen(**cfg))
```

```python
import sys
sys.path.insert(0, "gen")
from asmlib import Asm
import struct

KNAME = "sequential_preLN__mha_block_cached__glu_gated_reglu__decode_kernel"
HEADER = open("sequential_preLN__mha_block_cached__glu_gated_reglu__decode.s.ref").read().split("; Override launch")[0]

def f32(x):
    return "0x%08x" % struct.unpack("<I", struct.pack("<f", x))[0]

vLANE, vKV, vWQ, vWO, vWD = 1, 2, 3, 4, 5
vGU = 6
vPUB, vGAT, vROW, vLW, vM0, vM1, vXRES, vMAX = 8, 9, 10, 11, 12, 13, 14, 15
vQ, vP, vG, vS, vA, vACC, vT = 16, 20, 24, 28, 44, 60, 68
vLO, vLGU, vLQ, vHST, vHROW, vH = 84, 85, 86, 87, 88, 89
vPB = 92
RING0 = 96
vWDF = 192
sW, sB, sH, sJF = 3, 4, 5, 6
sK, sV, sWQ, sWO, sWD, sWS, sX, sOUT, sDBG = 8, 12, 16, 20, 24, 28, 32, 36, 40
sISS, sWOFF, sTMP, sTMP2 = 48, 49, 50, 51
sODD, sBIT1 = 52, 54
sCNT, sL2E = 58, 59
sSCALE, sFFFF, sP2, sHST = 44, 45, 46, 47
sGOFF = 86
sROT = 94
sGUSTEP = 98
sOUTO = 100
sTAG = 56
sTAGP = 88
sTB, sTC = 90, 91
sHSTA, sROTA, sP2A = 92, 93, 87
sXCC = 95
sRQ = 7
sFL, sC1, sC2 = 76, 77, 82
vFLG = 91
vKV2 = 0
sNOW, sLVL, sT0 = 80, 101, 84
sPC, sPFD = 78, 83
sXT = 40
LQ, LML, LO, LGU, LCS, LST, LFL = 0, 2048, 4096, 6144, 8192, 10240, 10304
P1OFF, P2OFF, HOFF, STAMPOFF = 0x10000, 0x110000, 0x210000, 0x400000
P2AOFF, HAOFF = 0x220000, 0x218000
FLOFF, P1B, P1C, P2B, P2C, HC = 0x8000, 0x500000, 0x600000, 0x700000, 0x800000, 0x900000
SPIN = 200000

DESC = '''; Design (generated by my own script; one workgroup of 4 waves per (batch, head), one per CU):
;   * hand-off granule = 16 bytes {payload, 64-bit tag}; the tag is derived from an epoch word found in
'''

def srd(b): return f"s[{b}:{b+3}]"

def gen(N=5, NV=None, R=24, wpol="nt", kvpol="nt", stamps=False, pstamps=False, sleep=4, wstart=40, wend=250, M=11, kfirst=1, ratio=(5, 6), qextra=3, cu=5, Tx=5, noside=False, vpol=None, lpol="sc1", spol="sc1", K=4, gap=1, TH=0, slow=16, cs_start=300, remap=False, fast=False, NA=32, fpol=None, pretouch=470, rawh=True, dH=20, dP=12, psl=0, align=True, NE=8, E=24, hmap=False, kstamps=False, nokc=False, fB=0, fC=0, KC=1, dS=5, rotq=0, tstamps=False, ND=0, dper=2, fakeq=0, qpol=None, qdelay=0, ctl=True, Ts=137.0, T0=2200, Tside=17.5, dl=350, U=16, cands=2, nl=8, ustart=48, d1=16, two=True, pf=4, pft=True, pfd=3, fixt=0, fixref=False, hu=False, halfx=False, aX=6, aY=11, bS=9, KP=1, bP=5, hcopy=False, opol="", epol="", swp=32, K1=1, hlead=0, stg=(34, 12, 26, 45, 32, 15, 49, 19), wpos=(13, 15), tab=False, cap=4):
    a = Asm(); I = a.I
    wp = (" " + wpol) if wpol else ""
    kp = (" " + kvpol) if kvpol else ""
    fp = wp if fpol is None else ((" " + fpol) if fpol else "")
    qp = wp if qpol is None else ((" " + qpol) if qpol else "")
    NWQ = fakeq or 32
    vp = kp if vpol is None else ((" " + vpol) if vpol else "")
    stamp_n = [0]
    def stamp():
        if stamps:
            k = stamp_n[0]; stamp_n[0] += 1
            r = 84 if k == 0 else 60 + 2 * (k - 1)
            I(f"s_memrealtime s[{r}:{r+1}]")
    def pstamp(k, force=False):
        if (pstamps and not kstamps and not tstamps) or force:
            I(f"s_memrealtime s[96:97]")
            I("s_waitcnt lgkmcnt(0)")
            I(f"v_writelane_b32 v91, s96, {k}")
    free = [("v", RING0 + 4 * k) for k in range(R)]
    extra = [("v", vWDF + 4 * k) for k in range(16)] + [("a", 252 - 4 * k) for k in range(28)]
    slot_of = {}
    busy_a = set()
    tn = [0]
    def tstamp():
        if tstamps:
            k = tn[0]; tn[0] += 1
            r = 10 + 2 * k if k < 9 else [32, 34, 40, 42][k - 9]
            I(f"s_memtime s[{r}:{r+1}]")
    def slot(g): return slot_of[g][1]
    def alloc(g):
        if free: r = free.pop(0)
        else:
            assert g < 100 and extra, f"out of slots at {g}"
            r = extra.pop(0)
        if r[0] == "a": busy_a.add(r[1])
        slot_of[g] = r
    def release(g):
        r = slot_of[g]
        if r[0] == "v" and r[1] < vWDF: free.append(r)
        if r[0] == "a": busy_a.discard(r[1])

    def wave_reduce(x, t, op):
        for r in (8, 4, 2, 1):
            I(f"{op}_dpp v{x}, v{x}, v{x} row_ror:{r} row_mask:0xf bank_mask:0xf")
        I(f"v_mov_b32 v{t}, v{x}")
        I(f"v_permlane16_swap_b32 v{x}, v{t}")
        I(f"{op} v{x}, v{x}, v{t}")
        I(f"v_mov_b32 v{t}, v{x}")
        I(f"v_permlane32_swap_b32 v{x}, v{t}")
        I(f"{op} v{x}, v{x}, v{t}")

    def ln(Dl, X0, X1, F):
        f = [F + i for i in range(8)]
        c = [F + 8 + i for i in range(4)]
        s, t = F + 12, F + 13
        for i in range(4):
            I(f"v_lshlrev_b32 v{f[2*i]}, 16, v{Dl[i]}")
            I(f"v_and_b32 v{f[2*i+1]}, 0xffff0000, v{Dl[i]}")
        for i in range(4):
            I(f"v_add_f32 v{c[i]}, v{f[2*i]}, v{f[2*i+1]}")
        I(f"v_add_f32 v{c[0]}, v{c[0]}, v{c[2]}")
        I(f"v_add_f32 v{c[1]}, v{c[1]}, v{c[3]}")
        I(f"v_add_f32 v{s}, v{c[0]}, v{c[1]}")
        wave_reduce(s, t, "v_add_f32")
        I(f"v_mul_f32 v{s}, {f32(1/512)}, v{s}")
        for i in range(4):
            I(f"v_sub_f32 v{Dl[i]}, v{f[2*i]}, v{s}")
            I(f"v_sub_f32 v{c[i]}, v{f[2*i+1]}, v{s}")
        for i in range(4):
            I(f"v_mul_f32 v{Dl[i]}, v{Dl[i]}, v{Dl[i]}")
        for i in range(4):
            I(f"v_fmac_f32 v{Dl[i]}, v{c[i]}, v{c[i]}")
        I(f"v_add_f32 v{Dl[0]}, v{Dl[0]}, v{Dl[2]}")
        I(f"v_add_f32 v{Dl[1]}, v{Dl[1]}, v{Dl[3]}")
        I(f"v_add_f32 v{Dl[0]}, v{Dl[0]}, v{Dl[1]}")
        wave_reduce(Dl[0], t, "v_add_f32")
        I(f"v_mul_f32 v{Dl[0]}, {f32(1/512)}, v{Dl[0]}")
        I(f"v_cvt_pk_bf16_f32 v{t}, v{s}, v{Dl[0]}")
        I(f"v_lshlrev_b32 v{s}, 16, v{t}")
        I(f"v_and_b32 v{t}, 0xffff0000, v{t}")
        I(f"v_add_f32 v{t}, {f32(1e-5)}, v{t}")
        I(f"v_sub_f32 v{f[0]}, v{f[0]}, v{s}")
        I(f"v_cvt_pk_bf16_f32 v{t}, v{t}, v{t}")
        I(f"v_sub_f32 v{f[1]}, v{f[1]}, v{s}")
        I(f"v_and_b32 v{t}, 0xffff0000, v{t}")
        I(f"v_cvt_pk_bf16_f32 v{f[0]}, v{f[0]}, v{f[1]}")
        I(f"v_sqrt_f32 v{t}, v{t}")
        I(f"v_and_b32 v{f[1]}, 0xffff0000, v{f[0]}")
        I(f"v_lshlrev_b32 v{f[0]}, 16, v{f[0]}")
        I(f"v_cvt_pk_bf16_f32 v{t}, v{t}, v{t}")
        I(f"v_and_b32 v{t}, 0xffff0000, v{t}")
        I(f"v_rcp_f32 v{s}, v{t}")
        I(f"v_mul_f32 v{f[2]}, v{f[0]}, v{s}")
        I(f"v_mul_f32 v{f[3]}, v{f[1]}, v{s}")
        I(f"v_fma_f32 v{f[4]}, -v{f[2]}, v{t}, v{f[0]}")
        I(f"v_fma_f32 v{f[5]}, -v{f[3]}, v{t}, v{f[1]}")
        I(f"v_fmac_f32 v{f[2]}, v{f[4]}, v{s}")
        I(f"v_fmac_f32 v{f[3]}, v{f[5]}, v{s}")
        I(f"v_cvt_pk_bf16_f32 v{X0}, v{f[2]}, v{f[2]}")
        I(f"v_cvt_pk_bf16_f32 v{X1}, v{f[3]}, v{f[3]}")

    def afrag(dst, src, u):
        I(f"v_and_b32_dpp v{dst}, v{src}, v{vM0} quad_perm:[{u},{u},{u},{u}] row_mask:0xf bank_mask:0xf")
        I(f"v_and_b32_dpp v{dst+1}, v{src}, v{vM1} quad_perm:[{u},{u},{u},{u}] row_mask:0xf bank_mask:0xf")

    def mfma2(A, bfile, b, abid, first, acc=vACC):
        lo, hi = acc, acc + 4
        c0 = "0" if first else f"v[{lo}:{lo+3}]"
        c1 = "0" if first else f"v[{hi}:{hi+3}]"
        I(f"v_mfma_f32_4x4x4_16b_bf16 v[{lo}:{lo+3}], v[{A}:{A+1}], {bfile}[{b}:{b+1}], {c0} cbsz:2 abid:{abid}")
        I(f"v_mfma_f32_4x4x4_16b_bf16 v[{hi}:{hi+3}], v[{A}:{A+1}], {bfile}[{b+2}:{b+3}], {c1} cbsz:2 abid:{abid}")

    def swap_reduce(dst, acc=vACC):
        lo, hi = acc, acc + 4
        for i in range(4): I(f"v_permlane32_swap_b32 v{lo+i}, v{hi+i}")
        for i in range(4): I(f"v_add_f32 v{lo+i}, v{lo+i}, v{hi+i}")
        I(f"v_permlane16_swap_b32 v{lo}, v{lo+2}")
        I(f"v_permlane16_swap_b32 v{lo+1}, v{lo+3}")
        I(f"v_add_f32 v{dst}, v{lo}, v{lo+2}")
        I(f"v_add_f32 v{dst+1}, v{lo+1}, v{lo+3}")

    def afrag1(dst, src, u, half):
        I(f"v_and_b32_dpp v{dst+half}, v{src}, v{vM0 if half == 0 else vM1} quad_perm:[{u},{u},{u},{u}] row_mask:0xf bank_mask:0xf")

    def gemv_il(Xs, bfile, b0, fill=None):
        nr = len(Xs)
        combos = [(u, r) for u in range(4) for r in range(nr)]
        fill = fill if fill is not None else []
        dbl = len(fill) > 18
        def put():
            x = fill.pop(0)
            if callable(x): x()
            else: I(x)
        afrag(vA, Xs[combos[0][1]], combos[0][0])
        first = True
        for ci, (u, r) in enumerate(combos):
            A = vA + 2 * (ci & 1)
            for aa in range(4):
                f = (8 * aa + 2 * u + r) if nr == 2 else (4 * aa + u)
                mfma2(A, bfile, b0 + 4 * f, aa, first); first = False
                if aa < 2 and ci + 1 < len(combos):
                    afrag1(vA + 2 * ((ci + 1) & 1), Xs[combos[ci + 1][1]], combos[ci + 1][0], aa)
                    if fill and aa == 0 and dbl: put()
                elif fill:
                    put()
                    if fill and aa == 2 and dbl: put()
        while fill: put()

    I(f"s_cmp_ge_u32 s2, 256")
    I("s_cbranch_scc1 L_end")
    stamp()
    if ctl and not stamps: I(f"s_memrealtime s[{sT0}:{sT0+1}]")
    a.C("kernarg pointers; lane/wave decomposition")
    I("s_load_dwordx16 s[60:75], s[0:1], 0")
    I("s_load_dwordx8 s[76:83], s[0:1], 64")
    I(f"v_lshrrev_b32 v{vT}, 6, v0")
    I(f"v_and_b32 v{vLANE}, 63, v0")
    I(f"v_readfirstlane_b32 s{sW}, v{vT}")
    I(f"s_lshr_b32 s{sB}, s2, 5")
    if hmap:
        I(f"s_and_b32 s{sH}, s2, 7")
        I(f"s_lshl_b32 s{sH}, s{sH}, 2")
        I(f"s_bfe_u32 s{sTMP}, s2, 0x20003")
        I(f"s_or_b32 s{sH}, s{sH}, s{sTMP}")
        I(f"s_andn2_b32 s2, s2, 31")
        I(f"s_or_b32 s2, s2, s{sH}")
    else:
        I(f"s_and_b32 s{sH}, s2, 31")
    if remap:
        I(f"s_and_b32 s{sTB}, s2, 7")
        I(f"s_lshr_b32 s{sTC}, s2, 3")
    else:
        I(f"s_mov_b32 s{sTB}, s{sB}")
        I(f"s_mov_b32 s{sTC}, s{sH}")
    I(f"s_min_u32 s{sJF}, s{sTC}, 27")
    J16, SS = vT + 1, vT + 2
    I(f"v_and_b32 v{J16}, 15, v{vLANE}")
    I(f"v_lshrrev_b32 v{SS}, 4, v{vLANE}")
    I(f"v_lshlrev_b32 v{vROW}, 2, v{vLANE}")
    I(f"v_lshlrev_b32 v{vKV}, 4, v{vLANE}")
    I(f"s_and_b32 s{sTMP}, s{sW}, 1")
    I(f"s_lshl_b32 s{sTMP}, s{sTMP}, {wpos[0]}")
    I(f"s_lshr_b32 s{sTMP2}, s{sW}, 1")
    I(f"s_lshl_b32 s{sTMP2}, s{sTMP2}, {wpos[1]}")
    I(f"s_or_b32 s{sTMP}, s{sTMP}, s{sTMP2}")
    I(f"v_add_u32 v{vKV}, s{sTMP}, v{vKV}")
    cbits = [q for q in range(12, 20) if q not in wpos]
    CM = sum(1 << q for q in cbits)
    HOLES = sum(1 << q for q in wpos if q > cbits[0])
    if swp: I(f"v_xor_b32 v{vKV2}, 0x2000, v{vKV}")
    for i in range(4):
        I(f"s_add_u32 s{sROT+i}, s{sW}, {i}")
        I(f"s_and_b32 s{sROT+i}, s{sROT+i}, 3")
        I(f"s_lshl_b32 s{sROT+i}, s{sROT+i}, 8")
    I(f"v_lshlrev_b32 v{vT+3}, 4, v{J16}")
    I(f"s_lshl_b32 s{sTMP}, s{sW}, 20" if not fakeq else f"s_lshl_b32 s{sTMP}, s{sB}, 19")
    I(f"s_lshl_b32 s{sTMP2}, s{sH}, 8")
    I(f"s_add_u32 s{sTMP}, s{sTMP}, s{sTMP2}")
    I(f"v_lshlrev_b32 v{vWQ}, {17 if fakeq else 18}, v{SS}")
    I(f"v_add3_u32 v{vWQ}, v{vWQ}, v{vT+3}, s{sTMP}")
    if rotq:
        I(f"s_mul_i32 s{sRQ}, s{sB}, {rotq // 2}")
        I(f"v_add_u32 v{vT+7}, s{sRQ}, v{vLANE}")
        I(f"v_and_b32 v{vT+7}, 15, v{vT+7}")
        I(f"v_and_or_b32 v{vT+7}, v{vLANE}, 48, v{vT+7}")
        I(f"v_lshlrev_b32 v{vT+7}, 2, v{vT+7}")
        I(f"s_lshl_b32 s{sRQ}, s{sRQ}, 14")
    a.C("workgroups start their sweep at different 16 KiB steps (spreads workgroups over DRAM channels/banks)")
    if isinstance(stg, (list, tuple)):
        I(f"s_mov_b32 s{sISS}, 0")
        for k_, cf in enumerate(stg):
            if cf:
                I(f"s_bitcmp1_b32 s2, {k_}")
                I(f"s_cselect_b32 s{sWOFF}, {sum(((cf >> q) & 1) << cbits[q] for q in range(6))}, 0")
                if HOLES: I(f"s_or_b32 s{sISS}, s{sISS}, {HOLES}")
                I(f"s_add_u32 s{sISS}, s{sISS}, s{sWOFF}")
                if HOLES: I(f"s_and_b32 s{sISS}, s{sISS}, {CM}")
        I(f"s_and_b32 s{sISS}, s{sISS}, {CM}")
    elif stg == 2:
        I(f"s_and_b32 s{sISS}, s{sH}, 15"); I(f"s_lshl_b32 s{sISS}, s{sISS}, 14")
    elif stg == 3:
        I(f"s_sub_u32 s{sISS}, 64, s{sH}"); I(f"s_and_b32 s{sISS}, s{sISS}, 63"); I(f"s_lshl_b32 s{sISS}, s{sISS}, 14")
    elif stg == 4:
        I(f"s_and_b32 s{sISS}, s2, 63"); I(f"s_lshl_b32 s{sISS}, s{sISS}, 14")
    elif stg == 5:
        I(f"s_mul_i32 s{sISS}, s2, 5"); I(f"s_bfe_u32 s{sISS}, s{sISS}, 0x60002"); I(f"s_lshl_b32 s{sISS}, s{sISS}, 14")
    else:
        I(f"s_lshl_b32 s{sISS}, s{sH}, 14" if stg else f"s_mov_b32 s{sISS}, 0")
    I("s_waitcnt lgkmcnt(0)")
    pstamp(0)
    def mk(b, plo, offlo, size, offhi=None):
        if offlo is None:
            I(f"s_mov_b32 s{b}, s{plo}"); I(f"s_mov_b32 s{b+1}, s{plo+1}")
        else:
            I(f"s_add_u32 s{b}, s{plo}, {offlo}"); I(f"s_addc_u32 s{b+1}, s{plo+1}, 0")
        I(f"s_mov_b32 s{b+2}, {size}"); I(f"s_mov_b32 s{b+3}, 0x20000")
    I(f"s_lshl_b32 s{sTMP}, s{sB}, 10")
    mk(sX, 60, f"s{sTMP}", 1024)
    I(f"s_lshl_b32 s{sTMP}, s2, 20")
    if tab:
        I(f"s_lshl_b32 s{sTMP2}, s2, 4")
        I(f"s_load_dwordx4 s[12:15], s[70:71], s{sTMP2}")
        I("s_waitcnt lgkmcnt(0)")
        I(f"s_mov_b32 s{sISS}, s12"); I(f"s_mov_b32 s{sTMP}, s13"); I(f"s_mov_b32 s{sRQ}, s14")
    mk(sK, 62, f"s{sTMP}", 1 << 20)
    xl = [I(f"buffer_load_dword v{vT+8+i}, v{vT+7 if rotq else vROW}, {srd(sX)}, s{sROT+i} offen") for i in range(4)]
    issued = [0]
    kvid = {}
    def issue_kv():
        g = issued[0]; issued[0] += 1
        alloc(g)
        s = sK if g < 256 else sV
        if g == 256 and not stg: I(f"s_mov_b32 s{sISS}, 0")
        kvid[g] = I(f"buffer_load_dwordx4 {slot_of[g][0]}[{slot(g)}:{slot(g)+3}], v{vKV2 if (swp and ((g & 255) // swp) & 1) else vKV}, {srd(s)}, s{sISS} offen offset:{(g&3)*1024}{kp if g < 256 else vp}")
        if (g & 3) == 3 and (stg or g != 255) and g != 511:
            if HOLES: I(f"s_or_b32 s{sISS}, s{sISS}, {HOLES}")
            I(f"s_add_u32 s{sISS}, s{sISS}, {1 << cbits[0]}")
            if stg: I(f"s_and_b32 s{sISS}, s{sISS}, {CM}")
    wqid = []
    def issue_wq():
        f = len(wqid)
        if rotq:
            I(f"s_add_u32 s{sWOFF}, s{sRQ}, {f*8192}")
            I(f"s_and_b32 s{sWOFF}, s{sWOFF}, 0x3ffff")
        else: I(f"s_mov_b32 s{sWOFF}, {f*8192}")
        wqid.append(I(f"buffer_load_dwordx4 a[{4*f}:{4*f+3}], v{vWQ}, {srd(sWQ)}, s{sWOFF} offen{qp}"))
    mk(sWQ, 66, None, 4 << 20)
    seq = ['K'] * kfirst
    acc = 0
    nwq = 0
    while nwq < NWQ:
        seq.append('W'); nwq += 1
        acc += ratio[0]
        while acc >= ratio[1] and nwq < NWQ:
            seq.append('K'); acc -= ratio[1]
    seqid = []
    def issue_seq(n):
        if seq[n] == 'K': issue_kv()
        else: issue_wq()
        seqid.append(a.vm - 1)
    seqpos = 0
    while seqpos < min(M, len(seq)):
        issue_seq(seqpos); seqpos += 1
    I(f"s_lshl_b32 s{sTMP2}, s{sTB}, 7")
    I(f"s_load_dwordx2 s[{sTAG}:{sTAG+1}], s[82:83], s{sTMP2}")
    I(f"s_lshl_b32 s{sTMP2}, s{sB}, 7")
    I(f"s_load_dwordx2 s[{sTAGP}:{sTAGP+1}], s[82:83], s{sTMP2}")
    mk(sV, 64, f"s{sRQ}" if tab else f"s{sTMP}", 1 << 20)
    I(f"s_lshl_b32 s{sTMP}, s{sH}, 17")
    mk(sWO, 68, f"s{sTMP}", 1 << 17)
    I(f"s_lshl_b32 s{sTMP}, s{sJF}, 16")
    mk(sWD, 76, f"s{sTMP}", 1 << 16)
    I(f"s_cmp_ge_u32 s{sTC}, 28")
    I(f"s_cselect_b32 s{sWD+2}, 0, s{sWD+2}")
    I(f"s_lshl_b32 s{sTMP}, s{sTB}, 10")
    mk(sXT, 60, f"s{sTMP}", 1024)
    mk(sOUT, 78, None, 8192)
    mk(sWS, 82, None, 0xa00000)
    I(f"s_lshl_b32 s{sTMP}, s{sW}, 8")
    I(f"v_lshlrev_b32 v{vWO}, 15, v{SS}")
    I(f"v_add3_u32 v{vWO}, v{vWO}, v{vT+3}, s{sTMP}")
    I(f"v_lshlrev_b32 v{vWD}, 14, v{SS}")
    I(f"v_add3_u32 v{vWD}, v{vWD}, v{vT+3}, s{sTMP}")
    I(f"v_cmp_gt_u32 vcc, 8, v{J16}")
    I(f"v_mov_b32 v{vT+4}, s74")
    I(f"v_mov_b32 v{vT+5}, s72")
    I(f"v_cndmask_b32 v{vGU}, v{vT+4}, v{vT+5}, vcc")
    I(f"v_mov_b32 v{vT+4}, s75")
    I(f"v_mov_b32 v{vT+5}, s73")
    I(f"v_cndmask_b32 v{vGU+1}, v{vT+4}, v{vT+5}, vcc")
    I(f"s_mul_i32 s{sTMP}, s{sW}, {128*3584}")
    I(f"s_lshl_b32 s{sTMP2}, s{sJF}, 7")
    I(f"s_add_u32 s{sTMP}, s{sTMP}, s{sTMP2}")
    I(f"v_mul_u32_u24 v{vT+4}, {32*3584}, v{SS}")
    I(f"v_and_b32 v{vT+5}, 0x70, v{vT+3}")
    I(f"v_add3_u32 v{vT+4}, v{vT+4}, v{vT+5}, s{sTMP}")
    I(f"s_cmp_ge_u32 s{sTC}, 28")
    I(f"s_cselect_b32 s{sTMP}, 0, -1")
    I(f"s_cselect_b32 s{sGUSTEP}, 0, 7168")
    I(f"v_and_b32 v{vT+4}, s{sTMP}, v{vT+4}")
    I(f"v_mov_b32 v{vT+5}, 0")
    I(f"v_lshl_add_u64 v[{vGU}:{vGU+1}], v[{vT+4}:{vT+5}], 0, v[{vGU}:{vGU+1}]")
    I(f"s_mov_b32 s{sGUSTEP+1}, 0")
    I(f"s_lshl_b32 s{sTMP}, s{sW}, 9")
    I(f"v_lshlrev_b32 v{vLW}, 5, v{J16}")
    I(f"v_lshlrev_b32 v{vT+4}, 3, v{SS}")
    I(f"v_add3_u32 v{vLW}, v{vLW}, v{vT+4}, s{sTMP}")
    I(f"s_lshl_b32 s{sTMP}, s2, 12")
    I(f"v_lshl_add_u32 v{vPUB}, v{vLW}, 1, s{sTMP}")
    I(f"s_lshl_b32 s{sTMP}, s{sTB}, 17")
    I(f"s_lshl_b32 s{sTMP2}, s{sTC}, 7")
    I(f"s_add_u32 s{sTMP}, s{sTMP}, s{sTMP2}")
    I(f"s_lshl_b32 s{sTMP2}, s{sW}, 5")
    I(f"s_add_u32 s{sTMP}, s{sTMP}, s{sTMP2}")
    I(f"v_lshrrev_b32 v{vGAT}, 1, v{vLANE}")
    I(f"v_lshlrev_b32 v{vGAT}, 12, v{vGAT}")
    I(f"v_and_b32 v{vT+4}, 16, v{vT+3}")
    I(f"v_add3_u32 v{vGAT}, v{vGAT}, v{vT+4}, s{sTMP}")
    if halfx:
        I(f"s_lshl_b32 s{sTMP}, s{sTB}, 17")
        I(f"s_lshl_b32 s{sTMP2}, s{sTC}, 6")
        I(f"s_add_u32 s{sTMP}, s{sTMP}, s{sTMP2}")
        I(f"s_lshr_b32 s{sTMP2}, s{sW}, 1")
        I(f"s_lshl_b32 s{sTMP2}, s{sTMP2}, 5")
        I(f"s_add_u32 s{sTMP}, s{sTMP}, s{sTMP2}")
        I(f"v_lshrrev_b32 v{vGAT}, 1, v{vLANE}")
        I(f"v_lshlrev_b32 v{vGAT}, 12, v{vGAT}")
        I(f"v_add3_u32 v{vGAT}, v{vGAT}, v{vT+4}, s{sTMP}")
        I(f"s_lshl_b32 s{sTMP}, s2, 12")
        I(f"v_lshlrev_b32 v{vT+4}, 3, v{SS}")
        I(f"v_add3_u32 v{vPUB}, v{vLW}, v{vT+4}, s{sTMP}")
    I(f"s_mov_b32 s{sGOFF}, {P1OFF}")
    I(f"v_lshlrev_b32 v{vHROW}, 4, v{vLANE}")
    I(f"v_lshlrev_b32 v{vLO}, 3, v{vLANE}")
    I(f"v_add_u32 v{vLO}, {LO}, v{vLO}")
    I(f"v_add_u32 v{vLGU}, {LGU}, v{vROW}")
    I(f"v_lshlrev_b32 v{vLQ}, 5, v{J16}")
    I(f"v_and_b32 v{vHST}, 4, v{vROW}")
    I(f"v_and_b32 v{vT+4}, 3, v{vLANE}")
    I(f"v_mov_b32 v{vT+5}, 0xffff")
    I(f"v_mov_b32 v{vT+6}, 0xffff0000")
    I(f"v_mov_b32 v{vM0}, 0")
    I(f"v_mov_b32 v{vM1}, 0")
    for val, dst, src in ((0, vM0, vT+5), (1, vM0, vT+6), (2, vM1, vT+5), (3, vM1, vT+6)):
        I(f"v_cmp_eq_u32 vcc, {val}, v{vT+4}")
        I(f"v_cndmask_b32 v{dst}, v{dst}, v{src}, vcc")
    I(f"s_mov_b32 s{sODD}, 0xaaaaaaaa"); I(f"s_mov_b32 s{sODD+1}, 0xaaaaaaaa")
    I(f"s_mov_b32 s{sBIT1}, 0xcccccccc"); I(f"s_mov_b32 s{sBIT1+1}, 0xcccccccc")
    I(f"s_mov_b32 s{sL2E}, {f32(1.4426950408889634)}")
    I(f"s_mov_b32 s{sSCALE}, {f32(128 ** -0.5)}")
    I(f"s_mov_b32 s{sFFFF}, 0xffff")
    I(f"s_mov_b32 s{sP2}, {P2OFF}")
    I(f"s_lshl_b32 s{sTMP}, s{sTB}, 10")
    I(f"s_lshl_b32 s{sTMP2}, s{sTC}, 5")
    I(f"s_add_u32 s{sOUTO}, s{sTMP}, s{sTMP2}")
    I(f"s_lshl_b32 s{sTMP2}, s{sW}, 3")
    I(f"s_add_u32 s{sOUTO}, s{sOUTO}, s{sTMP2}")
    I(f"s_lshl_b32 s{sHST}, s{sOUTO}, 2")
    I(f"s_add_u32 s{sHST}, s{sHST}, {HOFF}")
    I(f"s_lshl_b32 s{sTMP}, s{sTB}, 12")
    I(f"s_lshl_b32 s{sROT}, s{sW}, 10")
    I(f"s_add_u32 s{sROT}, s{sROT}, s{sTMP}")
    I(f"s_add_u32 s{sROT}, s{sROT}, {HOFF}")
    I(f"s_add_u32 s{sHSTA}, s{sHST}, {HAOFF - HOFF}")
    I(f"s_add_u32 s{sROTA}, s{sROT}, {HAOFF - HOFF}")
    I(f"s_mov_b32 s{sP2A}, {P2AOFF}")
    I(f"v_mov_b32 v{vMAX}, 0xff800000")
    I("s_waitcnt lgkmcnt(0)")
    for tg in (sTAG, sTAGP):
        I(f"s_mul_i32 s{tg}, s{tg}, 1664525")
        I(f"s_add_u32 s{tg}, s{tg}, 1013904223")
        I(f"s_mul_i32 s{tg+1}, s{tg+1}, 22695477")
        I(f"s_add_u32 s{tg+1}, s{tg+1}, 1")
    I(f"v_mov_b32 v{vPB+2}, s{sTAGP}")
    I(f"v_mov_b32 v{vPB+3}, s{sTAGP+1}")
    if fixref:
        mk(sDBG if False else 40, 80, None, 256) if False else None
        I(f"s_or_b32 s{sTMP}, s2, s{sW}")
        I(f"s_cmp_lg_u32 s{sTMP}, 0")
        I("s_cbranch_scc1 L_noref")
        I(f"v_mov_b32 v{vT+4}, s{sT0}")
        I(f"v_mov_b32 v{vT+5}, 0")
        I("s_mov_b64 exec, 1")
        a.X(f"global_store_dword v{vT+5}, v{vT+4}, s[80:81] sc1")
        I("s_mov_b64 exec, -1")
        I("L_noref:")
        I(f"s_mov_b64 s[76:77], s[80:81]")
    pstamp(2)
    a.C("LayerNorm(x[b]) with the reference's bf16 roundings, then q = xn @ wq[:, head]")
    a.wait_vm(xl[3])
    pstamp(3)
    X0, X1 = vT, vT + 1
    ln([vT + 8 + i for i in range(4)], vP, vP + 1, vS)
    pstamp(4)
    for u in range(4):
        for r in range(2):
            afrag(vA + 4 * u + 2 * r, vP + r, u)
    base = xl[3] + 1
    fdone = 0
    def do_wq_upto(idx):
        nonlocal fdone
        while fdone < len(wqid) and wqid[fdone] <= idx:
            f = fdone; fdone += 1
            aa, u, r = f >> 3, (f >> 1) & 3, f & 1
            mfma2(vA + 4 * u + 2 * r, "a", 4 * f, aa, f == 0)
    while seqpos < len(seq):
        idx = seqid[seqpos - M]
        a.wait_vm(idx)
        issue_seq(seqpos); seqpos += 1
        do_wq_upto(idx)
    kleft = qextra
    while fdone < NWQ:
        idx = wqid[fdone]
        a.wait_vm(idx)
        while issued[0] - sum(1 for g in kvid if kvid[g] <= idx) < N: issue_kv()
        do_wq_upto(idx)
    for _ in range(qdelay):
        a.wait_vm(kvid[issued[0] - N]); issue_kv()
    pstamp(8)
    swap_reduce(vT)
    I(f"ds_write_b64 v{vLW}, v[{vT}:{vT+1}] offset:{LQ}")
    if qextra > 0: issue_kv()
    I("s_waitcnt lgkmcnt(0)")
    I("s_barrier")
    if qextra > 1: issue_kv()
    pstamp(9)
    for w in range(4):
        I(f"ds_read_b128 v[{vS+8*(w&1)}:{vS+8*(w&1)+3}], v{vLQ} offset:{LQ+w*512}" if w < 2 else f"ds_read_b128 v[{vA+8*(w&1)}:{vA+8*(w&1)+3}], v{vLQ} offset:{LQ+w*512}")
        I(f"ds_read_b128 v[{vS+8*(w&1)+4}:{vS+8*(w&1)+7}], v{vLQ} offset:{LQ+w*512+16}" if w < 2 else f"ds_read_b128 v[{vA+8*(w&1)+4}:{vA+8*(w&1)+7}], v{vLQ} offset:{LQ+w*512+16}")
    I("s_waitcnt lgkmcnt(0)")
    for i in range(8): I(f"v_add_f32 v{vS+i}, v{vS+i}, v{vS+8+i}")
    for i in range(8): I(f"v_add_f32 v{vA+i}, v{vA+i}, v{vA+8+i}")
    for i in range(8): I(f"v_add_f32 v{vS+i}, v{vS+i}, v{vA+i}")
    if qextra > 2: issue_kv()
    for i in range(4): I(f"v_cvt_pk_bf16_f32 v{vQ+i}, v{vS+2*i}, v{vS+2*i+1}")
    stamp()

    side = []
    side_last = [0]
    def mkside():
        def clr():
            I(f"s_and_b32 s{sTMP}, s{sOUTO}, 1023")
            I(f"buffer_load_dword v{vXRES}, v{vHST}, {srd(sXT)}, s{sTMP} offen")
        side.append(clr)
        def wo(f):
            def g():
                assert 128 + 4 * f not in busy_a
                I(f"s_mov_b32 s{sWOFF}, {(f>>2)*4096}")
                I(f"buffer_load_dwordx4 a[{128+4*f}:{128+4*f+3}], v{vWO}, {srd(sWO)}, s{sWOFF} offen offset:{(f&3)*1024}{wp}")
            return g
        def gu(f):
            def g():
                side_last[0] = I(f"global_load_dwordx4 a[{4*f}:{4*f+3}], v[{vGU}:{vGU+1}], off offset:{(f&1)*3584}{fp}")
                if f & 1: I(f"v_lshl_add_u64 v[{vGU}:{vGU+1}], v[{vGU}:{vGU+1}], 0, s[{sGUSTEP}:{sGUSTEP+1}]")
            return g
        def wd(f):
            def g():
                I(f"s_mov_b32 s{sWOFF}, {(f>>2)*4096}")
                I(f"buffer_load_dwordx4 v[{vWDF+4*f}:{vWDF+4*f+3}], v{vWD}, {srd(sWD)}, s{sWOFF} offen offset:{(f&3)*1024}{fp}")
            return g
        for f in range(32): side.append(wo(f))
        for f in range(32): side.append(gu(f))
        for f in range(16): side.append(wd(f))
    mkside()
    if noside: side = side[:1]
    deferred = side[len(side) - ND:] if ND else []
    side = side[:len(side) - ND]
    late_cs = ND > 16
    side_steps = {}
    for k in range(len(side)):
        pos = wstart + (wend - wstart) * k // len(side)
        side_steps.setdefault(pos, []).append(side[k])

    work = []
    def push_group(g4):
        B, aa = g4 >> 2, g4 & 3
        def D(e):
            def f():
                src = []
                for c in range(4):
                    g = 4 * g4 + c
                    if slot_of[g][0] == "a":
                        I(f"v_accvgpr_read_b32 v{vA+c}, a{slot(g)+e}"); src.append(vA + c)
                    else: src.append(slot(g) + e)
                for c in range(4):
                    I(f"v_dot2_f32_bf16 v{vP+c}, v{src[c]}, v{vQ+e}, " + ("0" if e == 0 else f"v{vP+c}"))
                if e == 3:
                    for c in range(4): release(4 * g4 + c)
            return f
        def Rd():
            I(f"v_add_f32_dpp v{vP}, v{vP}, v{vP} row_ror:8 row_mask:0xf bank_mask:0x3")
            I(f"v_add_f32_dpp v{vP+1}, v{vP+1}, v{vP+1} row_ror:8 row_mask:0xf bank_mask:0x3")
            I(f"v_add_f32_dpp v{vP}, v{vP+2}, v{vP+2} row_ror:8 row_mask:0xf bank_mask:0xc")
            I(f"v_add_f32_dpp v{vP+1}, v{vP+3}, v{vP+3} row_ror:8 row_mask:0xf bank_mask:0xc")
            I(f"v_add_f32_dpp v{vG+aa}, v{vP}, v{vP} row_half_mirror row_mask:0xf bank_mask:0x5")
            I(f"v_add_f32_dpp v{vG+aa}, v{vP+1}, v{vP+1} row_half_mirror row_mask:0xf bank_mask:0xa")
        def F1():
            for q in range(4):
                I(f"v_add_f32_dpp v{vG+q}, v{vG+q}, v{vG+q} quad_perm:[1,0,3,2] row_mask:0xf bank_mask:0xf")
            I(f"v_cndmask_b32 v{vG}, v{vG}, v{vG+1}, s[{sODD}:{sODD+1}]")
            I(f"v_cndmask_b32 v{vG+2}, v{vG+2}, v{vG+3}, s[{sODD}:{sODD+1}]")
            I(f"v_add_f32_dpp v{vG}, v{vG}, v{vG} quad_perm:[2,3,0,1] row_mask:0xf bank_mask:0xf")
            I(f"v_add_f32_dpp v{vG+2}, v{vG+2}, v{vG+2} quad_perm:[2,3,0,1] row_mask:0xf bank_mask:0xf")
            I(f"v_cndmask_b32 v{vS+B}, v{vG}, v{vG+2}, s[{sBIT1}:{sBIT1+1}]")
        def F2():
            I(f"v_cvt_pk_bf16_f32 v{vS+B}, v{vS+B}, v{vS+B}")
            I(f"v_and_b32 v{vS+B}, 0xffff0000, v{vS+B}")
            I(f"v_mul_f32 v{vS+B}, s{sSCALE}, v{vS+B}")
            I(f"v_cvt_pk_bf16_f32 v{vS+B}, v{vS+B}, v{vS+B}")
            I(f"v_and_b32 v{vS+B}, 0xffff0000, v{vS+B}")
            I(f"v_max_f32 v{vMAX}, v{vMAX}, v{vS+B}")
        work.extend([D(0), D(1), D(2), D(3), Rd])
        if aa == 3: work.extend([F1, F2])
    if pf or pft:
        I(f"s_getpc_b64 s[{sPC}:{sPC+1}]")
        I("L_pc:")
        I(f"s_lshl_b32 s{sTMP}, s{sW}, 7")
        I(f"s_add_u32 s{sPC}, s{sPC}, s{sTMP}")
        I(f"s_addc_u32 s{sPC+1}, s{sPC+1}, 0")
    def codepf(i):
        if i % 16 == 0: I(f"L_blk{i // 16}:")
        if pf and i % 16 == 3 and i // 16 + pfd < 32:
            I(f"s_mov_b32 s{sPFD-1}, L_blk{i // 16 + pfd}-L_pc")
            for k in range(pf if i // 16 + pfd < 17 else (pf + 1) // 2 + 1):
                I(f"s_load_dword s{sPFD}, s[{sPC}:{sPC+1}], s{sPFD-1} offset:{512 * k}")
        if pft and i == 451:
            I(f"s_mov_b32 s{sPFD-1}, L_tail-L_pc")
            for k in range(6):
                I(f"s_load_dword s{sPFD}, s[{sPC}:{sPC+1}], s{sPFD-1} offset:{512 * k}")
    a.C("K phase: 16 blocks of 64 keys per wave; weight slices for the tail are loaded in between")
    I1 = issued[0]
    boost = fB or fC or ctl
    I(f"s_mov_b32 s{sLVL}, 0")
    def nominal(i):
        ns = sum(len(v) for k, v in side_steps.items() if k <= i)
        return T0 + Ts * (i + 1) + Tside * ns
    def control(i):
        if not ctl or i < ustart: return
        if i % U == 0: I(f"s_memrealtime s[{sNOW}:{sNOW+1}]")
        if i % U == 2:
            a.C("window level = how far this wave is behind the expected stream position")
            I("s_waitcnt lgkmcnt(0)")
            I(f"s_sub_u32 s{sLVL}, s{sNOW}, s{sT0}")
            I(f"s_sub_i32 s{sLVL}, s{sLVL}, {int(nominal(i - 3) / 10)}")
            I(f"s_mul_i32 s{sLVL}, s{sLVL}, {int(65536 * 10 / dl)}")
            I(f"s_ashr_i32 s{sLVL}, s{sLVL}, 16")
    if fB:
        I(f"s_getreg_b32 s{sTMP}, hwreg(HW_REG_XCC_ID, 0, 1)")
        I(f"s_cmp_eq_u32 s{sTMP}, 0")
        I("s_cselect_b64 vcc, -1, 0")
    accs = [0.0, 0.0]
    def paced1(i, n):
        tgt = min(i + 2 + n, 512)
        if issued[0] >= tgt: return
        if issued[0] == tgt - 1 and i + 1 in kvid:
            accs[1] += fC; accs[0] += fB
            if ctl and i > ustart and i % cands == 0:
                j = (i // cands) % nl
                th = int(format(j, f"0{nl.bit_length()-1}b")[::-1], 2) + 1
                I(f"s_cmp_ge_i32 s{sLVL}, {th}")
                I(f"s_cbranch_scc1 L_b{i}")
                I(f"s_waitcnt vmcnt({a.vm - 1 - kvid[i+1]})")
                I(f"L_b{i}:")
            elif accs[1] >= 1: accs[1] -= 1
            elif accs[0] >= 1:
                accs[0] -= 1
                I(f"s_cbranch_vccnz L_b{i}")
                I(f"s_waitcnt vmcnt({a.vm - 1 - kvid[i+1]})")
                I(f"L_b{i}:")
            else: a.wait_vm(kvid[i + 1])
        while issued[0] < tgt: issue_kv()
    def paced2(i, n):
        tgt = min(i + 3 + n, 512)
        if issued[0] >= tgt: return
        while issued[0] < tgt - 1:
            a.wait_vm(kvid[issued[0] - n]); issue_kv()
        if i <= ustart:
            a.wait_vm(kvid[i + 2])
        else:
            k = i & 15
            ta = 1 if k == 0 else 2 if k == 8 else 3 if k % 4 == 0 else 4 if k % 2 == 0 else 5
            tb = 6 if k % 4 == 0 else 7 if k % 2 == 0 else 8
            if ta > cap:
                a.wait_vm(kvid[i + 2])
            else:
                if tb > cap: a.wait_vm(kvid[i + 1])
                elif kvid[i + 1] >= a.vm_done:
                    I(f"s_cmp_ge_i32 s{sLVL}, {tb}")
                    I(f"s_cbranch_scc1 L_b{i}")
                    I(f"s_waitcnt vmcnt({a.vm - 1 - kvid[i+1]})")
                I(f"s_cmp_ge_i32 s{sLVL}, {ta}")
                I(f"s_cbranch_scc1 L_b{i}")
                I(f"s_waitcnt vmcnt({a.vm - 1 - kvid[i+2]})")
                I(f"L_b{i}:")
        issue_kv()
    paced = paced2 if two else paced1
    for i in range(256):
        a.wait_vm(kvid[i])
        control(i)
        codepf(i)
        if boost and i + 1 + N >= I1 + i // cu: paced(i, N)
        tgt = max(i + 1 + N, I1 + i // cu)
        while issued[0] < tgt: issue_kv()
        for fn in side_steps.get(i, []): fn()
        if kstamps and i % 32 == 31: pstamp(i // 32, True)
        if (i & 3) == 3:
            if nokc and i > 64:
                for c in range(4): release(i - 3 + c)
            else: push_group(i >> 2)
        n = 1 if len(work) <= 4 - (i & 3) + 0 else 2
        for _ in range(min(n, len(work))): work.pop(0)()
    nV = NV or N
    xleft = [Tx]
    def xissue():
        if xleft[0] > 0:
            xleft[0] -= 1; issue_kv()
    while work: work.pop(0)()
    stamp()
    a.C("softmax: wave max/sum, exchange (max, sum) through LDS, p = bf16(exp(s - max) / sum)")
    xissue()
    wave_reduce(vMAX, vT, "v_max_f32")
    I(f"v_mul_f32 v{vT}, s{sL2E}, v{vMAX}")
    for B in range(16): I(f"v_fma_f32 v{vS+B}, v{vS+B}, s{sL2E}, -v{vT}")
    for B in range(16): I(f"v_exp_f32 v{vS+B}, v{vS+B}")
    xissue()
    for k in range(8): I(f"v_add_f32 v{vA+k}, v{vS+2*k}, v{vS+2*k+1}")
    for k in range(4): I(f"v_add_f32 v{vA+k}, v{vA+k}, v{vA+4+k}")
    for k in range(2): I(f"v_add_f32 v{vA+k}, v{vA+k}, v{vA+2+k}")
    I(f"v_add_f32 v{vT+3}, v{vA}, v{vA+1}")
    wave_reduce(vT + 3, vT + 1, "v_add_f32")
    I(f"v_mov_b32 v{vT+2}, v{vT}")
    I(f"s_lshl_b32 s{sTMP}, s{sW}, 3")
    I(f"v_mov_b32 v{vT+1}, s{sTMP}")
    I("s_mov_b64 exec, 1")
    I(f"ds_write_b64 v{vT+1}, v[{vT+2}:{vT+3}] offset:{LML}")
    I("s_mov_b64 exec, -1")
    I(f"v_mov_b32 v{vT+1}, 0")
    xissue()
    I("s_waitcnt lgkmcnt(0)")
    I("s_barrier")
    xissue()
    I(f"ds_read_b128 v[{vA}:{vA+3}], v{vT+1} offset:{LML}")
    I(f"ds_read_b128 v[{vA+4}:{vA+7}], v{vT+1} offset:{LML+16}")
    I("s_waitcnt lgkmcnt(0)")
    I(f"v_max3_f32 v{vT+5}, v{vA}, v{vA+2}, v{vA+4}")
    I(f"v_max_f32 v{vT+5}, v{vT+5}, v{vA+6}")
    for k in range(4): I(f"v_sub_f32 v{vA+2*k}, v{vA+2*k}, v{vT+5}")
    I(f"v_sub_f32 v{vT}, v{vT}, v{vT+5}")
    for k in range(4): I(f"v_exp_f32 v{vA+2*k}, v{vA+2*k}")
    I(f"v_exp_f32 v{vT}, v{vT}")
    I(f"v_mul_f32 v{vA}, v{vA}, v{vA+1}")
    I(f"v_mul_f32 v{vA+4}, v{vA+4}, v{vA+5}")
    I(f"v_fmac_f32 v{vA}, v{vA+2}, v{vA+3}")
    I(f"v_fmac_f32 v{vA+4}, v{vA+6}, v{vA+7}")
    I(f"v_add_f32 v{vA}, v{vA}, v{vA+4}")
    I(f"v_rcp_f32 v{vA}, v{vA}")
    I(f"v_mul_f32 v{vT}, v{vT}, v{vA}")
    while xleft[0] > 0: xissue()
    for B in range(16): I(f"v_mul_f32 v{vS+B}, v{vS+B}, v{vT}")
    for B in range(16): I(f"v_cvt_pk_bf16_f32 v{vS+B}, v{vS+B}, v{vS+B}")
    stamp()
    a.C("V phase: o += p * V")
    hu_done = []
    cnt_id = None
    for i in range(256, 512):
        B, t = (i - 256) >> 4, i & 15
        u, c = t >> 2, t & 3
        A = vA + 2 * ((i >> 2) & 1)
        if i == 256: afrag(A, vS, 0)
        a.wait_vm(kvid[i])
        if not (NE and i >= 512 - E): control(i)
        codepf(i)
        if boost and not (NE and i >= 512 - E): paced(i, nV)
        tgt = min(i + 1 + (NE if (NE and i >= 512 - E) else nV), 512)
        while issued[0] < tgt: issue_kv()
        for fn in side_steps.get(i, []): fn()
        if issued[0] == 512:
            for _ in range(min(dper, len(deferred))): deferred.pop(0)()
            if hu and not hu_done and i >= 511 - 8 + hlead:
                hu_done.append(1)
                I(f"s_lshl_b32 s{sFL}, s2, 7")
                I(f"s_add_u32 s{sFL}, s{sFL}, {FLOFF}")
                I(f"s_cmp_lg_u32 s{sW}, 0")
                I("s_cbranch_scc1 L_nohu")
                I("s_mov_b64 exec, 1")
                a.X(f"buffer_store_dwordx4 v[{vPB}:{vPB+3}], v{vHROW}, {srd(sWS)}, s{sFL} offen {spol}")
                I("s_mov_b64 exec, -1")
                I("L_nohu:")
                I(f"s_lshl_b32 s{sFL}, s{sTB}, 12")
                I(f"s_add_u32 s{sFL}, s{sFL}, {FLOFF}")
                I(f"v_lshrrev_b32 v{vMAX}, 1, v{vLANE}")
                I(f"v_lshlrev_b32 v{vMAX}, 7, v{vMAX}")
                I(f"s_mov_b32 s{sC1}, {P1B}")
                I(f"s_mov_b32 s{sC2}, {P1C}")
        mfma2(A, "v", slot(i), c, i == 256)
        release(i)
        if kstamps and i % 32 == 31: pstamp(i // 32, True)
        if fast and i == pretouch:
            I(f"buffer_load_dwordx4 v[{vT+4}:{vT+7}], v{vHROW}, {srd(sWS)}, s{sROTA} offen sc1")
        if fast and i == pretouch + 4:
            I(f"buffer_load_dwordx4 v[{vT+4}:{vT+7}], v{vGAT}, {srd(sWS)}, s{sP2A} offen sc1")
        if late_cs: pass
        elif i == cs_start - 1:
            assert side_last[0] < a.vm_done
            I(f"v_and_b32 v{vA+4}, 0x3f803f80, v{vM0}")
            I(f"v_and_b32 v{vA+5}, 0x3f803f80, v{vM1}")
        if not late_cs and cs_start <= i < cs_start + 32:
            mfma2(vA + 4, "a", 4 * (i - cs_start), 0, i == cs_start, acc=vT + 8)
        if not late_cs and i == cs_start + 33:
            swap_reduce(vT, acc=vT + 8)
            I(f"ds_write_b64 v{vLW}, v[{vT}:{vT+1}] offset:{LCS}")
        if c == 0 and i + 4 < 512:
            j = i + 4
            afrag(vA + 2 * ((j >> 2) & 1), vS + ((j - 256) >> 4), (j & 15) >> 2)
    stamp()
    a.C("tail: reduce o over the waves, o @ wo slice, publish, then the three hand-offs")
    I("L_tail:")
    tstamp()
    FS = RING0 + 48
    if hu: a.X(f"buffer_load_dwordx4 v[{FS}:{FS+3}], v{vMAX}, {srd(sWS)}, s{sFL} offen {lpol}")
    swap_reduce(vT)
    I(f"ds_write_b64 v{vLW}, v[{vT}:{vT+1}] offset:{LO}")
    for _ in range(min(3, len(deferred))): deferred.pop(0)()
    I("s_waitcnt lgkmcnt(0)")
    tstamp()
    I("s_barrier")
    tstamp()
    I(f"ds_read2_b64 v[{vT}:{vT+3}], v{vLO} offset0:0 offset1:64")
    I(f"ds_read2_b64 v[{vT+4}:{vT+7}], v{vLO} offset0:128 offset1:192")
    vCS = vS
    def read_cs():
        for w in range(4):
            I(f"ds_read2st64_b32 v[{vCS+2*w}:{vCS+2*w+1}], v{vLGU} offset0:{(LCS-LGU)//256+2*w} offset1:{(LCS-LGU)//256+2*w+1}")
    if not late_cs: read_cs()
    for _ in range(min(3, len(deferred))): deferred.pop(0)()
    I("s_waitcnt lgkmcnt(0)" if (tstamps or late_cs) else "s_waitcnt lgkmcnt(4)")
    tstamp()
    I(f"v_add_f32 v{vT}, v{vT}, v{vT+2}")
    I(f"v_add_f32 v{vT+1}, v{vT+1}, v{vT+3}")
    I(f"v_add_f32 v{vT+4}, v{vT+4}, v{vT+6}")
    I(f"v_add_f32 v{vT+5}, v{vT+5}, v{vT+7}")
    I(f"v_add_f32 v{vT}, v{vT}, v{vT+4}")
    I(f"v_add_f32 v{vT+1}, v{vT+1}, v{vT+5}")
    I(f"v_cvt_pk_bf16_f32 v{vP}, v{vT}, v{vT}")
    I(f"v_cvt_pk_bf16_f32 v{vP+1}, v{vT+1}, v{vT+1}")
    gemv_il([vP, vP + 1], "a", 128, deferred)
    tstamp()
    swap_reduce(vPB)
    tstamp()
    if halfx: I("s_mov_b32 exec_hi, 0")
    I(f"buffer_store_dwordx4 v[{vPB}:{vPB+3}], v{vPUB}, {srd(sWS)}, s{sGOFF} offen {spol}")
    if halfx: I("s_mov_b64 exec, -1")
    if hu and K1 > 1: I(f"buffer_store_dwordx4 v[{vPB}:{vPB+3}], v{vPUB}, {srd(sWS)}, s{sC1} offen {spol}")
    if hu and K1 > 2: I(f"buffer_store_dwordx4 v[{vPB}:{vPB+3}], v{vPUB}, {srd(sWS)}, s{sC2} offen {spol}")
    stamp()
    vR = vG
    vPUB2 = vWQ

    def poll(label, S, voff, soff, nres, pre=None, th=0, soffA=None, lazy=None, delay=0):
        ld = lambda so: f"buffer_load_dwordx4 v[{S}:{S+3}], v{voff}, {srd(sWS)}, s{so} offen {lpol}"
        def check():
            I("s_waitcnt vmcnt(0)")
            I(f"v_cmp_eq_u64 vcc, s[{sTAG}:{sTAG+1}], v[{S+2}:{S+3}]")
            for r in range(nres): I(f"v_cndmask_b32 v{vR+r}, v{vR+r}, v{S+r}, vcc")
            I("s_andn2_b64 exec, exec, vcc")
            I(f"s_cbranch_scc0 {label}_ok")
        if delay:
            if pre: pre()
            a.C("back off before the first poll: reading a line before it is written slows the write down")
            I(f"s_sleep {delay}")
        a.X(ld(soffA if soffA else soff))
        if pre and not delay: pre()
        I(f"s_mov_b32 s{sCNT}, {SPIN}")
        I(f"{label}:")
        check()
        if th:
            I(f"s_bcnt1_i32_b64 s{sTMP}, exec")
            I(f"s_cmp_le_u32 s{sTMP}, {th}")
            I(f"s_cbranch_scc1 {label}_f")
            I(f"s_sleep {slow}")
            I(f"{label}_f:")
        if psl and not th: I(f"s_sleep {psl}")
        I(f"s_sub_u32 s{sCNT}, s{sCNT}, 1")
        if soffA:
            I(f"s_and_b32 s{sTMP}, s{sCNT}, {NA-1}")
            I(f"s_cselect_b32 s{sTMP}, s{soffA}, s{soff}")
            if lazy:
                I(f"s_cbranch_scc1 {label}_n")
                I("s_mov_b64 s[8:9], exec")
                I("s_mov_b64 exec, 3")
                a.X(lazy)
                I("s_mov_b64 exec, s[8:9]")
                I(f"{label}_n:")
            a.X(ld(sTMP))
        else:
            a.X(ld(soff))
        I(f"s_cmp_lg_u32 s{sCNT}, 0")
        I(f"s_cbranch_scc1 {label}")
        I(f"{label}_ok:")
        I("s_mov_b64 exec, -1")

    def sample(label, S, voff, soffs, nres, gap):
        ld = lambda k: f"buffer_load_dwordx4 v[{S+4*k}:{S+4*k+3}], v{voff}, {srd(sWS)}, s{soffs[k]} offen {lpol}"
        def check(k, cnt):
            I(f"s_waitcnt vmcnt({cnt})")
            I(f"v_cmp_eq_u64 vcc, s[{sTAG}:{sTAG+1}], v[{S+4*k+2}:{S+4*k+3}]")
            for r in range(nres): I(f"v_cndmask_b32 v{vR+r}, v{vR+r}, v{S+4*k+r}, vcc")
            I("s_andn2_b64 exec, exec, vcc")
            I(f"s_cbranch_scc0 {label}_ok")
        n = len(soffs)
        a.X(ld(0))
        for k in range(1, n):
            I(f"s_sleep {gap}")
            a.X(ld(k))
            check(k - 1, 1)
        I(f"s_mov_b32 s{sCNT}, {SPIN}")
        I(f"{label}:")
        check(n - 1, 0)
        I(f"s_sub_u32 s{sCNT}, s{sCNT}, 1")
        a.X(ld(n - 1))
        I(f"s_cmp_lg_u32 s{sCNT}, 0")
        I(f"s_cbranch_scc1 {label}")
        I(f"{label}_ok:")
        I("s_mov_b64 exec, -1")

    def colsum():
        x0, x1, t0, t1 = vR, vR + 1, vT + 2, vT + 3
        for r in (8, 4, 2):
            I(f"v_add_f32_dpp v{x0}, v{x0}, v{x0} row_ror:{r} row_mask:0xf bank_mask:0xf")
            I(f"v_add_f32_dpp v{x1}, v{x1}, v{x1} row_ror:{r} row_mask:0xf bank_mask:0xf")
        for sw in ("v_permlane16_swap_b32", "v_permlane32_swap_b32"):
            I(f"v_mov_b32 v{t0}, v{x0}")
            I(f"v_mov_b32 v{t1}, v{x1}")
            I(f"{sw} v{x0}, v{t0}")
            I(f"{sw} v{x1}, v{t1}")
            I(f"v_add_f32 v{x0}, v{x0}, v{t0}")
            I(f"v_add_f32 v{x1}, v{x1}, v{t1}")
        I(f"v_cvt_pk_bf16_f32 v{x0}, v{x0}, v{x1}")
        I(f"v_lshlrev_b32 v{t0}, 16, v{x0}")
        I(f"v_and_b32 v{t1}, 0xffff0000, v{x0}")

    def pre1():
        I(f"s_lshl_b32 s{sTMP}, s{sTB}, 5")
        I(f"s_add_u32 s{sTMP}, s{sTMP}, s{sTC}")
        I(f"s_lshl_b32 s{sTMP}, s{sTMP}, 12")
        I(f"v_lshl_add_u32 v{vPUB2}, v{vLW}, 1, s{sTMP}")
        I(f"v_mov_b32 v{vPB+2}, s{sTAG}")
        I(f"v_mov_b32 v{vPB+3}, s{sTAG+1}")
        I(f"s_getreg_b32 s{sXCC}, hwreg(HW_REG_XCC_ID, 0, 4)")
        I(f"v_mov_b32 v{vPB+1}, s{sXCC}")
        I(f"v_lshlrev_b32 v{vH}, 16, v{vXRES}")
        I(f"v_and_b32 v{vH+1}, 0xffff0000, v{vXRES}")
        if late_cs:
            I(f"v_and_b32 v{vA+4}, 0x3f803f80, v{vM0}")
            I(f"v_and_b32 v{vA+5}, 0x3f803f80, v{vM1}")
            I(f"s_waitcnt vmcnt({a.vm - 1 - side_last[0] + 1})")
            for f in range(32): mfma2(vA + 4, "a", 4 * f, 0, f == 0)
            swap_reduce(vT)
            I(f"ds_write_b64 v{vLW}, v[{vT}:{vT+1}] offset:{LCS}")
            I("s_waitcnt lgkmcnt(0)")
            I("s_barrier")
            read_cs()
        I("s_waitcnt lgkmcnt(0)")
        I(f"v_add_f32 v{vCS}, v{vCS}, v{vCS+2}")
        I(f"v_add_f32 v{vCS+1}, v{vCS+1}, v{vCS+3}")
        I(f"v_add_f32 v{vCS+4}, v{vCS+4}, v{vCS+6}")
        I(f"v_add_f32 v{vCS+5}, v{vCS+5}, v{vCS+7}")
        I(f"v_add_f32 v{vCS}, v{vCS}, v{vCS+4}")
        I(f"v_add_f32 v{vCS+1}, v{vCS+1}, v{vCS+5}")
    if hu:
        I(f"s_waitcnt vmcnt({K1})")
        I(f"v_cmp_ne_u64 vcc, s[{sTAG}:{sTAG+1}], v[{FS+2}:{FS+3}]")
        I("s_mov_b64 s[8:9], vcc")
        pre1()
        I("s_mov_b64 exec, s[8:9]")
        I("s_cbranch_execz L_flx")
        poll("L_fl", FS, vMAX, sFL, 0)
        I(f"s_sleep {aY}")
        I("s_branch L_fly")
        I("L_flx:")
        I("s_mov_b64 exec, -1")
        if aX: I(f"s_sleep {aX}")
        I("L_fly:")
        sample("L_p1", RING0, vGAT, [sGOFF, sC1, sC2][:K1], 2, bS)
    else:
        poll("L_p1", RING0, vGAT, sGOFF, 2, pre1, TH, delay=d1)
    colsum()
    I(f"v_add_f32 v{vT+2}, v{vT+2}, v{vH}")
    I(f"v_add_f32 v{vT+3}, v{vT+3}, v{vH+1}")
    I(f"v_cvt_pk_bf16_f32 v{vPB}, v{vT+2}, v{vT+3}")
    I("s_mov_b64 exec, 3")
    if fast: I(f"buffer_store_dwordx4 v[{vPB}:{vPB+3}], v{vHROW}, {srd(sWS)}, s{sHSTA} offen")
    HB = f"buffer_store_dwordx4 v[{vPB}:{vPB+3}], v{vHROW}, {srd(sWS)}, s{sHST} offen {spol}"
    if not fast: I(HB)
    I("s_mov_b64 exec, -1")
    stamp()
    if not align:
        I(f"s_cmp_ge_u32 s{sTC}, 28")
        I("s_cbranch_scc1 L_noffn")
    def pre2():
        I(f"s_mov_b32 s{sC1}, {P2B}")
        I(f"s_mov_b32 s{sC2}, {P2C}")
        I(f"v_lshlrev_b32 v{vH}, 16, v{vPB}")
        I(f"v_and_b32 v{vH+1}, 0xffff0000, v{vPB}")
    poll("L_h", RING0 + 16, vHROW, sROT, 2 if fast else 1, pre2, soffA=sROTA if fast else None, lazy=HB if fast else None, delay=dH)
    if fast:
        I("s_mov_b64 exec, 3")
        I(HB)
        I("s_mov_b64 exec, -1")
        I(f"v_cmp_ne_u32 s[8:9], s{sXCC}, v{vR+1}")
    stamp()
    tstamp()
    f0, f1, s1, t = vS + 8, vS + 9, vS + 10, vS + 11
    I(f"v_lshlrev_b32 v{f0}, 16, v{vR}")
    I(f"v_and_b32 v{f1}, 0xffff0000, v{vR}")
    I(f"v_and_b32 v{vP}, 0xffff, v{vR}")
    I(f"v_lshrrev_b32 v{vP+1}, 16, v{vR}")
    I(f"v_or_b32 v{vP}, v{vP}, v{f0}")
    I(f"v_or_b32 v{vP+1}, v{vP+1}, v{f1}")
    I(f"v_add_f32 v{s1}, v{f0}, v{f1}")
    stats = []
    def red(x):
        for r in (8, 4, 2, 1):
            stats.append(f"v_add_f32_dpp v{x}, v{x}, v{x} row_ror:{r} row_mask:0xf bank_mask:0xf")
        for sw in ("v_permlane16_swap_b32", "v_permlane32_swap_b32"):
            stats.append(f"v_mov_b32 v{t}, v{x}")
            stats.append(f"{sw} v{x}, v{t}")
            stats.append(f"v_add_f32 v{x}, v{x}, v{t}")
    red(s1)
    stats.append(f"v_mul_f32 v{s1}, {f32(1/128)}, v{s1}")
    stats.append(f"v_sub_f32 v{f0}, v{f0}, v{s1}")
    stats.append(f"v_sub_f32 v{f1}, v{f1}, v{s1}")
    stats.append(f"v_mul_f32 v{f0}, v{f0}, v{f0}")
    stats.append(f"v_fmac_f32 v{f0}, v{f1}, v{f1}")
    red(f0)
    stats.append(f"v_mov_b32 v{f1}, v{s1}")
    gemv_il([vP, vP + 1], "a", 0, stats)
    tstamp()
    I(f"s_lshl_b32 s{sTMP}, s{sW}, 3")
    I(f"v_mov_b32 v{t}, s{sTMP}")
    I("s_mov_b64 exec, 1")
    I(f"ds_write_b64 v{t}, v[{f0}:{f1}] offset:{LST}")
    if fast:
        I("s_or_b32 s8, s8, s9")
        I(f"v_mov_b32 v{s1}, s8")
        I(f"v_lshrrev_b32 v{t}, 1, v{t}")
        I(f"ds_write_b32 v{t}, v{s1} offset:{LFL}")
    I("s_mov_b64 exec, -1")
    I(f"v_mov_b32 v{t}, 0")
    swap_reduce(vT)
    I(f"ds_write_b64 v{vLW}, v[{vT}:{vT+1}] offset:{LGU}")
    I("s_waitcnt lgkmcnt(0)")
    I("s_barrier")
    tstamp()
    Z = vA
    I(f"ds_read_b128 v[{Z}:{Z+3}], v{t} offset:{LST}")
    I(f"ds_read_b128 v[{Z+4}:{Z+7}], v{t} offset:{LST+16}")
    for w in range(4):
        I(f"ds_read2st64_b32 v[{vT+2*w}:{vT+2*w+1}], v{vLGU} offset0:{2*w} offset1:{2*w+1}")
    if fast: I(f"ds_read_b128 v[{vS+12}:{vS+15}], v{t} offset:{LFL}")
    I("s_waitcnt lgkmcnt(0)" if tstamps else "s_waitcnt lgkmcnt(5)" if fast else "s_waitcnt lgkmcnt(4)")
    m, q = Z + 8, Z + 9
    I(f"v_add_f32 v{m}, v{Z+1}, v{Z+3}")
    I(f"v_add_f32 v{q}, v{Z+5}, v{Z+7}")
    I(f"v_add_f32 v{Z}, v{Z}, v{Z+2}")
    I(f"v_add_f32 v{m}, v{m}, v{q}")
    I(f"v_add_f32 v{Z+4}, v{Z+4}, v{Z+6}")
    I(f"v_mul_f32 v{m}, 0.25, v{m}" if False else f"v_mul_f32 v{m}, {f32(0.25)}, v{m}")
    I(f"v_add_f32 v{Z}, v{Z}, v{Z+4}")
    for k in (1, 3, 5, 7): I(f"v_sub_f32 v{Z+k}, v{Z+k}, v{m}")
    I(f"v_mul_f32 v{Z+1}, v{Z+1}, v{Z+1}")
    I(f"v_mul_f32 v{Z+5}, v{Z+5}, v{Z+5}")
    I(f"v_fmac_f32 v{Z+1}, v{Z+3}, v{Z+3}")
    I(f"v_fmac_f32 v{Z+5}, v{Z+7}, v{Z+7}")
    I(f"v_mul_f32 v{Z}, {f32(1/512)}, v{Z}")
    I(f"v_add_f32 v{Z+1}, v{Z+1}, v{Z+5}")
    I(f"v_fmac_f32 v{Z}, {f32(0.25)}, v{Z+1}")
    I(f"v_cvt_pk_bf16_f32 v{q}, v{m}, v{Z}")
    I("s_waitcnt lgkmcnt(0)")
    I(f"v_add_f32 v{vT}, v{vT}, v{vT+2}")
    I(f"v_lshlrev_b32 v{m}, 16, v{q}")
    I(f"v_and_b32 v{q}, 0xffff0000, v{q}")
    I(f"v_add_f32 v{vT+1}, v{vT+1}, v{vT+3}")
    I(f"v_add_f32 v{q}, {f32(1e-5)}, v{q}")
    I(f"v_add_f32 v{vT+4}, v{vT+4}, v{vT+6}")
    I(f"v_cvt_pk_bf16_f32 v{q}, v{q}, v{q}")
    I(f"v_add_f32 v{vT+5}, v{vT+5}, v{vT+7}")
    I(f"v_and_b32 v{q}, 0xffff0000, v{q}")
    I(f"v_add_f32 v{vT}, v{vT}, v{vT+4}")
    I(f"v_sqrt_f32 v{q}, v{q}")
    I(f"v_add_f32 v{vT+1}, v{vT+1}, v{vT+5}")
    I(f"v_cvt_pk_bf16_f32 v{q}, v{q}, v{q}")
    I(f"v_fma_f32 v{vT}, -v{m}, v{vCS}, v{vT}")
    I(f"v_and_b32 v{q}, 0xffff0000, v{q}")
    I(f"v_fma_f32 v{vT+1}, -v{m}, v{vCS+1}, v{vT+1}")
    I(f"v_rcp_f32 v{q}, v{q}")
    I(f"v_mul_f32 v{vT}, v{vT}, v{q}")
    I(f"v_mul_f32 v{vT+1}, v{vT+1}, v{q}")
    I(f"v_cvt_pk_bf16_f32 v{vT}, v{vT}, v{vT+1}")
    I(f"v_and_b32 v{vT+1}, 0xffff0000, v{vT}")
    I(f"v_lshlrev_b32 v{vT}, 16, v{vT}")
    I(f"v_max_f32 v{vT}, 0, v{vT}")
    I(f"v_mul_f32 v{vT}, v{vT}, v{vT+1}")
    I(f"v_cvt_pk_bf16_f32 v{vP}, v{vT}, v{vT}")
    tstamp()
    gemv_il([vP], "v", vWDF)
    tstamp()
    if fast:
        I(f"v_or3_b32 v{vS+12}, v{vS+12}, v{vS+13}, v{vS+14}")
        I(f"v_or_b32 v{vS+12}, v{vS+12}, v{vS+15}")
        I(f"v_readfirstlane_b32 s8, v{vS+12}")
    swap_reduce(vPB)
    tstamp()
    if align:
        I(f"s_cmp_ge_u32 s{sTC}, 28")
        I("s_cbranch_scc1 L_local")
    if fast:
        I(f"buffer_store_dwordx4 v[{vPB}:{vPB+3}], v{vPUB2}, {srd(sWS)}, s{sP2A} offen")
        I("s_cmp_eq_u32 s8, 0")
        I("s_cbranch_scc1 L_local")
    if halfx: I("s_mov_b32 exec_hi, 0")
    I(f"buffer_store_dwordx4 v[{vPB}:{vPB+3}], v{vPUB if halfx else vPUB2}, {srd(sWS)}, s{sP2} offen {spol}")
    if halfx: I("s_mov_b64 exec, -1")
    if KP > 1: I(f"buffer_store_dwordx4 v[{vPB}:{vPB+3}], v{vPUB2}, {srd(sWS)}, s{sC1} offen {spol}")
    if KP > 2: I(f"buffer_store_dwordx4 v[{vPB}:{vPB+3}], v{vPUB2}, {srd(sWS)}, s{sC2} offen {spol}")
    I("L_local:")
    I(f"s_lshl_b32 s{sTMP}, s{sTC}, 2")
    I(f"s_add_u32 s{sTMP}, s{sTMP}, s{sW}")
    I(f"s_cmp_lg_u32 s{sTMP}, 0")
    I("s_cbranch_scc1 L_noep")
    I(f"s_lshl_b32 s{sTMP}, s{sTB}, 7")
    I("s_mov_b64 exec, 1")
    I(f"buffer_store_dwordx2 v[{vPB+2}:{vPB+3}], v{vHROW}, {srd(sWS)}, s{sTMP} offen {epol}")
    I("s_mov_b64 exec, -1")
    I("L_noep:")
    stamp()
    if not align: I("s_branch L_final")
    I("L_noffn:")
    if fast and not align:
        I("s_mov_b64 exec, 3")
        I(HB)
        I("s_mov_b64 exec, -1")
    if not align:
        I(f"v_lshlrev_b32 v{vH}, 16, v{vPB}")
        I(f"v_and_b32 v{vH+1}, 0xffff0000, v{vPB}")
    I("L_final:")
    I(f"v_mov_b32 v{vR}, 0")
    I(f"v_mov_b32 v{vR+1}, 0")
    I(f"s_mov_b32 exec_hi, 0x00ffffff")
    if KP > 1:
        I(f"s_sleep {dP}")
        sample("L_p2", RING0 + 32, vGAT, [sP2, sC1, sC2][:KP], 2, bP)
    else:
        poll("L_p2", RING0 + 32, vGAT, sP2, 2, soffA=sP2A if fast else None, delay=dP)
    colsum()
    I(f"v_add_f32 v{vT+2}, v{vT+2}, v{vH}")
    I(f"v_add_f32 v{vT+3}, v{vT+3}, v{vH+1}")
    I(f"v_cvt_pk_bf16_f32 v{vT}, v{vT+2}, v{vT+3}")
    if fixref:
        I(f"v_mov_b32 v{vT+5}, 0")
        I(f"global_load_dword v{vT+4}, v{vT+5}, s[76:77] sc1")
        I(f"s_memrealtime s[{sNOW}:{sNOW+1}]")
        I("s_waitcnt vmcnt(0) lgkmcnt(0)")
        I(f"v_readfirstlane_b32 s{sLVL}, v{vT+4}")
        I(f"s_sub_u32 s{sTMP}, s{sT0}, s{sLVL}")
        I(f"s_add_u32 s{sTMP}, s{sTMP}, 1000")
        I(f"s_sub_u32 s{sTMP2}, s{sNOW}, s{sLVL}")
        I(f"s_mov_b32 s{sT0}, s{sLVL}")
        I(f"v_mov_b32 v{vT+6}, s{sTMP}")
        I(f"v_mov_b32 v{vT+7}, s{sTMP2}")
        I("s_mov_b64 exec, 1")
        if fixref == 2:
            I(f"global_atomic_umax v{vT+5}, v{vT+6}, s[76:77] offset:4 sc1")
            I(f"global_atomic_umax v{vT+5}, v{vT+7}, s[76:77] offset:8 sc1")
            I(f"v_sub_u32 v{vT+6}, 2000, v{vT+6}")
            I(f"global_atomic_umax v{vT+5}, v{vT+6}, s[76:77] offset:12 sc1")
        I("s_mov_b64 exec, -1")
    if fixt:
        I("L_fix:")
        I(f"s_memrealtime s[{sNOW}:{sNOW+1}]")
        I("s_waitcnt lgkmcnt(0)")
        I(f"s_sub_u32 s{sLVL}, s{sNOW}, s{sT0}")
        I(f"s_cmp_lt_u32 s{sLVL}, {fixt * 100}")
        I("s_cbranch_scc1 L_fix")
    I("s_mov_b64 exec, 3")
    I(f"buffer_store_dword v{vT}, v{vHST}, {srd(sOUT)}, s{sOUTO} offen {opol}")
    I("s_mov_b64 exec, -1")
    if stamps:
        stamp()
        I(f"s_cmp_lg_u32 s{sW}, 0")
        I("s_cbranch_scc1 L_end")
        I("s_waitcnt lgkmcnt(0)")
        I(f"s_lshl_b32 s{sTMP}, s2, 6")
        I(f"s_add_u32 s{sTMP}, s{sTMP}, {STAMPOFF}")
        I(f"v_mov_b32 v{vT+2}, 0")
        I("s_mov_b64 exec, 1")
        for k in range(stamp_n[0]):
            r = 84 if k == 0 else 60 + 2 * (k - 1)
            I(f"v_mov_b32 v{vT+3}, s{r}")
            I(f"buffer_store_dword v{vT+3}, v{vT+2}, {srd(sWS)}, s{sTMP} offen offset:{4*k}")
        if tstamps:
            for k in range(tn[0]):
                r = 10 + 2 * k if k < 9 else [32, 34, 40, 42][k - 9]
                I(f"v_writelane_b32 v91, s{r}, {k}")
        if pstamps:
            I("s_mov_b64 exec, 0xffff")
            I(f"s_add_u32 s60, s{sTMP}, 0x10000")
            I(f"buffer_store_dword v91, v{vROW}, {srd(sWS)}, s60 offen")
            I("s_mov_b64 exec, 1")
        I("s_getreg_b32 s60, hwreg(HW_REG_XCC_ID)")
        I(f"v_mov_b32 v{vT+3}, s60")
        I(f"buffer_store_dword v{vT+3}, v{vT+2}, {srd(sWS)}, s{sTMP} offen offset:60")
    I("L_end:")
    I("s_endpgm")
    body = a.finish()
    out = HEADER + DESC + "; @launch grid=(256,1,1) block=(256,1,1) lds=10368\n"
    out += '.amdgcn_target "amdgcn-amd-amdhsa--gfx950"\n.text\n'
    out += f".globl {KNAME}\n.p2align 8\n.type {KNAME},@function\n{KNAME}:\n"
    out += body
    out += f'''.section .rodata,"a"
.p2align 6
.amdhsa_kernel {KNAME}
  .amdhsa_next_free_vgpr 512
  .amdhsa_next_free_sgpr 102
  .amdhsa_accum_offset 256
  .amdhsa_group_segment_fixed_size 0
  .amdhsa_kernarg_size 96
  .amdhsa_user_sgpr_count 2
  .amdhsa_user_sgpr_kernarg_segment_ptr 1
  .amdhsa_system_sgpr_workgroup_id_x 1
.end_amdhsa_kernel
'''
    return out

if __name__ == "__main__":
    import json
    cfg = json.loads(sys.argv[2]) if len(sys.argv) > 2 else {}
    open(sys.argv[1], "w").write(gen(**cfg))
```

```python
import sys
sys.path.insert(0, "gen")
from asmlib import Asm
import struct

KNAME = "sequential_preLN__mha_block_cached__glu_gated_reglu__decode_kernel"
HEADER = open("sequential_preLN__mha_block_cached__glu_gated_reglu__decode.s.ref").read().split("; Override launch")[0]

def f32(x):
    return "0x%08x" % struct.unpack("<I", struct.pack("<f", x))[0]

vLANE, vKV, vWQ, vWO, vWD = 1, 2, 3, 4, 5
vGU = 6
vPUB, vGAT, vROW, vLW, vM0, vM1, vXRES, vMAX = 8, 9, 10, 11, 12, 13, 14, 15
vQ, vP, vG, vS, vA, vACC, vT = 16, 20, 24, 28, 44, 60, 68
vLO, vLGU, vLQ, vHST, vHROW, vH = 84, 85, 86, 87, 88, 89
vPB = 92
RING0 = 96
vWDF = 192
sW, sB, sH, sJF = 3, 4, 5, 6
sK, sV, sWQ, sWO, sWD, sWS, sX, sOUT, sDBG = 8, 12, 16, 20, 24, 28, 32, 36, 40
sISS, sWOFF, sTMP, sTMP2 = 48, 49, 50, 51
sODD, sBIT1 = 52, 54
sCNT, sL2E = 58, 59
sSCALE, sFFFF, sP2, sHST = 44, 45, 46, 47
sGOFF = 86
sROT = 94
sGUSTEP = 98
sOUTO = 100
sTAG = 56
sTAGP = 88
sTB, sTC = 90, 91
sHSTA, sROTA, sP2A = 92, 93, 87
sXCC = 95
sRQ = 7
sFL, sC1, sC2 = 76, 77, 82
vFLG = 91
vKV2 = 0
sNOW, sLVL, sT0 = 80, 101, 84
sPC, sPFD = 78, 83
sXT = 40
LQ, LML, LO, LGU, LCS, LST, LFL = 0, 2048, 4096, 6144, 8192, 10240, 10304
P1OFF, P2OFF, HOFF, STAMPOFF = 0x10000, 0x110000, 0x210000, 0x400000
P2AOFF, HAOFF = 0x220000, 0x218000
FLOFF, P1B, P1C, P2B, P2C, HC = 0x8000, 0x500000, 0x600000, 0x700000, 0x800000, 0x900000
SPIN = 200000

DESC = '''; Design (generated by my own script; one workgroup of 4 waves per (batch, head), one per CU):
;   * hand-off granule = 16 bytes {payload, 64-bit tag}; the tag is derived from an epoch word found in
'''

def srd(b): return f"s[{b}:{b+3}]"

def gen(N=5, NV=None, R=24, wpol="nt", kvpol="nt", stamps=False, pstamps=False, sleep=4, wstart=40, wend=250, M=11, kfirst=1, ratio=(5, 6), qextra=3, cu=5, Tx=5, noside=False, vpol=None, lpol="sc1", spol="sc1", K=4, gap=1, TH=0, slow=16, cs_start=300, remap=False, fast=False, NA=32, fpol=None, pretouch=470, rawh=True, dH=20, dP=12, psl=0, align=True, NE=8, E=24, hmap=False, kstamps=False, nokc=False, fB=0, fC=0, KC=1, dS=5, rotq=0, tstamps=False, ND=0, dper=2, fakeq=0, qpol=None, qdelay=0, ctl=True, Ts=136.0, T0=2200, Tside=17.5, dl=300, U=16, cands=2, nl=8, ustart=48, d1=16, two=True, pf=4, pft=True, pfd=3, fixt=0, fixref=False, hu=False, halfx=False, aX=6, aY=11, bS=9, KP=1, bP=5, hcopy=False, opol="", epol="", swp=32, K1=1, hlead=0, stg=(34, 12, 26, 45, 32, 15, 49, 19), wpos=(13, 15), tab=False, cap=8, wqmap=0, neg=0):
    a = Asm(); I = a.I
    wp = (" " + wpol) if wpol else ""
    kp = (" " + kvpol) if kvpol else ""
    fp = wp if fpol is None else ((" " + fpol) if fpol else "")
    qp = wp if qpol is None else ((" " + qpol) if qpol else "")
    NWQ = fakeq or 32
    vp = kp if vpol is None else ((" " + vpol) if vpol else "")
    stamp_n = [0]
    def stamp():
        if stamps:
            k = stamp_n[0]; stamp_n[0] += 1
            r = 84 if k == 0 else 60 + 2 * (k - 1)
            I(f"s_memrealtime s[{r}:{r+1}]")
    def pstamp(k, force=False):
        if (pstamps and not kstamps and not tstamps) or force:
            I(f"s_memrealtime s[96:97]")
            I("s_waitcnt lgkmcnt(0)")
            I(f"v_writelane_b32 v91, s96, {k}")
    free = [("v", RING0 + 4 * k) for k in range(R)]
    extra = [("v", vWDF + 4 * k) for k in range(16)] + [("a", 252 - 4 * k) for k in range(28)]
    slot_of = {}
    busy_a = set()
    tn = [0]
    def tstamp():
        if tstamps:
            k = tn[0]; tn[0] += 1
            r = 10 + 2 * k if k < 9 else [32, 34, 40, 42][k - 9]
            I(f"s_memtime s[{r}:{r+1}]")
    def slot(g): return slot_of[g][1]
    def alloc(g):
        if free: r = free.pop(0)
        else:
            assert g < 100 and extra, f"out of slots at {g}"
            r = extra.pop(0)
        if r[0] == "a": busy_a.add(r[1])
        slot_of[g] = r
    def release(g):
        r = slot_of[g]
        if r[0] == "v" and r[1] < vWDF: free.append(r)
        if r[0] == "a": busy_a.discard(r[1])

    def wave_reduce(x, t, op):
        for r in (8, 4, 2, 1):
            I(f"{op}_dpp v{x}, v{x}, v{x} row_ror:{r} row_mask:0xf bank_mask:0xf")
        I(f"v_mov_b32 v{t}, v{x}")
        I(f"v_permlane16_swap_b32 v{x}, v{t}")
        I(f"{op} v{x}, v{x}, v{t}")
        I(f"v_mov_b32 v{t}, v{x}")
        I(f"v_permlane32_swap_b32 v{x}, v{t}")
        I(f"{op} v{x}, v{x}, v{t}")

    def ln(Dl, X0, X1, F):
        f = [F + i for i in range(8)]
        c = [F + 8 + i for i in range(4)]
        s, t = F + 12, F + 13
        for i in range(4):
            I(f"v_lshlrev_b32 v{f[2*i]}, 16, v{Dl[i]}")
            I(f"v_and_b32 v{f[2*i+1]}, 0xffff0000, v{Dl[i]}")
        for i in range(4):
            I(f"v_add_f32 v{c[i]}, v{f[2*i]}, v{f[2*i+1]}")
        I(f"v_add_f32 v{c[0]}, v{c[0]}, v{c[2]}")
        I(f"v_add_f32 v{c[1]}, v{c[1]}, v{c[3]}")
        I(f"v_add_f32 v{s}, v{c[0]}, v{c[1]}")
        wave_reduce(s, t, "v_add_f32")
        I(f"v_mul_f32 v{s}, {f32(1/512)}, v{s}")
        for i in range(4):
            I(f"v_sub_f32 v{Dl[i]}, v{f[2*i]}, v{s}")
            I(f"v_sub_f32 v{c[i]}, v{f[2*i+1]}, v{s}")
        for i in range(4):
            I(f"v_mul_f32 v{Dl[i]}, v{Dl[i]}, v{Dl[i]}")
        for i in range(4):
            I(f"v_fmac_f32 v{Dl[i]}, v{c[i]}, v{c[i]}")
        I(f"v_add_f32 v{Dl[0]}, v{Dl[0]}, v{Dl[2]}")
        I(f"v_add_f32 v{Dl[1]}, v{Dl[1]}, v{Dl[3]}")
        I(f"v_add_f32 v{Dl[0]}, v{Dl[0]}, v{Dl[1]}")
        wave_reduce(Dl[0], t, "v_add_f32")
        I(f"v_mul_f32 v{Dl[0]}, {f32(1/512)}, v{Dl[0]}")
        I(f"v_cvt_pk_bf16_f32 v{t}, v{s}, v{Dl[0]}")
        I(f"v_lshlrev_b32 v{s}, 16, v{t}")
        I(f"v_and_b32 v{t}, 0xffff0000, v{t}")
        I(f"v_add_f32 v{t}, {f32(1e-5)}, v{t}")
        I(f"v_sub_f32 v{f[0]}, v{f[0]}, v{s}")
        I(f"v_cvt_pk_bf16_f32 v{t}, v{t}, v{t}")
        I(f"v_sub_f32 v{f[1]}, v{f[1]}, v{s}")
        I(f"v_and_b32 v{t}, 0xffff0000, v{t}")
        I(f"v_cvt_pk_bf16_f32 v{f[0]}, v{f[0]}, v{f[1]}")
        I(f"v_sqrt_f32 v{t}, v{t}")
        I(f"v_and_b32 v{f[1]}, 0xffff0000, v{f[0]}")
        I(f"v_lshlrev_b32 v{f[0]}, 16, v{f[0]}")
        I(f"v_cvt_pk_bf16_f32 v{t}, v{t}, v{t}")
        I(f"v_and_b32 v{t}, 0xffff0000, v{t}")
        I(f"v_rcp_f32 v{s}, v{t}")
        I(f"v_mul_f32 v{f[2]}, v{f[0]}, v{s}")
        I(f"v_mul_f32 v{f[3]}, v{f[1]}, v{s}")
        I(f"v_fma_f32 v{f[4]}, -v{f[2]}, v{t}, v{f[0]}")
        I(f"v_fma_f32 v{f[5]}, -v{f[3]}, v{t}, v{f[1]}")
        I(f"v_fmac_f32 v{f[2]}, v{f[4]}, v{s}")
        I(f"v_fmac_f32 v{f[3]}, v{f[5]}, v{s}")
        I(f"v_cvt_pk_bf16_f32 v{X0}, v{f[2]}, v{f[2]}")
        I(f"v_cvt_pk_bf16_f32 v{X1}, v{f[3]}, v{f[3]}")

    def afrag(dst, src, u):
        I(f"v_and_b32_dpp v{dst}, v{src}, v{vM0} quad_perm:[{u},{u},{u},{u}] row_mask:0xf bank_mask:0xf")
        I(f"v_and_b32_dpp v{dst+1}, v{src}, v{vM1} quad_perm:[{u},{u},{u},{u}] row_mask:0xf bank_mask:0xf")

    def mfma2(A, bfile, b, abid, first, acc=vACC):
        lo, hi = acc, acc + 4
        c0 = "0" if first else f"v[{lo}:{lo+3}]"
        c1 = "0" if first else f"v[{hi}:{hi+3}]"
        I(f"v_mfma_f32_4x4x4_16b_bf16 v[{lo}:{lo+3}], v[{A}:{A+1}], {bfile}[{b}:{b+1}], {c0} cbsz:2 abid:{abid}")
        I(f"v_mfma_f32_4x4x4_16b_bf16 v[{hi}:{hi+3}], v[{A}:{A+1}], {bfile}[{b+2}:{b+3}], {c1} cbsz:2 abid:{abid}")

    def swap_reduce(dst, acc=vACC):
        lo, hi = acc, acc + 4
        for i in range(4): I(f"v_permlane32_swap_b32 v{lo+i}, v{hi+i}")
        for i in range(4): I(f"v_add_f32 v{lo+i}, v{lo+i}, v{hi+i}")
        I(f"v_permlane16_swap_b32 v{lo}, v{lo+2}")
        I(f"v_permlane16_swap_b32 v{lo+1}, v{lo+3}")
        I(f"v_add_f32 v{dst}, v{lo}, v{lo+2}")
        I(f"v_add_f32 v{dst+1}, v{lo+1}, v{lo+3}")

    def afrag1(dst, src, u, half):
        I(f"v_and_b32_dpp v{dst+half}, v{src}, v{vM0 if half == 0 else vM1} quad_perm:[{u},{u},{u},{u}] row_mask:0xf bank_mask:0xf")

    def gemv_il(Xs, bfile, b0, fill=None):
        nr = len(Xs)
        combos = [(u, r) for u in range(4) for r in range(nr)]
        fill = fill if fill is not None else []
        dbl = len(fill) > 18
        def put():
            x = fill.pop(0)
            if callable(x): x()
            else: I(x)
        afrag(vA, Xs[combos[0][1]], combos[0][0])
        first = True
        for ci, (u, r) in enumerate(combos):
            A = vA + 2 * (ci & 1)
            for aa in range(4):
                f = (8 * aa + 2 * u + r) if nr == 2 else (4 * aa + u)
                mfma2(A, bfile, b0 + 4 * f, aa, first); first = False
                if aa < 2 and ci + 1 < len(combos):
                    afrag1(vA + 2 * ((ci + 1) & 1), Xs[combos[ci + 1][1]], combos[ci + 1][0], aa)
                    if fill and aa == 0 and dbl: put()
                elif fill:
                    put()
                    if fill and aa == 2 and dbl: put()
        while fill: put()

    I(f"s_cmp_ge_u32 s2, 256")
    I("s_cbranch_scc1 L_end")
    stamp()
    if ctl and not stamps: I(f"s_memrealtime s[{sT0}:{sT0+1}]")
    a.C("kernarg pointers; lane/wave decomposition")
    I("s_load_dwordx16 s[60:75], s[0:1], 0")
    I("s_load_dwordx8 s[76:83], s[0:1], 64")
    I(f"v_lshrrev_b32 v{vT}, 6, v0")
    I(f"v_and_b32 v{vLANE}, 63, v0")
    I(f"v_readfirstlane_b32 s{sW}, v{vT}")
    I(f"s_lshr_b32 s{sB}, s2, 5")
    if hmap:
        I(f"s_and_b32 s{sH}, s2, 7")
        I(f"s_lshl_b32 s{sH}, s{sH}, 2")
        I(f"s_bfe_u32 s{sTMP}, s2, 0x20003")
        I(f"s_or_b32 s{sH}, s{sH}, s{sTMP}")
        I(f"s_andn2_b32 s2, s2, 31")
        I(f"s_or_b32 s2, s2, s{sH}")
    else:
        I(f"s_and_b32 s{sH}, s2, 31")
    if remap:
        I(f"s_and_b32 s{sTB}, s2, 7")
        I(f"s_lshr_b32 s{sTC}, s2, 3")
    else:
        I(f"s_mov_b32 s{sTB}, s{sB}")
        I(f"s_mov_b32 s{sTC}, s{sH}")
    I(f"s_min_u32 s{sJF}, s{sTC}, 27")
    J16, SS = vT + 1, vT + 2
    I(f"v_and_b32 v{J16}, 15, v{vLANE}")
    I(f"v_lshrrev_b32 v{SS}, 4, v{vLANE}")
    I(f"v_lshlrev_b32 v{vROW}, 2, v{vLANE}")
    I(f"v_lshlrev_b32 v{vKV}, 4, v{vLANE}")
    I(f"s_and_b32 s{sTMP}, s{sW}, 1")
    I(f"s_lshl_b32 s{sTMP}, s{sTMP}, {wpos[0]}")
    I(f"s_lshr_b32 s{sTMP2}, s{sW}, 1")
    I(f"s_lshl_b32 s{sTMP2}, s{sTMP2}, {wpos[1]}")
    I(f"s_or_b32 s{sTMP}, s{sTMP}, s{sTMP2}")
    I(f"v_add_u32 v{vKV}, s{sTMP}, v{vKV}")
    cbits = [q for q in range(12, 20) if q not in wpos]
    CM = sum(1 << q for q in cbits)
    HOLES = sum(1 << q for q in wpos if q > cbits[0])
    if swp: I(f"v_xor_b32 v{vKV2}, 0x2000, v{vKV}")
    for i in range(4):
        I(f"s_add_u32 s{sROT+i}, s{sW}, {i}")
        I(f"s_and_b32 s{sROT+i}, s{sROT+i}, 3")
        I(f"s_lshl_b32 s{sROT+i}, s{sROT+i}, {[8, 2, 8][wqmap]}")
    I(f"v_lshlrev_b32 v{vT+3}, 4, v{J16}")
    I(f"s_lshl_b32 s{sTMP}, s{sW}, {[20, 14, 20][wqmap]}" if not fakeq else f"s_lshl_b32 s{sTMP}, s{sB}, 19")
    I(f"s_lshl_b32 s{sTMP2}, s{sH}, 8")
    I(f"s_add_u32 s{sTMP}, s{sTMP}, s{sTMP2}")
    I(f"v_lshlrev_b32 v{vWQ}, {17 if fakeq else [18, 16, 14][wqmap]}, v{SS}")
    if wqmap == 1:
        I(f"v_lshlrev_b32 v{vT+7}, 6, v{J16}")
        I(f"v_lshl_add_u32 v{vT+7}, v{SS}, 4, v{vT+7}")
    if wqmap == 2:
        I(f"v_lshlrev_b32 v{vT+7}, 4, v{J16}")
        I(f"v_lshl_add_u32 v{vT+7}, v{SS}, 2, v{vT+7}")
    I(f"v_add3_u32 v{vWQ}, v{vWQ}, v{vT+3}, s{sTMP}")
    if rotq:
        I(f"s_mul_i32 s{sRQ}, s{sB}, {rotq // 2}")
        I(f"v_add_u32 v{vT+7}, s{sRQ}, v{vLANE}")
        I(f"v_and_b32 v{vT+7}, 15, v{vT+7}")
        I(f"v_and_or_b32 v{vT+7}, v{vLANE}, 48, v{vT+7}")
        I(f"v_lshlrev_b32 v{vT+7}, 2, v{vT+7}")
        I(f"s_lshl_b32 s{sRQ}, s{sRQ}, 14")
    a.C("workgroups start their sweep at different 16 KiB steps (spreads workgroups over DRAM channels/banks)")
    if isinstance(stg, (list, tuple)):
        I(f"s_mov_b32 s{sISS}, 0")
        for k_, cf in enumerate(stg):
            if cf:
                I(f"s_bitcmp1_b32 s2, {k_}")
                I(f"s_cselect_b32 s{sWOFF}, {sum(((cf >> q) & 1) << cbits[q] for q in range(6))}, 0")
                if HOLES: I(f"s_or_b32 s{sISS}, s{sISS}, {HOLES}")
                I(f"s_add_u32 s{sISS}, s{sISS}, s{sWOFF}")
                if HOLES: I(f"s_and_b32 s{sISS}, s{sISS}, {CM}")
        I(f"s_and_b32 s{sISS}, s{sISS}, {CM}")
    elif stg == 2:
        I(f"s_and_b32 s{sISS}, s{sH}, 15"); I(f"s_lshl_b32 s{sISS}, s{sISS}, 14")
    elif stg == 3:
        I(f"s_sub_u32 s{sISS}, 64, s{sH}"); I(f"s_and_b32 s{sISS}, s{sISS}, 63"); I(f"s_lshl_b32 s{sISS}, s{sISS}, 14")
    elif stg == 4:
        I(f"s_and_b32 s{sISS}, s2, 63"); I(f"s_lshl_b32 s{sISS}, s{sISS}, 14")
    elif stg == 5:
        I(f"s_mul_i32 s{sISS}, s2, 5"); I(f"s_bfe_u32 s{sISS}, s{sISS}, 0x60002"); I(f"s_lshl_b32 s{sISS}, s{sISS}, 14")
    else:
        I(f"s_lshl_b32 s{sISS}, s{sH}, 14" if stg else f"s_mov_b32 s{sISS}, 0")
    I("s_waitcnt lgkmcnt(0)")
    pstamp(0)
    def mk(b, plo, offlo, size, offhi=None):
        if offlo is None:
            I(f"s_mov_b32 s{b}, s{plo}"); I(f"s_mov_b32 s{b+1}, s{plo+1}")
        else:
            I(f"s_add_u32 s{b}, s{plo}, {offlo}"); I(f"s_addc_u32 s{b+1}, s{plo+1}, 0")
        I(f"s_mov_b32 s{b+2}, {size}"); I(f"s_mov_b32 s{b+3}, 0x20000")
    I(f"s_lshl_b32 s{sTMP}, s{sB}, 10")
    mk(sX, 60, f"s{sTMP}", 1024)
    I(f"s_lshl_b32 s{sTMP}, s2, 20")
    if tab:
        I(f"s_lshl_b32 s{sTMP2}, s2, 4")
        I(f"s_load_dwordx4 s[12:15], s[70:71], s{sTMP2}")
        I("s_waitcnt lgkmcnt(0)")
        I(f"s_mov_b32 s{sISS}, s12"); I(f"s_mov_b32 s{sTMP}, s13"); I(f"s_mov_b32 s{sRQ}, s14")
    mk(sK, 62, f"s{sTMP}", 1 << 20)
    xl = [I(f"buffer_load_dword v{vT+8+i}, v{vT+7 if (rotq or wqmap) else vROW}, {srd(sX)}, s{sROT+i} offen") for i in range(4)]
    issued = [0]
    kvid = {}
    def issue_kv():
        g = issued[0]; issued[0] += 1
        alloc(g)
        s = sK if g < 256 else sV
        if g == 256 and not stg: I(f"s_mov_b32 s{sISS}, 0")
        kvid[g] = I(f"buffer_load_dwordx4 {slot_of[g][0]}[{slot(g)}:{slot(g)+3}], v{vKV2 if (swp and ((g & 255) // swp) & 1) else vKV}, {srd(s)}, s{sISS} offen offset:{(g&3)*1024}{kp if g < 256 else vp}")
        if (g & 3) == 3 and (stg or g != 255) and g != 511:
            if HOLES: I(f"s_or_b32 s{sISS}, s{sISS}, {HOLES}")
            I(f"s_add_u32 s{sISS}, s{sISS}, {1 << cbits[0]}")
            if stg: I(f"s_and_b32 s{sISS}, s{sISS}, {CM}")
    wqid = []
    def issue_wq():
        f = len(wqid)
        if rotq:
            I(f"s_add_u32 s{sWOFF}, s{sRQ}, {f*8192}")
            I(f"s_and_b32 s{sWOFF}, s{sWOFF}, 0x3ffff")
        else: I(f"s_mov_b32 s{sWOFF}, {[f, 32 * (f >> 1) + (f & 1), 8 * (f >> 1) + (f & 1)][wqmap] * 8192}")
        wqid.append(I(f"buffer_load_dwordx4 a[{4*f}:{4*f+3}], v{vWQ}, {srd(sWQ)}, s{sWOFF} offen{qp}"))
    mk(sWQ, 66, None, 4 << 20)
    seq = ['K'] * kfirst
    acc = 0
    nwq = 0
    while nwq < NWQ:
        seq.append('W'); nwq += 1
        acc += ratio[0]
        while acc >= ratio[1] and nwq < NWQ:
            seq.append('K'); acc -= ratio[1]
    seqid = []
    def issue_seq(n):
        if seq[n] == 'K': issue_kv()
        else: issue_wq()
        seqid.append(a.vm - 1)
    seqpos = 0
    while seqpos < min(M, len(seq)):
        issue_seq(seqpos); seqpos += 1
    I(f"s_lshl_b32 s{sTMP2}, s{sTB}, 7")
    I(f"s_load_dwordx2 s[{sTAG}:{sTAG+1}], s[82:83], s{sTMP2}")
    I(f"s_lshl_b32 s{sTMP2}, s{sB}, 7")
    I(f"s_load_dwordx2 s[{sTAGP}:{sTAGP+1}], s[82:83], s{sTMP2}")
    mk(sV, 64, f"s{sRQ}" if tab else f"s{sTMP}", 1 << 20)
    I(f"s_lshl_b32 s{sTMP}, s{sH}, 17")
    mk(sWO, 68, f"s{sTMP}", 1 << 17)
    I(f"s_lshl_b32 s{sTMP}, s{sJF}, 16")
    mk(sWD, 76, f"s{sTMP}", 1 << 16)
    I(f"s_cmp_ge_u32 s{sTC}, 28")
    I(f"s_cselect_b32 s{sWD+2}, 0, s{sWD+2}")
    I(f"s_lshl_b32 s{sTMP}, s{sTB}, 10")
    mk(sXT, 60, f"s{sTMP}", 1024)
    mk(sOUT, 78, None, 8192)
    mk(sWS, 82, None, 0xa00000)
    I(f"s_lshl_b32 s{sTMP}, s{sW}, 8")
    I(f"v_lshlrev_b32 v{vWO}, 15, v{SS}")
    I(f"v_add3_u32 v{vWO}, v{vWO}, v{vT+3}, s{sTMP}")
    I(f"v_lshlrev_b32 v{vWD}, 14, v{SS}")
    I(f"v_add3_u32 v{vWD}, v{vWD}, v{vT+3}, s{sTMP}")
    I(f"v_cmp_gt_u32 vcc, 8, v{J16}")
    I(f"v_mov_b32 v{vT+4}, s74")
    I(f"v_mov_b32 v{vT+5}, s72")
    I(f"v_cndmask_b32 v{vGU}, v{vT+4}, v{vT+5}, vcc")
    I(f"v_mov_b32 v{vT+4}, s75")
    I(f"v_mov_b32 v{vT+5}, s73")
    I(f"v_cndmask_b32 v{vGU+1}, v{vT+4}, v{vT+5}, vcc")
    I(f"s_mul_i32 s{sTMP}, s{sW}, {128*3584}")
    I(f"s_lshl_b32 s{sTMP2}, s{sJF}, 7")
    I(f"s_add_u32 s{sTMP}, s{sTMP}, s{sTMP2}")
    I(f"v_mul_u32_u24 v{vT+4}, {32*3584}, v{SS}")
    I(f"v_and_b32 v{vT+5}, 0x70, v{vT+3}")
    I(f"v_add3_u32 v{vT+4}, v{vT+4}, v{vT+5}, s{sTMP}")
    I(f"s_cmp_ge_u32 s{sTC}, 28")
    I(f"s_cselect_b32 s{sTMP}, 0, -1")
    I(f"s_cselect_b32 s{sGUSTEP}, 0, 7168")
    I(f"v_and_b32 v{vT+4}, s{sTMP}, v{vT+4}")
    I(f"v_mov_b32 v{vT+5}, 0")
    I(f"v_lshl_add_u64 v[{vGU}:{vGU+1}], v[{vT+4}:{vT+5}], 0, v[{vGU}:{vGU+1}]")
    I(f"s_mov_b32 s{sGUSTEP+1}, 0")
    I(f"s_lshl_b32 s{sTMP}, s{sW}, 9")
    I(f"v_lshlrev_b32 v{vLW}, 5, v{J16}")
    I(f"v_lshlrev_b32 v{vT+4}, 3, v{SS}")
    I(f"v_add3_u32 v{vLW}, v{vLW}, v{vT+4}, s{sTMP}")
    I(f"s_lshl_b32 s{sTMP}, s2, 12")
    I(f"v_lshl_add_u32 v{vPUB}, v{vLW}, 1, s{sTMP}")
    I(f"s_lshl_b32 s{sTMP}, s{sTB}, 17")
    I(f"s_lshl_b32 s{sTMP2}, s{sTC}, 7")
    I(f"s_add_u32 s{sTMP}, s{sTMP}, s{sTMP2}")
    I(f"s_lshl_b32 s{sTMP2}, s{sW}, 5")
    I(f"s_add_u32 s{sTMP}, s{sTMP}, s{sTMP2}")
    I(f"v_lshrrev_b32 v{vGAT}, 1, v{vLANE}")
    I(f"v_lshlrev_b32 v{vGAT}, 12, v{vGAT}")
    I(f"v_and_b32 v{vT+4}, 16, v{vT+3}")
    I(f"v_add3_u32 v{vGAT}, v{vGAT}, v{vT+4}, s{sTMP}")
    if halfx:
        I(f"s_lshl_b32 s{sTMP}, s{sTB}, 17")
        I(f"s_lshl_b32 s{sTMP2}, s{sTC}, 6")
        I(f"s_add_u32 s{sTMP}, s{sTMP}, s{sTMP2}")
        I(f"s_lshr_b32 s{sTMP2}, s{sW}, 1")
        I(f"s_lshl_b32 s{sTMP2}, s{sTMP2}, 5")
        I(f"s_add_u32 s{sTMP}, s{sTMP}, s{sTMP2}")
        I(f"v_lshrrev_b32 v{vGAT}, 1, v{vLANE}")
        I(f"v_lshlrev_b32 v{vGAT}, 12, v{vGAT}")
        I(f"v_add3_u32 v{vGAT}, v{vGAT}, v{vT+4}, s{sTMP}")
        I(f"s_lshl_b32 s{sTMP}, s2, 12")
        I(f"v_lshlrev_b32 v{vT+4}, 3, v{SS}")
        I(f"v_add3_u32 v{vPUB}, v{vLW}, v{vT+4}, s{sTMP}")
    I(f"s_mov_b32 s{sGOFF}, {P1OFF}")
    I(f"v_lshlrev_b32 v{vHROW}, 4, v{vLANE}")
    I(f"v_lshlrev_b32 v{vLO}, 3, v{vLANE}")
    I(f"v_add_u32 v{vLO}, {LO}, v{vLO}")
    I(f"v_add_u32 v{vLGU}, {LGU}, v{vROW}")
    I(f"v_lshlrev_b32 v{vLQ}, 5, v{J16}")
    I(f"v_and_b32 v{vHST}, 4, v{vROW}")
    I(f"v_and_b32 v{vT+4}, 3, v{vLANE}")
    I(f"v_mov_b32 v{vT+5}, 0xffff")
    I(f"v_mov_b32 v{vT+6}, 0xffff0000")
    I(f"v_mov_b32 v{vM0}, 0")
    I(f"v_mov_b32 v{vM1}, 0")
    for val, dst, src in ((0, vM0, vT+5), (1, vM0, vT+6), (2, vM1, vT+5), (3, vM1, vT+6)):
        I(f"v_cmp_eq_u32 vcc, {val}, v{vT+4}")
        I(f"v_cndmask_b32 v{dst}, v{dst}, v{src}, vcc")
    I(f"s_mov_b32 s{sODD}, 0xaaaaaaaa"); I(f"s_mov_b32 s{sODD+1}, 0xaaaaaaaa")
    I(f"s_mov_b32 s{sBIT1}, 0xcccccccc"); I(f"s_mov_b32 s{sBIT1+1}, 0xcccccccc")
    I(f"s_mov_b32 s{sL2E}, {f32(1.4426950408889634)}")
    I(f"s_mov_b32 s{sSCALE}, {f32(128 ** -0.5)}")
    I(f"s_mov_b32 s{sFFFF}, 0xffff")
    I(f"s_mov_b32 s{sP2}, {P2OFF}")
    I(f"s_lshl_b32 s{sTMP}, s{sTB}, 10")
    I(f"s_lshl_b32 s{sTMP2}, s{sTC}, 5")
    I(f"s_add_u32 s{sOUTO}, s{sTMP}, s{sTMP2}")
    I(f"s_lshl_b32 s{sTMP2}, s{sW}, 3")
    I(f"s_add_u32 s{sOUTO}, s{sOUTO}, s{sTMP2}")
    I(f"s_lshl_b32 s{sHST}, s{sOUTO}, 2")
    I(f"s_add_u32 s{sHST}, s{sHST}, {HOFF}")
    I(f"s_lshl_b32 s{sTMP}, s{sTB}, 12")
    I(f"s_lshl_b32 s{sROT}, s{sW}, 10")
    I(f"s_add_u32 s{sROT}, s{sROT}, s{sTMP}")
    I(f"s_add_u32 s{sROT}, s{sROT}, {HOFF}")
    I(f"s_add_u32 s{sHSTA}, s{sHST}, {HAOFF - HOFF}")
    I(f"s_add_u32 s{sROTA}, s{sROT}, {HAOFF - HOFF}")
    I(f"s_mov_b32 s{sP2A}, {P2AOFF}")
    I(f"v_mov_b32 v{vMAX}, 0xff800000")
    I("s_waitcnt lgkmcnt(0)")
    for tg in (sTAG, sTAGP):
        I(f"s_mul_i32 s{tg}, s{tg}, 1664525")
        I(f"s_add_u32 s{tg}, s{tg}, 1013904223")
        I(f"s_mul_i32 s{tg+1}, s{tg+1}, 22695477")
        I(f"s_add_u32 s{tg+1}, s{tg+1}, 1")
    I(f"v_mov_b32 v{vPB+2}, s{sTAGP}")
    I(f"v_mov_b32 v{vPB+3}, s{sTAGP+1}")
    if fixref:
        mk(sDBG if False else 40, 80, None, 256) if False else None
        I(f"s_or_b32 s{sTMP}, s2, s{sW}")
        I(f"s_cmp_lg_u32 s{sTMP}, 0")
        I("s_cbranch_scc1 L_noref")
        I(f"v_mov_b32 v{vT+4}, s{sT0}")
        I(f"v_mov_b32 v{vT+5}, 0")
        I("s_mov_b64 exec, 1")
        a.X(f"global_store_dword v{vT+5}, v{vT+4}, s[80:81] sc1")
        I("s_mov_b64 exec, -1")
        I("L_noref:")
        I(f"s_mov_b64 s[76:77], s[80:81]")
    pstamp(2)
    a.C("LayerNorm(x[b]) with the reference's bf16 roundings, then q = xn @ wq[:, head]")
    a.wait_vm(xl[3])
    pstamp(3)
    X0, X1 = vT, vT + 1
    ln([vT + 8 + i for i in range(4)], vP, vP + 1, vS)
    pstamp(4)
    for u in range(4):
        for r in range(2):
            afrag(vA + 4 * u + 2 * r, vP + r, u)
    base = xl[3] + 1
    fdone = 0
    def do_wq_upto(idx):
        nonlocal fdone
        while fdone < len(wqid) and wqid[fdone] <= idx:
            f = fdone; fdone += 1
            aa, u, r = f >> 3, (f >> 1) & 3, f & 1
            mfma2(vA + 4 * u + 2 * r, "a", 4 * f, aa, f == 0)
    while seqpos < len(seq):
        idx = seqid[seqpos - M]
        a.wait_vm(idx)
        issue_seq(seqpos); seqpos += 1
        do_wq_upto(idx)
    kleft = qextra
    while fdone < NWQ:
        idx = wqid[fdone]
        a.wait_vm(idx)
        while issued[0] - sum(1 for g in kvid if kvid[g] <= idx) < N: issue_kv()
        do_wq_upto(idx)
    for _ in range(qdelay):
        a.wait_vm(kvid[issued[0] - N]); issue_kv()
    pstamp(8)
    swap_reduce(vT)
    I(f"ds_write_b64 v{vLW}, v[{vT}:{vT+1}] offset:{LQ}")
    if qextra > 0: issue_kv()
    I("s_waitcnt lgkmcnt(0)")
    I("s_barrier")
    if qextra > 1: issue_kv()
    pstamp(9)
    for w in range(4):
        I(f"ds_read_b128 v[{vS+8*(w&1)}:{vS+8*(w&1)+3}], v{vLQ} offset:{LQ+w*512}" if w < 2 else f"ds_read_b128 v[{vA+8*(w&1)}:{vA+8*(w&1)+3}], v{vLQ} offset:{LQ+w*512}")
        I(f"ds_read_b128 v[{vS+8*(w&1)+4}:{vS+8*(w&1)+7}], v{vLQ} offset:{LQ+w*512+16}" if w < 2 else f"ds_read_b128 v[{vA+8*(w&1)+4}:{vA+8*(w&1)+7}], v{vLQ} offset:{LQ+w*512+16}")
    I("s_waitcnt lgkmcnt(0)")
    for i in range(8): I(f"v_add_f32 v{vS+i}, v{vS+i}, v{vS+8+i}")
    for i in range(8): I(f"v_add_f32 v{vA+i}, v{vA+i}, v{vA+8+i}")
    for i in range(8): I(f"v_add_f32 v{vS+i}, v{vS+i}, v{vA+i}")
    if qextra > 2: issue_kv()
    for i in range(4): I(f"v_cvt_pk_bf16_f32 v{vQ+i}, v{vS+2*i}, v{vS+2*i+1}")
    stamp()

    side = []
    side_last = [0]
    def mkside():
        def clr():
            I(f"s_and_b32 s{sTMP}, s{sOUTO}, 1023")
            I(f"buffer_load_dword v{vXRES}, v{vHST}, {srd(sXT)}, s{sTMP} offen")
        side.append(clr)
        def wo(f):
            def g():
                assert 128 + 4 * f not in busy_a
                I(f"s_mov_b32 s{sWOFF}, {(f>>2)*4096}")
                I(f"buffer_load_dwordx4 a[{128+4*f}:{128+4*f+3}], v{vWO}, {srd(sWO)}, s{sWOFF} offen offset:{(f&3)*1024}{wp}")
            return g
        def gu(f):
            def g():
                side_last[0] = I(f"global_load_dwordx4 a[{4*f}:{4*f+3}], v[{vGU}:{vGU+1}], off offset:{(f&1)*3584}{fp}")
                if f & 1: I(f"v_lshl_add_u64 v[{vGU}:{vGU+1}], v[{vGU}:{vGU+1}], 0, s[{sGUSTEP}:{sGUSTEP+1}]")
            return g
        def wd(f):
            def g():
                I(f"s_mov_b32 s{sWOFF}, {(f>>2)*4096}")
                I(f"buffer_load_dwordx4 v[{vWDF+4*f}:{vWDF+4*f+3}], v{vWD}, {srd(sWD)}, s{sWOFF} offen offset:{(f&3)*1024}{fp}")
            return g
        for f in range(32): side.append(wo(f))
        for f in range(32): side.append(gu(f))
        for f in range(16): side.append(wd(f))
    mkside()
    if noside: side = side[:1]
    deferred = side[len(side) - ND:] if ND else []
    side = side[:len(side) - ND]
    late_cs = ND > 16
    side_steps = {}
    for k in range(len(side)):
        pos = wstart + (wend - wstart) * k // len(side)
        side_steps.setdefault(pos, []).append(side[k])

    work = []
    def push_group(g4):
        B, aa = g4 >> 2, g4 & 3
        def D(e):
            def f():
                src = []
                for c in range(4):
                    g = 4 * g4 + c
                    if slot_of[g][0] == "a":
                        I(f"v_accvgpr_read_b32 v{vA+c}, a{slot(g)+e}"); src.append(vA + c)
                    else: src.append(slot(g) + e)
                for c in range(4):
                    I(f"v_dot2_f32_bf16 v{vP+c}, v{src[c]}, v{vQ+e}, " + ("0" if e == 0 else f"v{vP+c}"))
                if e == 3:
                    for c in range(4): release(4 * g4 + c)
            return f
        def Rd():
            I(f"v_add_f32_dpp v{vP}, v{vP}, v{vP} row_ror:8 row_mask:0xf bank_mask:0x3")
            I(f"v_add_f32_dpp v{vP+1}, v{vP+1}, v{vP+1} row_ror:8 row_mask:0xf bank_mask:0x3")
            I(f"v_add_f32_dpp v{vP}, v{vP+2}, v{vP+2} row_ror:8 row_mask:0xf bank_mask:0xc")
            I(f"v_add_f32_dpp v{vP+1}, v{vP+3}, v{vP+3} row_ror:8 row_mask:0xf bank_mask:0xc")
            I(f"v_add_f32_dpp v{vG+aa}, v{vP}, v{vP} row_half_mirror row_mask:0xf bank_mask:0x5")
            I(f"v_add_f32_dpp v{vG+aa}, v{vP+1}, v{vP+1} row_half_mirror row_mask:0xf bank_mask:0xa")
        def F1():
            for q in range(4):
                I(f"v_add_f32_dpp v{vG+q}, v{vG+q}, v{vG+q} quad_perm:[1,0,3,2] row_mask:0xf bank_mask:0xf")
            I(f"v_cndmask_b32 v{vG}, v{vG}, v{vG+1}, s[{sODD}:{sODD+1}]")
            I(f"v_cndmask_b32 v{vG+2}, v{vG+2}, v{vG+3}, s[{sODD}:{sODD+1}]")
            I(f"v_add_f32_dpp v{vG}, v{vG}, v{vG} quad_perm:[2,3,0,1] row_mask:0xf bank_mask:0xf")
            I(f"v_add_f32_dpp v{vG+2}, v{vG+2}, v{vG+2} quad_perm:[2,3,0,1] row_mask:0xf bank_mask:0xf")
            I(f"v_cndmask_b32 v{vS+B}, v{vG}, v{vG+2}, s[{sBIT1}:{sBIT1+1}]")
        def F2():
            I(f"v_cvt_pk_bf16_f32 v{vS+B}, v{vS+B}, v{vS+B}")
            I(f"v_and_b32 v{vS+B}, 0xffff0000, v{vS+B}")
            I(f"v_mul_f32 v{vS+B}, s{sSCALE}, v{vS+B}")
            I(f"v_cvt_pk_bf16_f32 v{vS+B}, v{vS+B}, v{vS+B}")
            I(f"v_and_b32 v{vS+B}, 0xffff0000, v{vS+B}")
            I(f"v_max_f32 v{vMAX}, v{vMAX}, v{vS+B}")
        work.extend([D(0), D(1), D(2), D(3), Rd])
        if aa == 3: work.extend([F1, F2])
    if pf or pft:
        I(f"s_getpc_b64 s[{sPC}:{sPC+1}]")
        I("L_pc:")
        I(f"s_lshl_b32 s{sTMP}, s{sW}, 7")
        I(f"s_add_u32 s{sPC}, s{sPC}, s{sTMP}")
        I(f"s_addc_u32 s{sPC+1}, s{sPC+1}, 0")
    def codepf(i):
        if i % 16 == 0: I(f"L_blk{i // 16}:")
        if pf and i % 16 == 3 and i // 16 + pfd < 32:
            I(f"s_mov_b32 s{sPFD-1}, L_blk{i // 16 + pfd}-L_pc")
            for k in range(pf if i // 16 + pfd < 17 else (pf + 1) // 2 + 1):
                I(f"s_load_dword s{sPFD}, s[{sPC}:{sPC+1}], s{sPFD-1} offset:{512 * k}")
        if pft and i == 451:
            I(f"s_mov_b32 s{sPFD-1}, L_tail-L_pc")
            for k in range(6):
                I(f"s_load_dword s{sPFD}, s[{sPC}:{sPC+1}], s{sPFD-1} offset:{512 * k}")
    a.C("K phase: 16 blocks of 64 keys per wave; weight slices for the tail are loaded in between")
    I1 = issued[0]
    boost = fB or fC or ctl
    I(f"s_mov_b32 s{sLVL}, 0")
    def nominal(i):
        ns = sum(len(v) for k, v in side_steps.items() if k <= i)
        return T0 + Ts * (i + 1) + Tside * ns
    def control(i):
        if not ctl or i < ustart: return
        if i % U == 0: I(f"s_memrealtime s[{sNOW}:{sNOW+1}]")
        if i % U == 2:
            a.C("window level = how far this wave is behind the expected stream position")
            I("s_waitcnt lgkmcnt(0)")
            I(f"s_sub_u32 s{sLVL}, s{sNOW}, s{sT0}")
            I(f"s_sub_i32 s{sLVL}, s{sLVL}, {int(nominal(i - 3) / 10)}")
            I(f"s_mul_i32 s{sLVL}, s{sLVL}, {int(65536 * 10 / dl)}")
            I(f"s_ashr_i32 s{sLVL}, s{sLVL}, 16")
    if fB:
        I(f"s_getreg_b32 s{sTMP}, hwreg(HW_REG_XCC_ID, 0, 1)")
        I(f"s_cmp_eq_u32 s{sTMP}, 0")
        I("s_cselect_b64 vcc, -1, 0")
    accs = [0.0, 0.0]
    def paced1(i, n):
        tgt = min(i + 2 + n, 512)
        if issued[0] >= tgt: return
        if issued[0] == tgt - 1 and i + 1 in kvid:
            accs[1] += fC; accs[0] += fB
            if ctl and i > ustart and i % cands == 0:
                j = (i // cands) % nl
                th = int(format(j, f"0{nl.bit_length()-1}b")[::-1], 2) + 1
                I(f"s_cmp_ge_i32 s{sLVL}, {th}")
                I(f"s_cbranch_scc1 L_b{i}")
                I(f"s_waitcnt vmcnt({a.vm - 1 - kvid[i+1]})")
                I(f"L_b{i}:")
            elif accs[1] >= 1: accs[1] -= 1
            elif accs[0] >= 1:
                accs[0] -= 1
                I(f"s_cbranch_vccnz L_b{i}")
                I(f"s_waitcnt vmcnt({a.vm - 1 - kvid[i+1]})")
                I(f"L_b{i}:")
            else: a.wait_vm(kvid[i + 1])
        while issued[0] < tgt: issue_kv()
    def paced2(i, n):
        tgt = min(i + 3 + n, 512)
        if issued[0] >= tgt: return
        while issued[0] < tgt - 1:
            a.wait_vm(kvid[issued[0] - n]); issue_kv()
        if i <= ustart:
            a.wait_vm(kvid[i + 2])
        else:
            k = i & 15
            ta = 1 if k == 0 else 2 if k == 8 else 3 if k % 4 == 0 else 4 if k % 2 == 0 else 5
            tb = 6 if k % 4 == 0 else 7 if k % 2 == 0 else 8
            if neg and k % 2 == 1 and i + 3 in kvid:
                a.wait_vm(kvid[i + 2])
                tn_ = {1: 1, 9: 2, 5: 3, 13: 3}.get(k, 4)
                I(f"s_cmp_gt_i32 s{sLVL}, {-neg - tn_}")
                I(f"s_cbranch_scc1 L_b{i}")
                I(f"s_waitcnt vmcnt({a.vm - 1 - kvid[i+3]})")
                I(f"L_b{i}:")
            elif ta > cap:
                a.wait_vm(kvid[i + 2])
            else:
                if tb > cap: a.wait_vm(kvid[i + 1])
                elif kvid[i + 1] >= a.vm_done:
                    I(f"s_cmp_ge_i32 s{sLVL}, {tb}")
                    I(f"s_cbranch_scc1 L_b{i}")
                    I(f"s_waitcnt vmcnt({a.vm - 1 - kvid[i+1]})")
                I(f"s_cmp_ge_i32 s{sLVL}, {ta}")
                I(f"s_cbranch_scc1 L_b{i}")
                I(f"s_waitcnt vmcnt({a.vm - 1 - kvid[i+2]})")
                I(f"L_b{i}:")
        issue_kv()
    paced = paced2 if two else paced1
    for i in range(256):
        a.wait_vm(kvid[i])
        control(i)
        codepf(i)
        if boost and i + 1 + N >= I1 + i // cu: paced(i, N)
        tgt = max(i + 1 + N, I1 + i // cu)
        while issued[0] < tgt: issue_kv()
        for fn in side_steps.get(i, []): fn()
        if kstamps and i % 32 == 31: pstamp(i // 32, True)
        if (i & 3) == 3:
            if nokc and i > 64:
                for c in range(4): release(i - 3 + c)
            else: push_group(i >> 2)
        n = 1 if len(work) <= 4 - (i & 3) + 0 else 2
        for _ in range(min(n, len(work))): work.pop(0)()
    nV = NV or N
    xleft = [Tx]
    def xissue():
        if xleft[0] > 0:
            xleft[0] -= 1; issue_kv()
    while work: work.pop(0)()
    stamp()
    a.C("softmax: wave max/sum, exchange (max, sum) through LDS, p = bf16(exp(s - max) / sum)")
    xissue()
    wave_reduce(vMAX, vT, "v_max_f32")
    I(f"v_mul_f32 v{vT}, s{sL2E}, v{vMAX}")
    for B in range(16): I(f"v_fma_f32 v{vS+B}, v{vS+B}, s{sL2E}, -v{vT}")
    for B in range(16): I(f"v_exp_f32 v{vS+B}, v{vS+B}")
    xissue()
    for k in range(8): I(f"v_add_f32 v{vA+k}, v{vS+2*k}, v{vS+2*k+1}")
    for k in range(4): I(f"v_add_f32 v{vA+k}, v{vA+k}, v{vA+4+k}")
    for k in range(2): I(f"v_add_f32 v{vA+k}, v{vA+k}, v{vA+2+k}")
    I(f"v_add_f32 v{vT+3}, v{vA}, v{vA+1}")
    wave_reduce(vT + 3, vT + 1, "v_add_f32")
    I(f"v_mov_b32 v{vT+2}, v{vT}")
    I(f"s_lshl_b32 s{sTMP}, s{sW}, 3")
    I(f"v_mov_b32 v{vT+1}, s{sTMP}")
    I("s_mov_b64 exec, 1")
    I(f"ds_write_b64 v{vT+1}, v[{vT+2}:{vT+3}] offset:{LML}")
    I("s_mov_b64 exec, -1")
    I(f"v_mov_b32 v{vT+1}, 0")
    xissue()
    I("s_waitcnt lgkmcnt(0)")
    I("s_barrier")
    xissue()
    I(f"ds_read_b128 v[{vA}:{vA+3}], v{vT+1} offset:{LML}")
    I(f"ds_read_b128 v[{vA+4}:{vA+7}], v{vT+1} offset:{LML+16}")
    I("s_waitcnt lgkmcnt(0)")
    I(f"v_max3_f32 v{vT+5}, v{vA}, v{vA+2}, v{vA+4}")
    I(f"v_max_f32 v{vT+5}, v{vT+5}, v{vA+6}")
    for k in range(4): I(f"v_sub_f32 v{vA+2*k}, v{vA+2*k}, v{vT+5}")
    I(f"v_sub_f32 v{vT}, v{vT}, v{vT+5}")
    for k in range(4): I(f"v_exp_f32 v{vA+2*k}, v{vA+2*k}")
    I(f"v_exp_f32 v{vT}, v{vT}")
    I(f"v_mul_f32 v{vA}, v{vA}, v{vA+1}")
    I(f"v_mul_f32 v{vA+4}, v{vA+4}, v{vA+5}")
    I(f"v_fmac_f32 v{vA}, v{vA+2}, v{vA+3}")
    I(f"v_fmac_f32 v{vA+4}, v{vA+6}, v{vA+7}")
    I(f"v_add_f32 v{vA}, v{vA}, v{vA+4}")
    I(f"v_rcp_f32 v{vA}, v{vA}")
    I(f"v_mul_f32 v{vT}, v{vT}, v{vA}")
    while xleft[0] > 0: xissue()
    for B in range(16): I(f"v_mul_f32 v{vS+B}, v{vS+B}, v{vT}")
    for B in range(16): I(f"v_cvt_pk_bf16_f32 v{vS+B}, v{vS+B}, v{vS+B}")
    stamp()
    a.C("V phase: o += p * V")
    hu_done = []
    cnt_id = None
    for i in range(256, 512):
        B, t = (i - 256) >> 4, i & 15
        u, c = t >> 2, t & 3
        A = vA + 2 * ((i >> 2) & 1)
        if i == 256: afrag(A, vS, 0)
        a.wait_vm(kvid[i])
        if not (NE and i >= 512 - E): control(i)
        codepf(i)
        if boost and not (NE and i >= 512 - E): paced(i, nV)
        tgt = min(i + 1 + (NE if (NE and i >= 512 - E) else nV), 512)
        while issued[0] < tgt: issue_kv()
        for fn in side_steps.get(i, []): fn()
        if issued[0] == 512:
            for _ in range(min(dper, len(deferred))): deferred.pop(0)()
            if hu and not hu_done and i >= 511 - 8 + hlead:
                hu_done.append(1)
                I(f"s_lshl_b32 s{sFL}, s2, 7")
                I(f"s_add_u32 s{sFL}, s{sFL}, {FLOFF}")
                I(f"s_cmp_lg_u32 s{sW}, 0")
                I("s_cbranch_scc1 L_nohu")
                I("s_mov_b64 exec, 1")
                a.X(f"buffer_store_dwordx4 v[{vPB}:{vPB+3}], v{vHROW}, {srd(sWS)}, s{sFL} offen {spol}")
                I("s_mov_b64 exec, -1")
                I("L_nohu:")
                I(f"s_lshl_b32 s{sFL}, s{sTB}, 12")
                I(f"s_add_u32 s{sFL}, s{sFL}, {FLOFF}")
                I(f"v_lshrrev_b32 v{vMAX}, 1, v{vLANE}")
                I(f"v_lshlrev_b32 v{vMAX}, 7, v{vMAX}")
                I(f"s_mov_b32 s{sC1}, {P1B}")
                I(f"s_mov_b32 s{sC2}, {P1C}")
        mfma2(A, "v", slot(i), c, i == 256)
        release(i)
        if kstamps and i % 32 == 31: pstamp(i // 32, True)
        if fast and i == pretouch:
            I(f"buffer_load_dwordx4 v[{vT+4}:{vT+7}], v{vHROW}, {srd(sWS)}, s{sROTA} offen sc1")
        if fast and i == pretouch + 4:
            I(f"buffer_load_dwordx4 v[{vT+4}:{vT+7}], v{vGAT}, {srd(sWS)}, s{sP2A} offen sc1")
        if late_cs: pass
        elif i == cs_start - 1:
            assert side_last[0] < a.vm_done
            I(f"v_and_b32 v{vA+4}, 0x3f803f80, v{vM0}")
            I(f"v_and_b32 v{vA+5}, 0x3f803f80, v{vM1}")
        if not late_cs and cs_start <= i < cs_start + 32:
            mfma2(vA + 4, "a", 4 * (i - cs_start), 0, i == cs_start, acc=vT + 8)
        if not late_cs and i == cs_start + 33:
            swap_reduce(vT, acc=vT + 8)
            I(f"ds_write_b64 v{vLW}, v[{vT}:{vT+1}] offset:{LCS}")
        if c == 0 and i + 4 < 512:
            j = i + 4
            afrag(vA + 2 * ((j >> 2) & 1), vS + ((j - 256) >> 4), (j & 15) >> 2)
    stamp()
    a.C("tail: reduce o over the waves, o @ wo slice, publish, then the three hand-offs")
    I("L_tail:")
    tstamp()
    FS = RING0 + 48
    if hu: a.X(f"buffer_load_dwordx4 v[{FS}:{FS+3}], v{vMAX}, {srd(sWS)}, s{sFL} offen {lpol}")
    swap_reduce(vT)
    I(f"ds_write_b64 v{vLW}, v[{vT}:{vT+1}] offset:{LO}")
    for _ in range(min(3, len(deferred))): deferred.pop(0)()
    I("s_waitcnt lgkmcnt(0)")
    tstamp()
    I("s_barrier")
    tstamp()
    I(f"ds_read2_b64 v[{vT}:{vT+3}], v{vLO} offset0:0 offset1:64")
    I(f"ds_read2_b64 v[{vT+4}:{vT+7}], v{vLO} offset0:128 offset1:192")
    vCS = vS
    def read_cs():
        for w in range(4):
            I(f"ds_read2st64_b32 v[{vCS+2*w}:{vCS+2*w+1}], v{vLGU} offset0:{(LCS-LGU)//256+2*w} offset1:{(LCS-LGU)//256+2*w+1}")
    if not late_cs: read_cs()
    for _ in range(min(3, len(deferred))): deferred.pop(0)()
    I("s_waitcnt lgkmcnt(0)" if (tstamps or late_cs) else "s_waitcnt lgkmcnt(4)")
    tstamp()
    I(f"v_add_f32 v{vT}, v{vT}, v{vT+2}")
    I(f"v_add_f32 v{vT+1}, v{vT+1}, v{vT+3}")
    I(f"v_add_f32 v{vT+4}, v{vT+4}, v{vT+6}")
    I(f"v_add_f32 v{vT+5}, v{vT+5}, v{vT+7}")
    I(f"v_add_f32 v{vT}, v{vT}, v{vT+4}")
    I(f"v_add_f32 v{vT+1}, v{vT+1}, v{vT+5}")
    I(f"v_cvt_pk_bf16_f32 v{vP}, v{vT}, v{vT}")
    I(f"v_cvt_pk_bf16_f32 v{vP+1}, v{vT+1}, v{vT+1}")
    gemv_il([vP, vP + 1], "a", 128, deferred)
    tstamp()
    swap_reduce(vPB)
    tstamp()
    if halfx: I("s_mov_b32 exec_hi, 0")
    I(f"buffer_store_dwordx4 v[{vPB}:{vPB+3}], v{vPUB}, {srd(sWS)}, s{sGOFF} offen {spol}")
    if halfx: I("s_mov_b64 exec, -1")
    if hu and K1 > 1: I(f"buffer_store_dwordx4 v[{vPB}:{vPB+3}], v{vPUB}, {srd(sWS)}, s{sC1} offen {spol}")
    if hu and K1 > 2: I(f"buffer_store_dwordx4 v[{vPB}:{vPB+3}], v{vPUB}, {srd(sWS)}, s{sC2} offen {spol}")
    stamp()
    vR = vG
    vPUB2 = vWQ

    def poll(label, S, voff, soff, nres, pre=None, th=0, soffA=None, lazy=None, delay=0):
        ld = lambda so: f"buffer_load_dwordx4 v[{S}:{S+3}], v{voff}, {srd(sWS)}, s{so} offen {lpol}"
        def check():
            I("s_waitcnt vmcnt(0)")
            I(f"v_cmp_eq_u64 vcc, s[{sTAG}:{sTAG+1}], v[{S+2}:{S+3}]")
            for r in range(nres): I(f"v_cndmask_b32 v{vR+r}, v{vR+r}, v{S+r}, vcc")
            I("s_andn2_b64 exec, exec, vcc")
            I(f"s_cbranch_scc0 {label}_ok")
        if delay:
            if pre: pre()
            a.C("back off before the first poll: reading a line before it is written slows the write down")
            I(f"s_sleep {delay}")
        a.X(ld(soffA if soffA else soff))
        if pre and not delay: pre()
        I(f"s_mov_b32 s{sCNT}, {SPIN}")
        I(f"{label}:")
        check()
        if th:
            I(f"s_bcnt1_i32_b64 s{sTMP}, exec")
            I(f"s_cmp_le_u32 s{sTMP}, {th}")
            I(f"s_cbranch_scc1 {label}_f")
            I(f"s_sleep {slow}")
            I(f"{label}_f:")
        if psl and not th: I(f"s_sleep {psl}")
        I(f"s_sub_u32 s{sCNT}, s{sCNT}, 1")
        if soffA:
            I(f"s_and_b32 s{sTMP}, s{sCNT}, {NA-1}")
            I(f"s_cselect_b32 s{sTMP}, s{soffA}, s{soff}")
            if lazy:
                I(f"s_cbranch_scc1 {label}_n")
                I("s_mov_b64 s[8:9], exec")
                I("s_mov_b64 exec, 3")
                a.X(lazy)
                I("s_mov_b64 exec, s[8:9]")
                I(f"{label}_n:")
            a.X(ld(sTMP))
        else:
            a.X(ld(soff))
        I(f"s_cmp_lg_u32 s{sCNT}, 0")
        I(f"s_cbranch_scc1 {label}")
        I(f"{label}_ok:")
        I("s_mov_b64 exec, -1")

    def sample(label, S, voff, soffs, nres, gap):
        ld = lambda k: f"buffer_load_dwordx4 v[{S+4*k}:{S+4*k+3}], v{voff}, {srd(sWS)}, s{soffs[k]} offen {lpol}"
        def check(k, cnt):
            I(f"s_waitcnt vmcnt({cnt})")
            I(f"v_cmp_eq_u64 vcc, s[{sTAG}:{sTAG+1}], v[{S+4*k+2}:{S+4*k+3}]")
            for r in range(nres): I(f"v_cndmask_b32 v{vR+r}, v{vR+r}, v{S+4*k+r}, vcc")
            I("s_andn2_b64 exec, exec, vcc")
            I(f"s_cbranch_scc0 {label}_ok")
        n = len(soffs)
        a.X(ld(0))
        for k in range(1, n):
            I(f"s_sleep {gap}")
            a.X(ld(k))
            check(k - 1, 1)
        I(f"s_mov_b32 s{sCNT}, {SPIN}")
        I(f"{label}:")
        check(n - 1, 0)
        I(f"s_sub_u32 s{sCNT}, s{sCNT}, 1")
        a.X(ld(n - 1))
        I(f"s_cmp_lg_u32 s{sCNT}, 0")
        I(f"s_cbranch_scc1 {label}")
        I(f"{label}_ok:")
        I("s_mov_b64 exec, -1")

    def colsum():
        x0, x1, t0, t1 = vR, vR + 1, vT + 2, vT + 3
        for r in (8, 4, 2):
            I(f"v_add_f32_dpp v{x0}, v{x0}, v{x0} row_ror:{r} row_mask:0xf bank_mask:0xf")
            I(f"v_add_f32_dpp v{x1}, v{x1}, v{x1} row_ror:{r} row_mask:0xf bank_mask:0xf")
        for sw in ("v_permlane16_swap_b32", "v_permlane32_swap_b32"):
            I(f"v_mov_b32 v{t0}, v{x0}")
            I(f"v_mov_b32 v{t1}, v{x1}")
            I(f"{sw} v{x0}, v{t0}")
            I(f"{sw} v{x1}, v{t1}")
            I(f"v_add_f32 v{x0}, v{x0}, v{t0}")
            I(f"v_add_f32 v{x1}, v{x1}, v{t1}")
        I(f"v_cvt_pk_bf16_f32 v{x0}, v{x0}, v{x1}")
        I(f"v_lshlrev_b32 v{t0}, 16, v{x0}")
        I(f"v_and_b32 v{t1}, 0xffff0000, v{x0}")

    def pre1():
        I(f"s_lshl_b32 s{sTMP}, s{sTB}, 5")
        I(f"s_add_u32 s{sTMP}, s{sTMP}, s{sTC}")
        I(f"s_lshl_b32 s{sTMP}, s{sTMP}, 12")
        I(f"v_lshl_add_u32 v{vPUB2}, v{vLW}, 1, s{sTMP}")
        I(f"v_mov_b32 v{vPB+2}, s{sTAG}")
        I(f"v_mov_b32 v{vPB+3}, s{sTAG+1}")
        I(f"s_getreg_b32 s{sXCC}, hwreg(HW_REG_XCC_ID, 0, 4)")
        I(f"v_mov_b32 v{vPB+1}, s{sXCC}")
        I(f"v_lshlrev_b32 v{vH}, 16, v{vXRES}")
        I(f"v_and_b32 v{vH+1}, 0xffff0000, v{vXRES}")
        if late_cs:
            I(f"v_and_b32 v{vA+4}, 0x3f803f80, v{vM0}")
            I(f"v_and_b32 v{vA+5}, 0x3f803f80, v{vM1}")
            I(f"s_waitcnt vmcnt({a.vm - 1 - side_last[0] + 1})")
            for f in range(32): mfma2(vA + 4, "a", 4 * f, 0, f == 0)
            swap_reduce(vT)
            I(f"ds_write_b64 v{vLW}, v[{vT}:{vT+1}] offset:{LCS}")
            I("s_waitcnt lgkmcnt(0)")
            I("s_barrier")
            read_cs()
        I("s_waitcnt lgkmcnt(0)")
        I(f"v_add_f32 v{vCS}, v{vCS}, v{vCS+2}")
        I(f"v_add_f32 v{vCS+1}, v{vCS+1}, v{vCS+3}")
        I(f"v_add_f32 v{vCS+4}, v{vCS+4}, v{vCS+6}")
        I(f"v_add_f32 v{vCS+5}, v{vCS+5}, v{vCS+7}")
        I(f"v_add_f32 v{vCS}, v{vCS}, v{vCS+4}")
        I(f"v_add_f32 v{vCS+1}, v{vCS+1}, v{vCS+5}")
    if hu:
        I(f"s_waitcnt vmcnt({K1})")
        I(f"v_cmp_ne_u64 vcc, s[{sTAG}:{sTAG+1}], v[{FS+2}:{FS+3}]")
        I("s_mov_b64 s[8:9], vcc")
        pre1()
        I("s_mov_b64 exec, s[8:9]")
        I("s_cbranch_execz L_flx")
        poll("L_fl", FS, vMAX, sFL, 0)
        I(f"s_sleep {aY}")
        I("s_branch L_fly")
        I("L_flx:")
        I("s_mov_b64 exec, -1")
        if aX: I(f"s_sleep {aX}")
        I("L_fly:")
        sample("L_p1", RING0, vGAT, [sGOFF, sC1, sC2][:K1], 2, bS)
    else:
        poll("L_p1", RING0, vGAT, sGOFF, 2, pre1, TH, delay=d1)
    colsum()
    I(f"v_add_f32 v{vT+2}, v{vT+2}, v{vH}")
    I(f"v_add_f32 v{vT+3}, v{vT+3}, v{vH+1}")
    I(f"v_cvt_pk_bf16_f32 v{vPB}, v{vT+2}, v{vT+3}")
    I("s_mov_b64 exec, 3")
    if fast: I(f"buffer_store_dwordx4 v[{vPB}:{vPB+3}], v{vHROW}, {srd(sWS)}, s{sHSTA} offen")
    HB = f"buffer_store_dwordx4 v[{vPB}:{vPB+3}], v{vHROW}, {srd(sWS)}, s{sHST} offen {spol}"
    if not fast: I(HB)
    I("s_mov_b64 exec, -1")
    stamp()
    if not align:
        I(f"s_cmp_ge_u32 s{sTC}, 28")
        I("s_cbranch_scc1 L_noffn")
    def pre2():
        I(f"s_mov_b32 s{sC1}, {P2B}")
        I(f"s_mov_b32 s{sC2}, {P2C}")
        I(f"v_lshlrev_b32 v{vH}, 16, v{vPB}")
        I(f"v_and_b32 v{vH+1}, 0xffff0000, v{vPB}")
    poll("L_h", RING0 + 16, vHROW, sROT, 2 if fast else 1, pre2, soffA=sROTA if fast else None, lazy=HB if fast else None, delay=dH)
    if fast:
        I("s_mov_b64 exec, 3")
        I(HB)
        I("s_mov_b64 exec, -1")
        I(f"v_cmp_ne_u32 s[8:9], s{sXCC}, v{vR+1}")
    stamp()
    tstamp()
    f0, f1, s1, t = vS + 8, vS + 9, vS + 10, vS + 11
    I(f"v_lshlrev_b32 v{f0}, 16, v{vR}")
    I(f"v_and_b32 v{f1}, 0xffff0000, v{vR}")
    I(f"v_and_b32 v{vP}, 0xffff, v{vR}")
    I(f"v_lshrrev_b32 v{vP+1}, 16, v{vR}")
    I(f"v_or_b32 v{vP}, v{vP}, v{f0}")
    I(f"v_or_b32 v{vP+1}, v{vP+1}, v{f1}")
    I(f"v_add_f32 v{s1}, v{f0}, v{f1}")
    stats = []
    def red(x):
        for r in (8, 4, 2, 1):
            stats.append(f"v_add_f32_dpp v{x}, v{x}, v{x} row_ror:{r} row_mask:0xf bank_mask:0xf")
        for sw in ("v_permlane16_swap_b32", "v_permlane32_swap_b32"):
            stats.append(f"v_mov_b32 v{t}, v{x}")
            stats.append(f"{sw} v{x}, v{t}")
            stats.append(f"v_add_f32 v{x}, v{x}, v{t}")
    red(s1)
    stats.append(f"v_mul_f32 v{s1}, {f32(1/128)}, v{s1}")
    stats.append(f"v_sub_f32 v{f0}, v{f0}, v{s1}")
    stats.append(f"v_sub_f32 v{f1}, v{f1}, v{s1}")
    stats.append(f"v_mul_f32 v{f0}, v{f0}, v{f0}")
    stats.append(f"v_fmac_f32 v{f0}, v{f1}, v{f1}")
    red(f0)
    stats.append(f"v_mov_b32 v{f1}, v{s1}")
    gemv_il([vP, vP + 1], "a", 0, stats)
    tstamp()
    I(f"s_lshl_b32 s{sTMP}, s{sW}, 3")
    I(f"v_mov_b32 v{t}, s{sTMP}")
    I("s_mov_b64 exec, 1")
    I(f"ds_write_b64 v{t}, v[{f0}:{f1}] offset:{LST}")
    if fast:
        I("s_or_b32 s8, s8, s9")
        I(f"v_mov_b32 v{s1}, s8")
        I(f"v_lshrrev_b32 v{t}, 1, v{t}")
        I(f"ds_write_b32 v{t}, v{s1} offset:{LFL}")
    I("s_mov_b64 exec, -1")
    I(f"v_mov_b32 v{t}, 0")
    swap_reduce(vT)
    I(f"ds_write_b64 v{vLW}, v[{vT}:{vT+1}] offset:{LGU}")
    I("s_waitcnt lgkmcnt(0)")
    I("s_barrier")
    tstamp()
    Z = vA
    I(f"ds_read_b128 v[{Z}:{Z+3}], v{t} offset:{LST}")
    I(f"ds_read_b128 v[{Z+4}:{Z+7}], v{t} offset:{LST+16}")
    for w in range(4):
        I(f"ds_read2st64_b32 v[{vT+2*w}:{vT+2*w+1}], v{vLGU} offset0:{2*w} offset1:{2*w+1}")
    if fast: I(f"ds_read_b128 v[{vS+12}:{vS+15}], v{t} offset:{LFL}")
    I("s_waitcnt lgkmcnt(0)" if tstamps else "s_waitcnt lgkmcnt(5)" if fast else "s_waitcnt lgkmcnt(4)")
    m, q = Z + 8, Z + 9
    I(f"v_add_f32 v{m}, v{Z+1}, v{Z+3}")
    I(f"v_add_f32 v{q}, v{Z+5}, v{Z+7}")
    I(f"v_add_f32 v{Z}, v{Z}, v{Z+2}")
    I(f"v_add_f32 v{m}, v{m}, v{q}")
    I(f"v_add_f32 v{Z+4}, v{Z+4}, v{Z+6}")
    I(f"v_mul_f32 v{m}, 0.25, v{m}" if False else f"v_mul_f32 v{m}, {f32(0.25)}, v{m}")
    I(f"v_add_f32 v{Z}, v{Z}, v{Z+4}")
    for k in (1, 3, 5, 7): I(f"v_sub_f32 v{Z+k}, v{Z+k}, v{m}")
    I(f"v_mul_f32 v{Z+1}, v{Z+1}, v{Z+1}")
    I(f"v_mul_f32 v{Z+5}, v{Z+5}, v{Z+5}")
    I(f"v_fmac_f32 v{Z+1}, v{Z+3}, v{Z+3}")
    I(f"v_fmac_f32 v{Z+5}, v{Z+7}, v{Z+7}")
    I(f"v_mul_f32 v{Z}, {f32(1/512)}, v{Z}")
    I(f"v_add_f32 v{Z+1}, v{Z+1}, v{Z+5}")
    I(f"v_fmac_f32 v{Z}, {f32(0.25)}, v{Z+1}")
    I(f"v_cvt_pk_bf16_f32 v{q}, v{m}, v{Z}")
    I("s_waitcnt lgkmcnt(0)")
    I(f"v_add_f32 v{vT}, v{vT}, v{vT+2}")
    I(f"v_lshlrev_b32 v{m}, 16, v{q}")
    I(f"v_and_b32 v{q}, 0xffff0000, v{q}")
    I(f"v_add_f32 v{vT+1}, v{vT+1}, v{vT+3}")
    I(f"v_add_f32 v{q}, {f32(1e-5)}, v{q}")
    I(f"v_add_f32 v{vT+4}, v{vT+4}, v{vT+6}")
    I(f"v_cvt_pk_bf16_f32 v{q}, v{q}, v{q}")
    I(f"v_add_f32 v{vT+5}, v{vT+5}, v{vT+7}")
    I(f"v_and_b32 v{q}, 0xffff0000, v{q}")
    I(f"v_add_f32 v{vT}, v{vT}, v{vT+4}")
    I(f"v_sqrt_f32 v{q}, v{q}")
    I(f"v_add_f32 v{vT+1}, v{vT+1}, v{vT+5}")
    I(f"v_cvt_pk_bf16_f32 v{q}, v{q}, v{q}")
    I(f"v_fma_f32 v{vT}, -v{m}, v{vCS}, v{vT}")
    I(f"v_and_b32 v{q}, 0xffff0000, v{q}")
    I(f"v_fma_f32 v{vT+1}, -v{m}, v{vCS+1}, v{vT+1}")
    I(f"v_rcp_f32 v{q}, v{q}")
    I(f"v_mul_f32 v{vT}, v{vT}, v{q}")
    I(f"v_mul_f32 v{vT+1}, v{vT+1}, v{q}")
    I(f"v_cvt_pk_bf16_f32 v{vT}, v{vT}, v{vT+1}")
    I(f"v_and_b32 v{vT+1}, 0xffff0000, v{vT}")
    I(f"v_lshlrev_b32 v{vT}, 16, v{vT}")
    I(f"v_max_f32 v{vT}, 0, v{vT}")
    I(f"v_mul_f32 v{vT}, v{vT}, v{vT+1}")
    I(f"v_cvt_pk_bf16_f32 v{vP}, v{vT}, v{vT}")
    tstamp()
    gemv_il([vP], "v", vWDF)
    tstamp()
    if fast:
        I(f"v_or3_b32 v{vS+12}, v{vS+12}, v{vS+13}, v{vS+14}")
        I(f"v_or_b32 v{vS+12}, v{vS+12}, v{vS+15}")
        I(f"v_readfirstlane_b32 s8, v{vS+12}")
    swap_reduce(vPB)
    tstamp()
    if align:
        I(f"s_cmp_ge_u32 s{sTC}, 28")
        I("s_cbranch_scc1 L_local")
    if fast:
        I(f"buffer_store_dwordx4 v[{vPB}:{vPB+3}], v{vPUB2}, {srd(sWS)}, s{sP2A} offen")
        I("s_cmp_eq_u32 s8, 0")
        I("s_cbranch_scc1 L_local")
    if halfx: I("s_mov_b32 exec_hi, 0")
    I(f"buffer_store_dwordx4 v[{vPB}:{vPB+3}], v{vPUB if halfx else vPUB2}, {srd(sWS)}, s{sP2} offen {spol}")
    if halfx: I("s_mov_b64 exec, -1")
    if KP > 1: I(f"buffer_store_dwordx4 v[{vPB}:{vPB+3}], v{vPUB2}, {srd(sWS)}, s{sC1} offen {spol}")
    if KP > 2: I(f"buffer_store_dwordx4 v[{vPB}:{vPB+3}], v{vPUB2}, {srd(sWS)}, s{sC2} offen {spol}")
    I("L_local:")
    I(f"s_lshl_b32 s{sTMP}, s{sTC}, 2")
    I(f"s_add_u32 s{sTMP}, s{sTMP}, s{sW}")
    I(f"s_cmp_lg_u32 s{sTMP}, 0")
    I("s_cbranch_scc1 L_noep")
    I(f"s_lshl_b32 s{sTMP}, s{sTB}, 7")
    I("s_mov_b64 exec, 1")
    I(f"buffer_store_dwordx2 v[{vPB+2}:{vPB+3}], v{vHROW}, {srd(sWS)}, s{sTMP} offen {epol}")
    I("s_mov_b64 exec, -1")
    I("L_noep:")
    stamp()
    if not align: I("s_branch L_final")
    I("L_noffn:")
    if fast and not align:
        I("s_mov_b64 exec, 3")
        I(HB)
        I("s_mov_b64 exec, -1")
    if not align:
        I(f"v_lshlrev_b32 v{vH}, 16, v{vPB}")
        I(f"v_and_b32 v{vH+1}, 0xffff0000, v{vPB}")
    I("L_final:")
    I(f"v_mov_b32 v{vR}, 0")
    I(f"v_mov_b32 v{vR+1}, 0")
    I(f"s_mov_b32 exec_hi, 0x00ffffff")
    if KP > 1:
        I(f"s_sleep {dP}")
        sample("L_p2", RING0 + 32, vGAT, [sP2, sC1, sC2][:KP], 2, bP)
    else:
        poll("L_p2", RING0 + 32, vGAT, sP2, 2, soffA=sP2A if fast else None, delay=dP)
    colsum()
    I(f"v_add_f32 v{vT+2}, v{vT+2}, v{vH}")
    I(f"v_add_f32 v{vT+3}, v{vT+3}, v{vH+1}")
    I(f"v_cvt_pk_bf16_f32 v{vT}, v{vT+2}, v{vT+3}")
    if fixref:
        I(f"v_mov_b32 v{vT+5}, 0")
        I(f"global_load_dword v{vT+4}, v{vT+5}, s[76:77] sc1")
        I(f"s_memrealtime s[{sNOW}:{sNOW+1}]")
        I("s_waitcnt vmcnt(0) lgkmcnt(0)")
        I(f"v_readfirstlane_b32 s{sLVL}, v{vT+4}")
        I(f"s_sub_u32 s{sTMP}, s{sT0}, s{sLVL}")
        I(f"s_add_u32 s{sTMP}, s{sTMP}, 1000")
        I(f"s_sub_u32 s{sTMP2}, s{sNOW}, s{sLVL}")
        I(f"s_mov_b32 s{sT0}, s{sLVL}")
        I(f"v_mov_b32 v{vT+6}, s{sTMP}")
        I(f"v_mov_b32 v{vT+7}, s{sTMP2}")
        I("s_mov_b64 exec, 1")
        if fixref == 2:
            I(f"global_atomic_umax v{vT+5}, v{vT+6}, s[76:77] offset:4 sc1")
            I(f"global_atomic_umax v{vT+5}, v{vT+7}, s[76:77] offset:8 sc1")
            I(f"v_sub_u32 v{vT+6}, 2000, v{vT+6}")
            I(f"global_atomic_umax v{vT+5}, v{vT+6}, s[76:77] offset:12 sc1")
        I("s_mov_b64 exec, -1")
    if fixt:
        I("L_fix:")
        I(f"s_memrealtime s[{sNOW}:{sNOW+1}]")
        I("s_waitcnt lgkmcnt(0)")
        I(f"s_sub_u32 s{sLVL}, s{sNOW}, s{sT0}")
        I(f"s_cmp_lt_u32 s{sLVL}, {fixt * 100}")
        I("s_cbranch_scc1 L_fix")
    I("s_mov_b64 exec, 3")
    I(f"buffer_store_dword v{vT}, v{vHST}, {srd(sOUT)}, s{sOUTO} offen {opol}")
    I("s_mov_b64 exec, -1")
    if stamps:
        stamp()
        I(f"s_cmp_lg_u32 s{sW}, 0")
        I("s_cbranch_scc1 L_end")
        I("s_waitcnt lgkmcnt(0)")
        I(f"s_lshl_b32 s{sTMP}, s2, 6")
        I(f"s_add_u32 s{sTMP}, s{sTMP}, {STAMPOFF}")
        I(f"v_mov_b32 v{vT+2}, 0")
        I("s_mov_b64 exec, 1")
        for k in range(stamp_n[0]):
            r = 84 if k == 0 else 60 + 2 * (k - 1)
            I(f"v_mov_b32 v{vT+3}, s{r}")
            I(f"buffer_store_dword v{vT+3}, v{vT+2}, {srd(sWS)}, s{sTMP} offen offset:{4*k}")
        if tstamps:
            for k in range(tn[0]):
                r = 10 + 2 * k if k < 9 else [32, 34, 40, 42][k - 9]
                I(f"v_writelane_b32 v91, s{r}, {k}")
        if pstamps:
            I("s_mov_b64 exec, 0xffff")
            I(f"s_add_u32 s60, s{sTMP}, 0x10000")
            I(f"buffer_store_dword v91, v{vROW}, {srd(sWS)}, s60 offen")
            I("s_mov_b64 exec, 1")
        I("s_getreg_b32 s60, hwreg(HW_REG_XCC_ID)")
        I(f"v_mov_b32 v{vT+3}, s60")
        I(f"buffer_store_dword v{vT+3}, v{vT+2}, {srd(sWS)}, s{sTMP} offen offset:60")
    I("L_end:")
    I("s_endpgm")
    body = a.finish()
    out = HEADER + DESC + "; @launch grid=(256,1,1) block=(256,1,1) lds=10368\n"
    out += '.amdgcn_target "amdgcn-amd-amdhsa--gfx950"\n.text\n'
    out += f".globl {KNAME}\n.p2align 8\n.type {KNAME},@function\n{KNAME}:\n"
    out += body
    out += f'''.section .rodata,"a"
.p2align 6
.amdhsa_kernel {KNAME}
  .amdhsa_next_free_vgpr 512
  .amdhsa_next_free_sgpr 102
  .amdhsa_accum_offset 256
  .amdhsa_group_segment_fixed_size 0
  .amdhsa_kernarg_size 96
  .amdhsa_user_sgpr_count 2
  .amdhsa_user_sgpr_kernarg_segment_ptr 1
  .amdhsa_system_sgpr_workgroup_id_x 1
.end_amdhsa_kernel
'''
    return out

if __name__ == "__main__":
    import json
    cfg = json.loads(sys.argv[2]) if len(sys.argv) > 2 else {}
    open(sys.argv[1], "w").write(gen(**cfg))
```
